```python
import torch

def _softmax(x, axis=-1):
    return torch.softmax(x, dim=axis)
def _gelu(x):
    return torch.nn.functional.gelu(x, approximate="tanh")
def _silu(x):
    return torch.nn.functional.silu(x)
def _sigmoid(x):
    return torch.sigmoid(x)
def _layernorm(x, axis=-1, eps=1e-5):
    m = x.mean(dim=axis, keepdim=True)
    v = x.var(dim=axis, keepdim=True, unbiased=False)
    return (x - m) / torch.sqrt(v + eps)
def _scatter_add(tgt, idx, src, axis=0):
    return tgt.clone().index_add_(axis, idx, src)
def _segment_sum(src, seg, n):
    out = torch.zeros((n,) + src.shape[1:], dtype=src.dtype)
    return out.index_add_(0, seg, src)
def _pad(x, pw):
    flat = tuple(v for pair in reversed(pw) for v in pair)
    return torch.nn.functional.pad(x, flat)

kernel_name = 'parallel_sum__ssm_conv_h3__mixer_token_mlp__prompt'

def setup_inputs():

    _w = (lambda a: (lambda t: t.to(torch.bfloat16) if t.is_floating_point() else t)(torch.as_tensor(a)))
    def _A_setup():
        B, S, D = 1, 2048, 640
        ks = 4
        return {
            "q": _w((lambda *s: torch.randn(*s, dtype=torch.bfloat16) * 0.05)(B, S, D)),
            "k": _w((lambda *s: torch.randn(*s, dtype=torch.bfloat16) * 0.2)(B, S, D)),
            "v": _w((lambda *s: torch.randn(*s, dtype=torch.bfloat16) * 0.2)(B, S, D)),
            "shift_k": _w((lambda *s: torch.randn(*s, dtype=torch.bfloat16) * 0.2)(D, ks) * 0.5),
            "ssm_k": _w((lambda *s: torch.randn(*s, dtype=torch.bfloat16) * 0.2)(D, S) * (1.0 / S ** 0.5)),
            "ssm_D": _w((lambda *s: torch.randn(*s, dtype=torch.bfloat16) * 0.2)(D)),
        }
    _A_in = _A_setup()

    def _B_setup():
        B, S, D, F = 1, 2048, 640, 1536
        return {
            "x": _w((lambda *s: torch.randn(*s, dtype=torch.bfloat16) * 0.05)(B, S, D)),
            "w1": _w((lambda *s: torch.randn(*s, dtype=torch.bfloat16) * 0.4)(S, F) * (S ** -0.5)),
            "b1": _w((lambda *s: torch.randn(*s, dtype=torch.bfloat16) * 3.2)(F) * 0.02),
            "w2": _w((lambda *s: torch.randn(*s, dtype=torch.bfloat16) * 0.1)(F, S) * (F ** -0.5)),
            "b2": _w((lambda *s: torch.randn(*s, dtype=torch.bfloat16) * 0.4)(S) * 0.02),
        }
    _B_in = _B_setup()

    return {
        "A_q": _A_in["q"],
        "A_k": _A_in["k"],
        "A_v": _A_in["v"],
        "A_shift_k": _A_in["shift_k"],
        "A_ssm_k": _A_in["ssm_k"],
        "A_ssm_D": _A_in["ssm_D"],
        "B_x": _B_in["x"],
        "B_w1": _B_in["w1"],
        "B_b1": _B_in["b1"],
        "B_w2": _B_in["w2"],
        "B_b2": _B_in["b2"],
    }

def reference(A_q, A_k, A_v, A_shift_k, A_ssm_k, A_ssm_D, B_x, B_w1, B_b1, B_w2, B_b2):
    def _A_ref(q, k, v, shift_k, ssm_k, ssm_D):
        B, S, D = q.shape
        ks = shift_k.shape[-1]
        k_pad = _pad(k, ((0, 0), (ks - 1, 0), (0, 0)))
        k_shift = torch.zeros_like(k)
        for t in range(ks):
            k_shift = k_shift + k_pad[:, t:t + S, :] * shift_k[:, ks - 1 - t][None, None, :]
        kv = k_shift * v
        L = 2 * S
        kv_pad = _pad(kv, ((0, 0), (0, S), (0, 0)))
        kf_pad = _pad(ssm_k, ((0, 0), (0, S)))
        kv_f = (lambda x, axes=(-2,-1): torch.fft.rfft2(x.float(), dim=axes))(kv_pad[:, None, :, :], axes=(1, 2))
        kf_f = (lambda x, axes=(-2,-1): torch.fft.rfft2(x.float(), dim=axes))(kf_pad[:, None, :], axes=(1, 2))
        kf_f = (lambda x, *d: x.permute(*d))(kf_f, 1, 2, 0)
        y_f = kv_f * kf_f[None, :, :, :]
        y = (lambda x, s, axes=(-2,-1): torch.fft.irfft2(x, s=s, dim=axes).to(torch.bfloat16))(y_f, (1, L), axes=(1, 2))[:, 0, :S, :]
        y = y + kv * ssm_D[None, None, :]
        return q * y

    def _B_ref(x, w1, b1, w2, b2):
        B, S, D = x.shape
        h = _layernorm(x, axis=-1)
        u = torch.einsum("bsd,sf->bdf", h, w1) + b1
        u = _gelu(u)
        y = torch.einsum("bdf,fs->bds", u, w2) + b2
        return (lambda x, *d: x.permute(*d))(y, 0, 2, 1)

    x = A_q
    xn = _layernorm(x, axis=-1)
    return x + _A_ref(xn, A_k, A_v, A_shift_k, A_ssm_k, A_ssm_D) + _B_ref(xn, B_w1, B_b1, B_w2, B_b2)
```

```python
import re

REG_RE = re.compile(r'^(-?)(?:abs\()?([vas])(?:(\d+)|\[(\d+):(\d+)\])\)?$')

def parse_reg(tok):
    tok = tok.strip()
    if tok in ('vcc', 'vcc_lo', 'vcc_hi'): return {('vcc', 0)}
    if tok in ('exec', 'exec_lo', 'exec_hi'): return {('exec', 0)}
    if tok == 'm0': return {('m0', 0)}
    t = tok
    if t.startswith('|') and t.endswith('|'): t = t[1:-1]
    if t.startswith('-|') and t.endswith('|'): t = t[2:-1]
    m = REG_RE.match(t)
    if not m: return set()
    k = m.group(2)
    if m.group(3) is not None: return {(k, int(m.group(3)))}
    return {(k, i) for i in range(int(m.group(4)), int(m.group(5)) + 1)}

TRANS = ('v_exp_', 'v_log_', 'v_rcp_', 'v_rsq_', 'v_sqrt_', 'v_sin_', 'v_cos_')

class Ins:
    __slots__ = ('text', 'mn', 'ops', 'mods', 'kind', 'dst', 'src', 'srcC', 'srcAB', 'passes', 'dpp', 'wide_store_data', 'lds_dma', 'states')
    def __init__(self, text):
        self.text = text
        body = text.split(';')[0].strip()
        parts = body.split(None, 1)
        self.mn = mn = parts[0]
        rest = parts[1] if len(parts) > 1 else ''
        ops = []; cur = ''; depth = 0
        for ch in rest:
            if ch in '[(': depth += 1
            if ch in '])': depth -= 1
            if ch == ',' and depth == 0:
                ops.append(cur.strip()); cur = ''
            else: cur += ch
        mods = ''
        if cur.strip():
            last = cur.strip().split(None, 1)
            ops.append(last[0])
            if len(last) > 1: mods = last[1]
        self.ops = ops; self.mods = mods
        self.dst = set(); self.src = set(); self.srcC = set(); self.srcAB = set()
        self.passes = 0; self.dpp = False; self.wide_store_data = set(); self.lds_dma = False
        self.states = 1
        R = [parse_reg(o) for o in ops]
        allsrc = lambda i: set().union(*R[i:]) if len(R) > i else set()
        if mn.startswith('v_mfma'):
            self.kind = 'mfma'
            self.dst = R[0]; self.srcAB = R[1] | R[2]; self.srcC = R[3]; self.src = self.srcAB | self.srcC
            self.passes = 8 if '32x32x16' in mn else 4
            assert ('32x32x16' in mn or '16x16x32' in mn), mn
        elif mn.startswith('v_'):
            self.kind = 'trans' if mn.startswith(TRANS) else 'valu'
            if mn == 'v_nop':
                pass
            elif mn.startswith('v_permlane') and 'swap' in mn:
                self.dst = R[0] | R[1]; self.src = R[0] | R[1]
            elif mn.startswith(('v_add_co', 'v_sub_co', 'v_subrev_co', 'v_addc_co', 'v_subb_co')):
                self.dst = R[0] | R[1]; self.src = allsrc(2)
            else:
                self.dst = R[0]; self.src = allsrc(1)
                if mn.startswith(('v_fmac', 'v_pk_fmac', 'v_dot2c')): self.src |= R[0]
                if mn.startswith('v_cndmask') and len(ops) == 3: self.src |= {('vcc', 0)}
            if any(x in mods for x in ('quad_perm', 'row_shr', 'row_shl', 'row_ror', 'row_mirror', 'row_half_mirror', 'row_bcast', 'wave_', 'row_newbcast')):
                self.dpp = True
                self.src |= R[0]
        elif mn.startswith('ds_'):
            self.kind = 'ds'
            if mn.startswith(('ds_read', 'ds_bpermute', 'ds_permute', 'ds_swizzle')) or '_rtn' in mn:
                self.dst = R[0]; self.src = allsrc(1)
            else:
                self.src = allsrc(0)
        elif mn.startswith(('buffer_', 'global_', 'flat_')):
            self.kind = 'vmem'
            islds = bool(re.search(r'\blds\b', mods)) or 'load_lds' in mn
            if islds:
                self.lds_dma = True; self.src = allsrc(0) | {('m0', 0)}
            elif 'load' in mn:
                self.dst = R[0]; self.src = allsrc(1)
            elif 'atomic' in mn:
                self.src = allsrc(0)
                if 'sc0' in mods: self.dst = R[0]
            elif mn in ('buffer_wbl2', 'buffer_inv'):
                pass
            else:
                self.src = allsrc(0)
                if mn.endswith(('x3', 'x4')):
                    self.wide_store_data = R[0] if mn.startswith('buffer_') else R[1]
        elif mn.startswith('s_'):
            self.kind = 'salu'
            if mn == 's_nop':
                self.states = int(ops[0], 0) + 1
            elif mn.startswith(('s_cmp', 's_waitcnt', 's_barrier', 's_branch', 's_cbranch', 's_endpgm', 's_setprio', 's_sleep', 's_bitcmp')):
                self.src = allsrc(0)
            elif mn.startswith(('s_load', 's_buffer_load', 's_memtime', 's_memrealtime', 's_atomic')):
                self.kind = 'smem'; self.dst = R[0]; self.src = allsrc(1)
            else:
                self.dst = R[0]; self.src = allsrc(1)
                if 'saveexec' in mn: self.dst |= {('exec', 0)}
        else:
            raise ValueError('unknown instr ' + text)

def isv(s): return {r for r in s if r[0] in 'va' and r[0] != 'vcc'}
def issg(s): return {r for r in s if r[0] in ('s', 'vcc')}

def need(p, c):
    n = 0
    pv = p.kind in ('valu', 'trans')
    cv = c.kind in ('valu', 'trans')
    if pv:
        pd = isv(p.dst)
        if c.kind == 'mfma' and pd & c.src: n = max(n, 2)
        if cv and c.dpp and pd & c.src: n = max(n, 2)
        if cv and c.mn.startswith(('v_readlane', 'v_readfirstlane')) and pd & c.src: n = max(n, 1)
        if cv and c.mn.startswith('v_permlane') and pd & c.src: n = max(n, 2)
        if p.kind == 'trans' and c.kind != 'trans' and pd & c.src: n = max(n, 1)
        if ('op_sel' in p.mods or 'dst_sel' in p.mods) and not p.mn.startswith('v_pk') and pd & (c.src | c.dst): n = max(n, 1)
        ps = issg(p.dst)
        if ps:
            if c.kind == 'vmem' and ps & c.src: n = max(n, 5)
            if cv and ps & c.src:
                n = max(n, 4 if c.mn.startswith(('v_readlane', 'v_writelane', 'v_div_fmas')) else 2)
            if c.kind in ('salu', 'smem') and ps & c.src: n = max(n, 1)
        if ('exec', 0) in p.dst:
            n = max(n, 5)
    if p.kind == 'mfma':
        big = p.passes == 8
        if c.kind == 'mfma':
            if p.dst & c.srcAB: n = max(n, 12 if big else 8)
            if p.dst & c.srcC:
                if not (p.dst == c.srcC and p.passes == c.passes): n = max(n, 10 if big else 6)
            if p.dst & c.dst and not (p.dst == c.srcC): n = max(n, 12 if big else 8)
        elif p.dst & (c.src | c.dst): n = max(n, 12 if big else 8)
        if cv and p.srcC & c.dst: n = max(n, 7 if big else 3)
    if p.kind == 'salu' and ('m0', 0) in p.dst and c.lds_dma: n = max(n, 1)
    if p.wide_store_data and p.wide_store_data & c.dst: n = max(n, 2 if cv else 1)
    return n

class Asm:
    def __init__(self):
        self.lines = []
        self.vm = []
        self.lg = []
        self.uid = 0
    def raw(self, text): self.lines.append(('r', text))
    def label(self, name):
        self.lines.append(('l', name))
    def __call__(self, text, tag=None):
        for t in text.strip().split('\n'):
            t = t.strip()
            if not t or t.startswith(';'): continue
            ins = Ins(t)
            self.lines.append(('i', ins))
            if ins.kind == 'vmem' and ins.mn not in ('buffer_wbl2', 'buffer_inv'):
                self.vm.append(tag)
            elif ins.kind == 'ds':
                self.lg.append(tag)
            elif ins.mn == 's_waitcnt':
                m = re.search(r'vmcnt\((\d+)\)', t)
                if m:
                    n = int(m.group(1)); self.vm = self.vm[len(self.vm) - n:] if n < len(self.vm) else self.vm
                    if n == 0: self.vm = []
                m = re.search(r'lgkmcnt\((\d+)\)', t)
                if m:
                    n = int(m.group(1)); self.lg = self.lg[len(self.lg) - n:] if n < len(self.lg) else self.lg
                    if n == 0: self.lg = []
    def _cnt(self, lst, tags, maxn):
        if not isinstance(tags, (list, tuple, set)): tags = [tags]
        idx = -1
        for i, t in enumerate(lst):
            if t in tags: idx = i
        if idx < 0: return None
        n = len(lst) - 1 - idx
        return min(n, maxn)
    def wait(self, vm=None, lg=None):
        parts = []
        if vm is not None:
            n = self._cnt(self.vm, vm, 63)
            if n is not None: parts.append(f'vmcnt({n})')
        if lg is not None:
            n = self._cnt(self.lg, lg, 15)
            if n is not None: parts.append(f'lgkmcnt({n})')
        if parts: self('s_waitcnt ' + ' '.join(parts))
    def reset_counts(self):
        self.vm = []; self.lg = []
    def render(self):
        out = []
        hist = []
        for kind, x in self.lines:
            if kind == 'r':
                out.append(x); continue
            if kind == 'l':
                out.append(f'{x}:')
                out.append('    s_nop 4')
                hist.append(Ins('s_nop 4'))
                continue
            ins = x
            dist = 0; pad = 0
            for p in reversed(hist[-24:]):
                n = need(p, ins)
                if n > dist: pad = max(pad, n - dist)
                dist += p.states
                if dist >= 20: break
            while pad > 0:
                k = min(pad, 16)
                nop = Ins(f's_nop {k-1}')
                out.append('    ' + nop.text); hist.append(nop); pad -= k
            out.append('    ' + ins.text); hist.append(ins)
        return '\n'.join(out) + '\n'

def kernel_header(name):
    return f""".text
.globl {name}
.p2align 8
.type {name},@function
{name}:
"""

def kernel_desc(name, vgpr, sgpr, accum=None):
    if accum is None: accum = (vgpr + 3) // 4 * 4
    return f""".section .rodata,"a"
.p2align 6
.amdhsa_kernel {name}
  .amdhsa_next_free_vgpr {vgpr}
  .amdhsa_next_free_sgpr {sgpr}
  .amdhsa_accum_offset {accum}
  .amdhsa_group_segment_fixed_size 0
  .amdhsa_kernarg_size 112
  .amdhsa_user_sgpr_count 2
  .amdhsa_user_sgpr_kernarg_segment_ptr 1
  .amdhsa_system_sgpr_workgroup_id_x 1
  .amdhsa_float_denorm_mode_32 3
  .amdhsa_float_denorm_mode_16_64 3
.end_amdhsa_kernel
"""
```

```python
from asmlib import *

S, D, F = 2048, 640, 1536
HF_OFF  = 0x000000
KVR_OFF = 0x280000
Z_OFF   = 0x500000
GF_OFF  = 0x780000
ST_OFF  = 0x960000
WS_TOTAL = 0x964000
XBYTES = S * D * 2

def srd(a, d, base, nbytes):
    a(f"s_mov_b32 s{d}, s{base}")
    a(f"s_and_b32 s{d+1}, s{base+1}, 0xffff")
    a(f"s_mov_b32 s{d+2}, {nbytes}")
    a(f"s_mov_b32 s{d+3}, 0x00020000")

def reduce2(a, x, y, tx, ty):
    for m in ("quad_perm:[1,0,3,2]", "quad_perm:[2,3,0,1]", "row_half_mirror", "row_mirror"):
        a(f"v_add_f32_dpp v{x}, v{x}, v{x} {m} row_mask:0xf bank_mask:0xf")
        a(f"v_add_f32_dpp v{y}, v{y}, v{y} {m} row_mask:0xf bank_mask:0xf")
    for p in ("v_permlane16_swap_b32", "v_permlane32_swap_b32"):
        a(f"v_mov_b32 v{tx}, v{x}")
        a(f"v_mov_b32 v{ty}, v{y}")
        a(f"{p} v{x}, v{tx}")
        a(f"{p} v{y}, v{ty}")
        a(f"v_add_f32 v{x}, v{x}, v{tx}")
        a(f"v_add_f32 v{y}, v{y}, v{ty}")

def unpack(a, dst, src, n):
    for i in range(n):
        a(f"v_lshlrev_b32 v{dst+2*i}, 16, v{src+i}")
        a(f"v_and_b32 v{dst+2*i+1}, 0xffff0000, v{src+i}")

def pr(r): return f"v[{r}:{r+1}]"

LN_WGS = 256
KV_WGS = 80
K1_LDS = 8 * 1344

def gen_k1(name):
    a = Asm()
    a.raw(kernel_header(name))
    a(f"s_cmp_ge_u32 s2, {LN_WGS + KV_WGS}")
    a("s_cbranch_scc1 K1_DONE")
    a("s_load_dwordx8 s[4:11], s[0:1], 0")
    a("s_load_dwordx2 s[12:13], s[0:1], 104")
    a("v_lshrrev_b32 v1, 6, v0")
    a("v_and_b32 v2, 63, v0")
    a("v_readfirstlane_b32 s40, v1")
    a(f"s_cmp_ge_u32 s2, {LN_WGS}")
    a("s_cbranch_scc1 K1_KV")
    a("s_lshr_b32 s41, s2, 2")
    a("s_and_b32 s42, s2, 3")
    a("s_lshl_b32 s43, s41, 5")
    a("s_lshl_b32 s44, s42, 2")
    a("s_add_u32 s43, s43, s44")
    a("s_and_b32 s44, s40, 3")
    a("s_add_u32 s43, s43, s44")
    a("s_lshr_b32 s44, s40, 2")
    a("s_lshl_b32 s44, s44, 4")
    a("s_add_u32 s43, s43, s44")
    a("s_mul_i32 s45, s43, 1280")
    a("v_lshlrev_b32 v3, 3, v2")
    a("v_lshlrev_b32 v4, 2, v2")
    a("s_waitcnt lgkmcnt(0)")
    srd(a, 16, 4, XBYTES)
    a("buffer_load_dwordx2 v[8:9], v3, s[16:19], s45 offen")
    a("buffer_load_dwordx2 v[10:11], v3, s[16:19], s45 offen offset:512")
    a("buffer_load_dword v12, v4, s[16:19], s45 offen offset:1024")
    srd(a, 32, 12, WS_TOTAL)
    a("s_mul_i32 s46, s40, 1344")
    a("v_add_u32 v5, s46, v3")
    a("v_add_u32 v6, s46, v4")
    a("v_bfe_u32 v40, v2, 2, 2")
    a("s_movk_i32 s47, 1344")
    a("v_mul_u32_u24 v40, s47, v40")
    a("v_lshrrev_b32 v41, 4, v2")
    a("v_lshl_add_u32 v40, v41, 5, v40")
    a("v_and_b32 v42, 3, v2")
    a("v_lshl_add_u32 v40, v42, 3, v40")
    a("s_lshl_b32 s47, s40, 7")
    a("v_add_u32 v40, s47, v40")
    a("v_and_b32 v42, 15, v2")
    a("v_lshlrev_b32 v42, 4, v42")
    a("v_lshl_add_u32 v42, v41, 10, v42")
    a("s_lshl_b32 s47, s40, 6")
    a("s_add_u32 s47, s47, s41")
    a("s_lshl_b32 s47, s47, 12")
    a("s_lshl_b32 s48, s42, 8")
    a("s_add_u32 s47, s47, s48")
    a("s_lshl_b32 s49, s43, 3")
    a(f"s_add_u32 s49, s49, {ST_OFF}")
    a("s_mov_b32 s50, 0x3acccccd")
    a("s_waitcnt vmcnt(0)")
    X = 16
    T = 44
    unpack(a, X, 8, 5)
    a(f"v_readfirstlane_b32 s46, v{X}")
    for i in range(10):
        a(f"v_subrev_f32 v{T+i}, s46, v{X+i}")
    def sums(src):
        a(f"v_pk_add_f32 v[26:27], {pr(src)}, {pr(src+2)}")
        a(f"v_pk_mul_f32 v[28:29], {pr(src)}, {pr(src)}")
        for i in range(1, 5):
            if i >= 2: a(f"v_pk_add_f32 v[26:27], v[26:27], {pr(src+2*i)}")
            a(f"v_pk_fma_f32 v[28:29], {pr(src+2*i)}, {pr(src+2*i)}, v[28:29]")
        a("v_add_f32 v26, v26, v27")
        a("v_add_f32 v28, v28, v29")
        reduce2(a, 26, 28, 27, 29)
    def stats(shift):
        a("v_mul_f32 v26, s50, v26")
        a("v_mul_f32 v28, s50, v28")
        a("v_fma_f32 v28, -v26, v26, v28")
        a("v_max_f32 v28, 0, v28")
        if shift: a("v_add_f32 v26, s46, v26")
        a("v_cvt_pk_bf16_f32 v27, v26, v28")
        a("v_lshlrev_b32 v30, 16, v27")
        a("v_and_b32 v28, 0xffff0000, v27")
        a("v_add_f32 v28, 0x3727c5ac, v28")
        a("v_cvt_pk_bf16_f32 v28, v28, v28")
        a("v_lshlrev_b32 v28, 16, v28")
        a("v_sqrt_f32 v28, v28")
        a("v_cvt_pk_bf16_f32 v28, v28, v28")
        a("v_lshlrev_b32 v28, 16, v28")
        a("v_rcp_f32 v32, v28")
    def normalize(src, dstp):
        for i in range(5):
            a(f"v_pk_add_f32 {pr(T+2*i)}, {pr(src+2*i)}, v[30:31] op_sel_hi:[1,0] neg_lo:[0,1] neg_hi:[0,1]")
        for i in range(5):
            a(f"v_cvt_pk_bf16_f32 v{dstp+i}, v{T+2*i}, v{T+2*i+1}")
        unpack(a, T, dstp, 5)
        for i in range(5):
            a(f"v_pk_mul_f32 {pr(T+2*i)}, {pr(T+2*i)}, v[32:33] op_sel_hi:[1,0]")
        for i in range(5):
            a(f"v_cvt_pk_bf16_f32 v{dstp+i}, v{T+2*i}, v{T+2*i+1}")
    sums(T)
    stats(True)
    a("v_mov_b32 v34, v30")
    a("v_mov_b32 v35, v32")
    a("v_mov_b32 v36, 0")
    a("s_mov_b64 exec, 1")
    a("buffer_store_dwordx2 v[34:35], v36, s[32:35], s49 offen")
    a("s_mov_b64 exec, -1")
    normalize(X, 8)
    unpack(a, X, 8, 5)
    sums(X)
    stats(False)
    normalize(X, 8)
    a("ds_write_b64 v5, v[8:9]")
    a("ds_write_b64 v5, v[10:11] offset:512")
    a("ds_write_b32 v6, v12 offset:1024")
    a("s_waitcnt lgkmcnt(0)")
    a("s_barrier")
    a("ds_read_b64_tr_b16 v[16:17], v40")
    a(f"ds_read_b64_tr_b16 v[18:19], v40 offset:{4*1344}")
    a("s_cmp_ge_u32 s40, 2")
    a("s_cbranch_scc1 K1_LN_ONE")
    a("ds_read_b64_tr_b16 v[20:21], v40 offset:1024")
    a(f"ds_read_b64_tr_b16 v[22:23], v40 offset:{4*1344+1024}")
    a(f"s_add_u32 s48, s47, {8*64*4096}")
    a("s_waitcnt lgkmcnt(0)")
    a("buffer_store_dwordx4 v[20:23], v42, s[32:35], s48 offen")
    a.label("K1_LN_ONE")
    a("s_waitcnt lgkmcnt(0)")
    a("buffer_store_dwordx4 v[16:19], v42, s[32:35], s47 offen")
    a("s_endpgm")
    a.label("K1_KV")
    a.reset_counts()
    a(f"s_sub_u32 s41, s2, {LN_WGS}")
    a("s_mul_i32 s42, s41, 205")
    a("s_lshr_b32 s42, s42, 10")
    a("s_mul_i32 s43, s42, 5")
    a("s_sub_u32 s43, s41, s43")
    a("s_lshl_b32 s43, s43, 2")
    a("s_and_b32 s44, s40, 3")
    a("s_add_u32 s43, s43, s44")
    a("s_lshl_b32 s42, s42, 1")
    a("s_lshr_b32 s44, s40, 2")
    a("s_add_u32 s42, s42, s44")
    a("v_and_b32 v3, 7, v2")
    a("v_lshrrev_b32 v4, 3, v2")
    a("s_movk_i32 s44, 10240")
    a("v_mul_u32_u24 v5, s44, v3")
    a("v_lshl_add_u32 v5, v4, 3, v5")
    a("s_mul_i32 s45, s42, 81920")
    a("s_lshl_b32 s46, s43, 6")
    a("s_add_u32 s45, s45, s46")
    a("v_add_u32 v5, s45, v5")
    a("v_subrev_u32 v6, 3840, v5")
    a("v_add_u32 v7, 5120, v5")
    a("v_lshlrev_b32 v8, 5, v4")
    a("s_lshl_b32 s46, s43, 8")
    a("s_waitcnt lgkmcnt(0)")
    srd(a, 20, 6, XBYTES)
    srd(a, 24, 8, XBYTES)
    srd(a, 28, 10, D * 8)
    KR = 10
    VR = 32
    SK = 48
    a(f"buffer_load_dwordx4 v[{SK}:{SK+3}], v8, s[28:31], s46 offen")
    a(f"buffer_load_dwordx4 v[{SK+4}:{SK+7}], v8, s[28:31], s46 offen offset:16")
    for t in range(11):
        if t < 3: ad, off = 6, t * 1280
        elif t < 7: ad, off = 5, (t - 3) * 1280
        else: ad, off = 7, (t - 7) * 1280
        a(f"buffer_load_dwordx2 {pr(KR+2*t)}, v{ad}, s[20:23], 0 offen offset:{off}")
    for t in range(8):
        ad, off = (5, t * 1280) if t < 4 else (7, (t - 4) * 1280)
        a(f"buffer_load_dwordx2 {pr(VR+2*t)}, v{ad}, s[24:27], 0 offen offset:{off}")
    srd(a, 32, 12, WS_TOTAL)
    a("v_lshlrev_b32 v9, 14, v4")
    a("v_lshl_add_u32 v9, v3, 4, v9")
    a("s_lshl_b32 s47, s43, 17")
    a("s_lshl_b32 s48, s42, 7")
    a("s_add_u32 s47, s47, s48")
    a(f"s_add_u32 s47, s47, {KVR_OFF}")
    W = 56
    KF = 64
    VF = 86
    O = 102
    a("s_waitcnt vmcnt(0)")
    for p in range(2):
        for e in range(2):
            c = 2 * p + e
            a(f"v_lshlrev_b32 v{W+0+e}, 16, v{SK+2*c}")
            a(f"v_and_b32 v{W+2+e}, 0xffff0000, v{SK+2*c}")
            a(f"v_lshlrev_b32 v{W+4+e}, 16, v{SK+2*c+1}")
            a(f"v_and_b32 v{W+6+e}, 0xffff0000, v{SK+2*c+1}")
        for t in range(11):
            a(f"v_lshlrev_b32 v{KF+2*t}, 16, v{KR+2*t+p}")
            a(f"v_and_b32 v{KF+2*t+1}, 0xffff0000, v{KR+2*t+p}")
        for t in range(8):
            a(f"v_lshlrev_b32 v{VF+2*t}, 16, v{VR+2*t+p}")
            a(f"v_and_b32 v{VF+2*t+1}, 0xffff0000, v{VR+2*t+p}")
        for r in range(8):
            a(f"v_pk_mul_f32 {pr(KF+2*r)}, {pr(KF+2*r)}, {pr(W+6)}")
            a(f"v_pk_fma_f32 {pr(KF+2*r)}, {pr(KF+2*(r+1))}, {pr(W+4)}, {pr(KF+2*r)}")
            a(f"v_pk_fma_f32 {pr(KF+2*r)}, {pr(KF+2*(r+2))}, {pr(W+2)}, {pr(KF+2*r)}")
            a(f"v_pk_fma_f32 {pr(KF+2*r)}, {pr(KF+2*(r+3))}, {pr(W+0)}, {pr(KF+2*r)}")
        for r in range(8):
            a(f"v_pk_mul_f32 {pr(VF+2*r)}, {pr(VF+2*r)}, {pr(KF+2*r)}")
        Ob = O if p == 0 else O + 8
        for e in range(2):
            for q in range(4):
                a(f"v_cvt_pk_bf16_f32 v{Ob+4*e+q}, v{VF+2*(7-2*q)+e}, v{VF+2*(6-2*q)+e}")
        for e in range(2):
            c = 2 * p + e
            if c > 0: a(f"s_add_u32 s47, s47, 4096")
            a(f"buffer_store_dwordx4 v[{Ob+4*e}:{Ob+4*e+3}], v9, s[32:35], s47 offen")
    a.label("K1_DONE")
    a("s_endpgm")
    return a.render(), kernel_desc(name, 120, 64)
```

```python
from asmlib import *
from k1 import *

G1_D = 5
G1_RING = G1_D * 4096
CV_BASE = 4 * G1_RING
CV_CH = 4 * 4160 + 512 + 4096
CV_WAVES = 3
K2_CNT = CV_BASE + CV_WAVES * CV_CH
K2_LDS = K2_CNT + 256
K2_THREADS = (4 + CV_WAVES) * 64

def q4(r): return f"v[{r}:{r+3}]"

def gelu_pack(a, src, n, bias, dst, t0):
    for i in range(0, n, 2):
        a(f"v_cvt_pk_bf16_f32 v{t0+i//2}, v{src+i}, v{src+i+1}")
    for i in range(0, n, 2):
        a(f"v_lshlrev_b32 v{src+i}, 16, v{t0+i//2}")
        a(f"v_and_b32 v{src+i+1}, 0xffff0000, v{t0+i//2}")
    for i in range(0, n, 2):
        a(f"v_pk_add_f32 {pr(src+i)}, {pr(src+i)}, {pr(bias+i)}")
    for i in range(0, n, 2):
        a(f"v_cvt_pk_bf16_f32 v{t0+i//2}, v{src+i}, v{src+i+1}")
    for i in range(0, n, 2):
        a(f"v_lshlrev_b32 v{src+i}, 16, v{t0+i//2}")
        a(f"v_and_b32 v{src+i+1}, 0xffff0000, v{t0+i//2}")
    for i in range(0, n, 2):
        a(f"v_pk_mul_f32 {pr(bias+i)}, {pr(src+i)}, {pr(src+i)}")
    for i in range(n):
        a(f"v_fma_f32 v{bias+i}, v{bias+i}, s60, v{t0+n//2}")
    for i in range(0, n, 2):
        a(f"v_pk_mul_f32 {pr(bias+i)}, {pr(bias+i)}, {pr(src+i)}")
    for i in range(n):
        a(f"v_exp_f32 v{bias+i}, v{bias+i}")
    for i in range(n):
        a(f"v_add_f32 v{bias+i}, 1.0, v{bias+i}")
    for i in range(n):
        a(f"v_rcp_f32 v{bias+i}, v{bias+i}")
    for i in range(0, n, 2):
        a(f"v_pk_mul_f32 {pr(src+i)}, {pr(src+i)}, {pr(bias+i)}")
    for i in range(0, n, 2):
        a(f"v_cvt_pk_bf16_f32 v{dst+i//2}, v{src+i}, v{src+i+1}")

import struct, math
def f2u(x): return struct.unpack('<I', struct.pack('<f', x))[0]
GELU_K0 = -2.0 * math.sqrt(2.0 / math.pi) * math.log2(math.e)
GELU_K1 = GELU_K0 * 0.044715

def lds_sync(a, cnt_addr_v, one_v, tmp_v, target, lbl):
    a("s_waitcnt lgkmcnt(0)")
    a("s_mov_b64 exec, 1")
    a(f"ds_add_u32 v{cnt_addr_v}, v{one_v}")
    a("s_mov_b64 exec, -1")
    a.label(lbl)
    a(f"ds_read_b32 v{tmp_v}, v{cnt_addr_v}")
    a("s_waitcnt lgkmcnt(0)")
    a(f"v_readfirstlane_b32 s61, v{tmp_v}")
    a(f"s_cmp_lt_u32 s61, {target}")
    a(f"s_cbranch_scc1 {lbl}")

def gen_k2(name):
    a = Asm()
    a.raw(kernel_header(name))
    a("s_cmp_ge_u32 s2, 256")
    a("s_cbranch_scc1 K2_DONE")
    a("s_load_dwordx4 s[4:7], s[0:1], 32")
    a("s_load_dwordx4 s[8:11], s[0:1], 56")
    a("s_load_dwordx2 s[12:13], s[0:1], 104")
    a("v_lshrrev_b32 v1, 6, v0")
    a("v_and_b32 v2, 63, v0")
    a("v_readfirstlane_b32 s40, v1")
    a("s_cmp_ge_u32 s40, 4")
    a("s_cbranch_scc1 K2_CONV")
    a("s_cmp_ge_u32 s2, 240")
    a("s_cbranch_scc1 K2_DONE")
    a("s_setprio 2")
    a("s_and_b32 s41, s2, 7")
    a("s_lshr_b32 s42, s2, 3")
    a("s_mul_i32 s43, s42, 171")
    a("s_lshr_b32 s43, s43, 9")
    a("s_mul_i32 s44, s43, 3")
    a("s_sub_u32 s44, s42, s44")
    a("s_mul_i32 s41, s41, 3")
    a("s_add_u32 s44, s44, s41")
    a("v_lshlrev_b32 v3, 4, v2")
    for i in range(4):
        a(f"s_add_u32 s45, s40, {i}")
        a("s_and_b32 s45, s45, 3")
        a("s_lshl_b32 s45, s45, 10")
        a(f"v_add_u32 v{4+i}, s45, v3")
    a("s_lshl_b32 s46, s43, 6")
    a("s_lshl_b32 s45, s40, 4")
    a("s_add_u32 s46, s46, s45")
    a("s_lshl_b32 s46, s46, 12")
    a("v_lshrrev_b32 v12, 3, v2")
    a("s_movk_i32 s45, 3072")
    a("v_mul_u32_u24 v8, s45, v12")
    a("v_bfe_u32 v12, v2, 1, 2")
    a("v_lshrrev_b32 v13, 4, v2")
    a("v_xor_b32 v12, v12, v13")
    a("v_lshl_add_u32 v8, v12, 5, v8")
    a("v_and_b32 v12, 1, v2")
    a("v_lshl_add_u32 v8, v12, 4, v8")
    for t in range(1, 4):
        a(f"v_add_u32 v{8+t}, {t*(24576-1024)}, v8")
    a(f"s_mul_i32 s47, s40, {512*3072}")
    a("s_lshl_b32 s45, s44, 7")
    a("s_add_u32 s47, s47, s45")
    a(f"s_mul_i32 s48, s40, {G1_RING}")
    a("v_lshrrev_b32 v16, 2, v2")
    a("v_lshlrev_b32 v16, 7, v16")
    a("v_and_b32 v17, 3, v2")
    a("v_lshl_add_u32 v16, v17, 3, v16")
    a("v_add_u32 v16, s48, v16")
    a("v_bfe_u32 v17, v2, 3, 2")
    for phi in range(4):
        a(f"v_xor_b32 v18, {phi}, v17")
        a(f"v_lshl_add_u32 v{12+phi}, v18, 5, v16")
    a("v_lshrrev_b32 v16, 4, v2")
    a("v_lshlrev_b32 v16, 3, v16")
    a("s_waitcnt lgkmcnt(0)")
    srd(a, 16, 12, WS_TOTAL)
    srd(a, 20, 8, S * F * 2)
    srd(a, 24, 10, F * 2)
    ACC = 32
    HB = 96
    WB = HB + G1_D * 16
    BI = 20
    assert WB + 32 <= 256
    NK = 16
    def dma(t):
        slot = t % G1_D
        a(f"s_add_u32 m0, s48, {slot*4096}")
        for i in range(4):
            a(f"buffer_load_dwordx4 v{8+i}, s[20:23], s47 offen offset:{i*1024} lds", tag=('w', t))
        a(f"s_add_u32 s47, s47, {32*3072}")
    def hload(t):
        slot = t % G1_D
        for i in range(4):
            a(f"buffer_load_dwordx4 {q4(HB+slot*16+i*4)}, v{4+i}, s[16:19], s46 offen", tag=('h', t))
        a("s_add_u32 s46, s46, 4096")
    def trread(t):
        slot = t % G1_D
        wb = WB + (t & 1) * 16
        for phi in range(4):
            a(f"ds_read_b64_tr_b16 {pr(wb+phi*4)}, v{12+phi} offset:{slot*4096}", tag=('r', t))
            a(f"ds_read_b64_tr_b16 {pr(wb+phi*4+2)}, v{12+phi} offset:{slot*4096+2048}", tag=('r', t))
    for t in range(G1_D):
        dma(t); hload(t)
    for phi in range(4):
        a(f"buffer_load_dwordx2 {pr(BI+2*phi)}, v16, s[24:27], s45 offen offset:{phi*32}", tag='b')
    a(f"v_mov_b32 v18, {K2_CNT}")
    a("v_mov_b32 v19, 0")
    a("ds_write_b32 v18, v19")
    a("s_waitcnt lgkmcnt(0)")
    a("s_barrier")
    a.wait(vm=[('w', 0)])
    trread(0)
    for t in range(NK):
        slot = t % G1_D
        wb = WB + (t & 1) * 16
        hb = HB + slot * 16
        a.wait(vm=[('h', t)], lg=[('r', t)])
        def mf(phi, di):
            c = ACC + (phi * 4 + di) * 4
            src = "0" if t == 0 else q4(c)
            a(f"v_mfma_f32_16x16x32_bf16 {q4(c)}, {q4(wb+phi*4)}, {q4(hb+di*4)}, {src}")
        for di in range(4): mf(0, di)
        if t + G1_D < NK: dma(t + G1_D)
        for di in range(4): mf(1, di)
        if t + 1 < NK:
            a.wait(vm=[('w', t + 1)])
            trread(t + 1)
        for phi in (2, 3):
            for di in range(4): mf(phi, di)
        if t + G1_D < NK: hload(t + G1_D)
    a("v_add_u32 v4, s48, v3")
    for di in range(1, 4):
        for phi in range(4):
            a(f"ds_write_b128 v4, {q4(ACC+(phi*4+di)*4)} offset:{(di-1)*4096+phi*1024}")
    for di in range(1, 4):
        a(f"s_sub_u32 s45, s40, {di}")
        a("s_and_b32 s45, s45, 3")
        a(f"s_mul_i32 s45, s45, {G1_RING}")
        a(f"v_add_u32 v{4+di}, s45, v3")
    a("v_mov_b32 v19, 1")
    a("s_lshl_b32 s45, s43, 2")
    a("s_add_u32 s45, s45, s40")
    a("s_mul_i32 s46, s45, 205")
    a("s_lshr_b32 s46, s46, 10")
    a("s_mul_i32 s47, s46, 5")
    a("s_sub_u32 s47, s45, s47")
    a("s_mul_i32 s46, s46, 48")
    a("s_lshl_b32 s49, s44, 1")
    a("s_add_u32 s46, s46, s49")
    a("s_mul_i32 s46, s46, 5")
    a("s_add_u32 s46, s46, s47")
    a("s_lshl_b32 s46, s46, 10")
    a(f"s_add_u32 s46, s46, {GF_OFF}")
    a("s_add_u32 s47, s46, 5120")
    a(f"s_mov_b32 s60, {f2u(GELU_K1):#x}")
    BF = HB + 48
    a.wait(vm='b')
    unpack(a, BF, BI, 8)
    lds_sync(a, 18, 19, 17, 4, "K2_SPIN")
    RB = HB
    for di in range(1, 4):
        for phi in range(4):
            a(f"ds_read_b128 {q4(RB+((di-1)*4+phi)*4)}, v{4+di} offset:{(di-1)*4096+phi*1024}", tag=('p', di))
    SUM = WB
    a(f"v_mov_b32 v{28}, {f2u(GELU_K0):#x}")
    for di in range(1, 4):
        a.wait(lg=[('p', di)])
        for phi in range(4):
            for h in range(2):
                s0 = ACC + (phi * 4) * 4 + 2 * h if di == 1 else SUM + phi * 4 + 2 * h
                a(f"v_pk_add_f32 {pr(SUM+phi*4+2*h)}, {pr(s0)}, {pr(RB+((di-1)*4+phi)*4+2*h)}")
    OUT = WB + 16
    gelu_pack(a, SUM, 16, BF, OUT, 20)
    a(f"buffer_store_dwordx4 {q4(OUT)}, v3, s[16:19], s46 offen")
    a(f"buffer_store_dwordx4 {q4(OUT+4)}, v3, s[16:19], s47 offen")
    a("s_endpgm")

    a.label("K2_CONV")
    a.reset_counts()
    a("s_sub_u32 s41, s40, 4")
    a("s_lshl_b32 s42, s41, 8")
    a("s_sub_u32 s43, 255, s2")
    a("s_add_u32 s42, s42, s43")
    a(f"s_cmp_ge_u32 s42, {D}")
    a("s_cbranch_scc1 K2_DONE")
    a(f"s_mul_i32 s43, s41, {CV_CH}")
    a(f"s_add_u32 s43, s43, {CV_BASE}")
    a(f"s_add_u32 s44, s43, {4*4160}")
    a("v_lshlrev_b32 v3, 4, v2")
    a("s_lshl_b32 s45, s42, 12")
    a("s_lshl_b32 s46, s42, 1")
    a("v_mov_b32 v4, 0")
    a("s_waitcnt lgkmcnt(0)")
    srd(a, 16, 12, WS_TOTAL)
    srd(a, 28, 4, D * S * 2)
    srd(a, 32, 6, D * 2)
    a("buffer_load_dwordx2 v[6:7], v4, s[28:31], s45 offen", tag='h0')
    a("buffer_load_ushort v8, v4, s[32:35], s46 offen", tag='h0')
    a("s_add_u32 m0, s44, 512")
    a(f"s_add_u32 s47, s45, {KVR_OFF}")
    for t in range(4):
        a(f"buffer_load_dwordx4 v3, s[16:19], s47 offen offset:{t*1024} lds", tag='dma')
    for j in range(4):
        a(f"s_add_u32 m0, s43, {j*4160+32}")
        a(f"s_add_u32 s47, s45, {2*j}")
        for t in range(4):
            a(f"buffer_load_dwordx4 v3, s[28:31], s47 offen offset:{t*1024} lds", tag='dma')
    a("v_lshlrev_b32 v9, 3, v2")
    a("v_add_u32 v9, s44, v9")
    a("v_mov_b32 v5, 0")
    a("ds_write_b64 v9, v[4:5]")
    a("s_barrier")
    a("v_and_b32 v11, 15, v2")
    a("v_lshrrev_b32 v12, 4, v2")
    a("v_add_u32 v13, 1, v11")
    a("v_and_b32 v14, 3, v13")
    a("s_movk_i32 s47, 4160")
    a("v_mul_u32_u24 v10, s47, v14")
    a("v_and_b32 v14, 0x1c, v13")
    a("v_lshl_add_u32 v10, v14, 1, v10")
    a("v_lshl_add_u32 v10, v12, 4, v10")
    a("v_add_u32 v10, s43, v10")
    a("v_lshlrev_b32 v15, 1, v11")
    a("v_sub_u32 v15, v15, v12")
    a("v_lshlrev_b32 v15, 4, v15")
    a(f"s_add_u32 s47, s44, {33*16-448}")
    a("v_add_u32 v15, s47, v15")
    a("v_lshrrev_b32 v16, 2, v2")
    a("v_and_b32 v17, 3, v2")
    a("s_movk_i32 s47, 4160")
    a("v_mul_u32_u24 v18, s47, v16")
    a("v_lshl_add_u32 v18, v17, 3, v18")
    a("v_add_u32 v18, s43, v18")
    a("v_lshlrev_b32 v19, 4, v16")
    a("v_sub_u32 v19, 64, v19")
    a("v_lshlrev_b32 v20, 3, v12")
    a("v_add_u32 v20, v20, v11")
    a("v_sub_u32 v20, 15, v20")
    a("v_and_b32 v21, 1, v20")
    a("v_lshlrev_b32 v21, 4, v21")
    a("v_lshrrev_b32 v20, 1, v20")
    a("v_lshlrev_b32 v22, 5, v11")
    a("v_lshl_add_u32 v22, v12, 3, v22")
    a(f"s_add_u32 s48, s45, {Z_OFF}")
    a.wait(vm='h0')
    a("v_lshlrev_b64 v[6:7], v19, v[6:7]")
    a("s_mov_b32 s50, 0x8880")
    a("s_mov_b32 s51, 0")
    a("v_cndmask_b32 v6, 0, v6, s[50:51]")
    a("v_cndmask_b32 v7, 0, v7, s[50:51]")
    a("s_mov_b64 exec, 0xffff")
    a("ds_write_b64 v18, v[6:7]")
    a("s_mov_b64 exec, -1")
    a("v_lshlrev_b32 v8, v21, v8")
    DF = 24
    for j in range(4):
        a(f"v_cmp_eq_u32 vcc, {j}, v20")
        a(f"v_cndmask_b32 v{DF+j}, 0, v8, vcc")
    CACC = 32
    AB = 64
    BB = 128
    def rd(r, idx):
        buf = (r & 1) * 32
        if idx < 8:
            q = 8 * idx - r
            a(f"ds_read_b128 {q4(BB+buf+idx*4)}, v15 offset:{64*(q+7)}")
        else:
            kap = idx - 8
            k = 8 * kap + r
            a(f"ds_read_b64 {pr(AB+buf+kap*4)}, v10 offset:{64*k}")
            a(f"ds_read_b64 {pr(AB+buf+kap*4+2)}, v10 offset:{64*k+8}")
    a("s_waitcnt vmcnt(0) lgkmcnt(0)")
    for idx in range(16): rd(0, idx)
    for r in range(8):
        buf = (r & 1) * 32
        a("s_waitcnt lgkmcnt(0)")
        seq = []
        if r == 0:
            for n in range(8): seq.append(('d', n))
        for kap in range(8):
            for n in range(kap, 8): seq.append((kap, n))
        nxt = list(range(16)) if r < 7 else []
        for i, (kap, n) in enumerate(seq):
            c = q4(CACC + n * 4)
            if kap == 'd':
                a(f"v_mfma_f32_16x16x32_bf16 {c}, {q4(DF)}, {q4(BB+buf+n*4)}, 0")
            else:
                a(f"v_mfma_f32_16x16x32_bf16 {c}, {q4(AB+buf+kap*4)}, {q4(BB+buf+(n-kap)*4)}, {c}")
            if nxt and i % 2 == 0:
                rd(r + 1, nxt.pop(0))
        assert not nxt
    for n in range(8):
        a(f"v_cvt_pk_bf16_f32 v{AB+2*n}, v{CACC+4*n}, v{CACC+4*n+1}")
        a(f"v_cvt_pk_bf16_f32 v{AB+2*n+1}, v{CACC+4*n+2}, v{CACC+4*n+3}")
        a(f"buffer_store_dwordx2 {pr(AB+2*n)}, v22, s[16:19], s48 offen offset:{512*n}")
    a.label("K2_DONE")
    a("s_endpgm")
    return a.render(), kernel_desc(name, 256, 72)
```

```python
from asmlib import *
from k1 import *
from k2 import q4

G2_D = 6
G2_RING = G2_D * 4096
ZL = 4 * G2_RING
K3_LDS = ZL + 10240
K3_THREADS = 256

def gen_k3(name):
    a = Asm()
    a.raw(kernel_header(name))
    a("s_cmp_ge_u32 s2, 256")
    a("s_cbranch_scc1 K3_DONE")
    a("s_load_dwordx2 s[4:5], s[0:1], 0")
    a("s_load_dwordx4 s[8:11], s[0:1], 72")
    a("s_load_dwordx2 s[6:7], s[0:1], 88")
    a("s_load_dwordx2 s[12:13], s[0:1], 104")
    a("v_lshrrev_b32 v1, 6, v0")
    a("v_and_b32 v2, 63, v0")
    a("v_readfirstlane_b32 s40, v1")
    a("s_and_b32 s41, s2, 7")
    a("s_lshr_b32 s42, s2, 3")
    a("s_lshr_b32 s43, s42, 2")
    a("s_and_b32 s44, s42, 3")
    a("s_lshl_b32 s41, s41, 2")
    a("s_add_u32 s44, s44, s41")
    a("v_lshlrev_b32 v3, 4, v2")
    a("v_add_u32 v4, 4096, v3")
    a("s_mul_i32 s46, s43, 48")
    a("s_mul_i32 s45, s40, 12")
    a("s_add_u32 s46, s46, s45")
    a("s_mul_i32 s46, s46, 5120")
    a(f"s_add_u32 s46, s46, {GF_OFF}")
    a("v_lshrrev_b32 v12, 3, v2")
    a("v_lshlrev_b32 v8, 12, v12")
    a("v_bfe_u32 v12, v2, 1, 2")
    a("v_lshrrev_b32 v13, 4, v2")
    a("v_xor_b32 v12, v12, v13")
    a("v_lshl_add_u32 v8, v12, 5, v8")
    a("v_and_b32 v12, 1, v2")
    a("v_lshl_add_u32 v8, v12, 4, v8")
    for t in range(1, 4):
        a(f"v_add_u32 v{8+t}, {t*(32768-1024)}, v8")
    a(f"s_mul_i32 s47, s40, {384*4096}")
    a("s_lshl_b32 s45, s44, 7")
    a("s_add_u32 s47, s47, s45")
    a(f"s_mul_i32 s48, s40, {G2_RING}")
    a("v_lshrrev_b32 v16, 2, v2")
    a("v_lshlrev_b32 v16, 7, v16")
    a("v_and_b32 v17, 3, v2")
    a("v_lshl_add_u32 v16, v17, 3, v16")
    a("v_add_u32 v16, s48, v16")
    a("v_bfe_u32 v17, v2, 3, 2")
    for si in range(4):
        a(f"s_add_u32 s49, s40, {si}")
        a("s_and_b32 s49, s49, 3")
        a("v_xor_b32 v18, s49, v17")
        a(f"v_lshl_add_u32 v{12+si}, v18, 5, v16")
    a("s_waitcnt lgkmcnt(0)")
    srd(a, 16, 12, WS_TOTAL)
    srd(a, 20, 8, F * S * 2)
    ACC = 24
    GB = 104
    WB = 224
    NK = 12
    def dma(t):
        slot = t % G2_D
        a(f"s_add_u32 m0, s48, {slot*4096}")
        for i in range(4):
            a(f"buffer_load_dwordx4 v{8+i}, s[20:23], s47 offen offset:{i*1024} lds", tag=('w', t))
        a(f"s_add_u32 s47, s47, {32*4096}")
    def gload(t):
        slot = t % G2_D
        for i in range(5):
            if i < 4:
                a(f"buffer_load_dwordx4 {q4(GB+slot*20+i*4)}, v3, s[16:19], s46 offen offset:{i*1024}", tag=('h', t))
            else:
                a(f"buffer_load_dwordx4 {q4(GB+slot*20+i*4)}, v4, s[16:19], s46 offen", tag=('h', t))
        a("s_add_u32 s46, s46, 5120")
    def trread(t):
        slot = t % G2_D
        wb = WB + (t & 1) * 16
        for si in range(4):
            a(f"ds_read_b64_tr_b16 {pr(wb+si*4)}, v{12+si} offset:{slot*4096}", tag=('r', t))
            a(f"ds_read_b64_tr_b16 {pr(wb+si*4+2)}, v{12+si} offset:{slot*4096+2048}", tag=('r', t))
    for t in range(G2_D):
        dma(t); gload(t)
    srd(a, 24, 10, S * 2)
    srd(a, 28, 4, XBYTES)
    srd(a, 32, 6, XBYTES)
    a("v_and_b32 v17, 15, v2")
    a("v_lshrrev_b32 v18, 4, v2")
    a("s_movk_i32 s49, 1280")
    a("v_mul_u32_u24 v19, s49, v17")
    a("v_lshl_add_u32 v19, v18, 3, v19")
    a("v_lshlrev_b32 v20, 3, v17")
    a("v_lshlrev_b32 v21, 1, v17")
    a("s_lshl_b32 s49, s44, 6")
    a("s_lshl_b32 s50, s40, 4")
    a("s_add_u32 s49, s49, s50")
    a("s_mul_i32 s50, s49, 1280")
    a("s_mul_i32 s51, s43, 160")
    a("s_add_u32 s50, s50, s51")
    a("s_lshl_b32 s51, s49, 3")
    a(f"s_add_u32 s51, s51, {ST_OFF}")
    a("s_lshl_b32 s52, s49, 1")
    a("s_mul_i32 s53, s43, 80")
    a("s_lshl_b32 s54, s40, 3")
    a("s_add_u32 s53, s53, s54")
    a("s_lshl_b32 s53, s53, 12")
    a("s_add_u32 s53, s53, s45")
    a(f"s_add_u32 s53, s53, {Z_OFF}")
    a("s_lshl_b32 s54, s40, 10")
    a(f"s_add_u32 s54, s54, {ZL}")
    a(f"s_sub_u32 s55, {ZL}, s48")
    a("v_add_u32 v22, s55, v12")
    a.wait(vm=[('w', 0)])
    trread(0)
    XR = GB
    STT = GB + 10
    B2 = GB + 12
    for t in range(NK):
        slot = t % G2_D
        wb = WB + (t & 1) * 16
        gb = GB + slot * 20
        a.wait(vm=[('h', t)], lg=[('r', t)])
        def mf(i5, si):
            c = ACC + (i5 * 4 + si) * 4
            src = "0" if t == 0 else q4(c)
            a(f"v_mfma_f32_16x16x32_bf16 {q4(c)}, {q4(gb+i5*4)}, {q4(wb+si*4)}, {src}")
        for si in range(4): mf(0, si)
        if t + G2_D < NK: dma(t + G2_D)
        for si in range(4): mf(1, si)
        if t + 1 < NK:
            a.wait(vm=[('w', t + 1)])
            trread(t + 1)
        for i5 in (2, 3, 4):
            for si in range(4): mf(i5, si)
        if t + G2_D < NK: gload(t + G2_D)
        if t == G2_D:
            a("s_mov_b32 m0, s54")
            a("buffer_load_dwordx4 v8, s[16:19], s53 offen lds", tag='z')
            a("s_add_u32 m0, s54, 4096")
            a(f"s_add_u32 s53, s53, {32*4096}")
            a("buffer_load_dwordx4 v8, s[16:19], s53 offen lds", tag='z')
            a("s_cmp_lt_u32 s40, 2")
            a("s_cselect_b32 s55, 4096, 0")
            a(f"s_cselect_b32 s56, {32*4096}, 0")
            a("s_add_u32 s55, s55, s54")
            a("s_add_u32 m0, s55, 4096")
            a("s_add_u32 s53, s53, s56")
            a("buffer_load_dwordx4 v8, s[16:19], s53 offen lds", tag='z')
            for i5 in range(5):
                a(f"buffer_load_dwordx2 {pr(XR+2*i5)}, v19, s[28:31], s50 offen offset:{32*i5}", tag='x')
            a(f"buffer_load_dwordx2 {pr(STT)}, v20, s[16:19], s51 offen", tag='x')
            a(f"buffer_load_ushort v{B2}, v21, s[24:27], s52 offen", tag='x')
    a("v_add_u32 v4, s48, v3")
    for si in range(1, 4):
        for i5 in range(5):
            a(f"ds_write_b128 v4, {q4(ACC+(i5*4+si)*4)} offset:{(si-1)*5120+i5*1024}")
    for si in range(1, 4):
        a(f"s_sub_u32 s45, s40, {si}")
        a("s_and_b32 s45, s45, 3")
        a(f"s_mul_i32 s45, s45, {G2_RING}")
        a(f"v_add_u32 v{4+si}, s45, v3")
    XF = GB + 20
    XN = GB + 40
    TP = GB + 60
    a("s_waitcnt vmcnt(0)")
    unpack(a, XF, XR, 10)
    for i in range(10):
        a(f"v_pk_add_f32 {pr(XN+2*i)}, {pr(XF+2*i)}, {pr(STT)} op_sel_hi:[1,0] neg_lo:[0,1] neg_hi:[0,1]")
    for i in range(10):
        a(f"v_cvt_pk_bf16_f32 v{TP+i}, v{XN+2*i}, v{XN+2*i+1}")
    unpack(a, XN, TP, 10)
    for i in range(10):
        a(f"v_pk_mul_f32 {pr(XN+2*i)}, {pr(XN+2*i)}, {pr(STT)} op_sel:[0,1] op_sel_hi:[1,1]")
    for i in range(10):
        a(f"v_cvt_pk_bf16_f32 v{TP+i}, v{XN+2*i}, v{XN+2*i+1}")
    unpack(a, XN, TP, 10)
    a(f"v_lshlrev_b32 v{B2}, 16, v{B2}")
    a("s_waitcnt lgkmcnt(0)")
    a("s_barrier")
    ZR = GB + 70
    for i5 in range(5):
        a(f"ds_read_b64_tr_b16 {pr(ZR+2*i5)}, v22 offset:{i5*2048}", tag='zr')
    for si in range(1, 4):
        for i5 in range(5):
            a(f"ds_read_b128 {q4(ACC+(i5*4+si)*4)}, v{4+si} offset:{(si-1)*5120+i5*1024}", tag=('p', si))
    ZF = GB + 80
    a.wait(lg='zr')
    unpack(a, ZF, ZR, 10)
    for i in range(10):
        a(f"v_pk_mul_f32 {pr(ZF+2*i)}, {pr(ZF+2*i)}, {pr(XN+2*i)}")
    for i in range(10):
        a(f"v_cvt_pk_bf16_f32 v{TP+i}, v{ZF+2*i}, v{ZF+2*i+1}")
    unpack(a, ZF, TP, 10)
    for i in range(10):
        a(f"v_pk_add_f32 {pr(ZF+2*i)}, {pr(ZF+2*i)}, {pr(XF+2*i)}")
    for i in range(10):
        a(f"v_cvt_pk_bf16_f32 v{TP+i}, v{ZF+2*i}, v{ZF+2*i+1}")
    unpack(a, ZF, TP, 10)
    for si in range(1, 4):
        a.wait(lg=[('p', si)])
        for i5 in range(5):
            for h in range(2):
                c = ACC + (i5 * 4) * 4 + 2 * h
                a(f"v_pk_add_f32 {pr(c)}, {pr(c)}, {pr(c+4*si)}")
    YF = XN
    for i5 in range(5):
        for h in range(2):
            c = ACC + (i5 * 4) * 4 + 2 * h
            a(f"v_cvt_pk_bf16_f32 v{TP+2*i5+h}, v{c}, v{c+1}")
    unpack(a, YF, TP, 10)
    for i in range(10):
        a(f"v_pk_add_f32 {pr(YF+2*i)}, {pr(YF+2*i)}, {pr(B2)} op_sel_hi:[1,0]")
    for i in range(10):
        a(f"v_cvt_pk_bf16_f32 v{TP+i}, v{YF+2*i}, v{YF+2*i+1}")
    unpack(a, YF, TP, 10)
    for i in range(10):
        a(f"v_pk_add_f32 {pr(YF+2*i)}, {pr(YF+2*i)}, {pr(ZF+2*i)}")
    for i in range(10):
        a(f"v_cvt_pk_bf16_f32 v{TP+i}, v{YF+2*i}, v{YF+2*i+1}")
    for i5 in range(5):
        a(f"buffer_store_dwordx2 {pr(TP+2*i5)}, v19, s[32:35], s50 offen offset:{32*i5}")
    a.label("K3_DONE")
    a("s_endpgm")
    return a.render(), kernel_desc(name, 256, 72)
```

```python
import sys
import k1, k2, k3
NAME = "parallel_sum__ssm_conv_h3__mixer_token_mlp__prompt"
def build(path):
    ref = open(f"cdna_kernels/{NAME}.s.ref").read().split("\n")
    hdr = [l for l in ref if l.startswith(";") and "@launch" not in l and "Override launch" not in l and "grid=ceil" not in l]
    parts = [k1.gen_k1("prep_kernel"), k2.gen_k2("g1conv_kernel"), k3.gen_k3("g2out_kernel")]
    s = "\n".join(hdr) + "\n"
    s += f"; @launch kernel=prep_kernel grid=({k1.LN_WGS+k1.KV_WGS},1,1) block=(512,1,1) lds={k1.K1_LDS}\n"
    s += f"; @launch kernel=g1conv_kernel grid=(256,1,1) block=({k2.K2_THREADS},1,1) lds={k2.K2_LDS}\n"
    s += f"; @launch kernel=g2out_kernel grid=(256,1,1) block=({k3.K3_THREADS},1,1) lds={k3.K3_LDS}\n"
    s += '.amdgcn_target "amdgcn-amd-amdhsa--gfx950"\n'
    for t, d in parts: s += t
    for t, d in parts: s += d
    open(path, "w").write(s)
if __name__ == "__main__":
    build(sys.argv[1] if len(sys.argv) > 1 else f"cdna_kernels/{NAME}.s")
```

```python
import re, os
DIAG = int(os.environ.get('DIAG', '0'))

REG_RE = re.compile(r'^(-?)(?:abs\()?([vas])(?:(\d+)|\[(\d+):(\d+)\])\)?$')

def parse_reg(tok):
    tok = tok.strip()
    if tok in ('vcc', 'vcc_lo', 'vcc_hi'): return {('vcc', 0)}
    if tok in ('exec', 'exec_lo', 'exec_hi'): return {('exec', 0)}
    if tok == 'm0': return {('m0', 0)}
    t = tok
    if t.startswith('|') and t.endswith('|'): t = t[1:-1]
    if t.startswith('-|') and t.endswith('|'): t = t[2:-1]
    m = REG_RE.match(t)
    if not m: return set()
    k = m.group(2)
    if m.group(3) is not None: return {(k, int(m.group(3)))}
    return {(k, i) for i in range(int(m.group(4)), int(m.group(5)) + 1)}

TRANS = ('v_exp_', 'v_log_', 'v_rcp_', 'v_rsq_', 'v_sqrt_', 'v_sin_', 'v_cos_')

class Ins:
    __slots__ = ('text', 'mn', 'ops', 'mods', 'kind', 'dst', 'src', 'srcC', 'srcAB', 'passes', 'dpp', 'wide_store_data', 'lds_dma', 'states')
    def __init__(self, text):
        self.text = text
        body = text.split(';')[0].strip()
        parts = body.split(None, 1)
        self.mn = mn = parts[0]
        rest = parts[1] if len(parts) > 1 else ''
        ops = []; cur = ''; depth = 0
        for ch in rest:
            if ch in '[(': depth += 1
            if ch in '])': depth -= 1
            if ch == ',' and depth == 0:
                ops.append(cur.strip()); cur = ''
            else: cur += ch
        mods = ''
        if cur.strip():
            last = cur.strip().split(None, 1)
            ops.append(last[0])
            if len(last) > 1: mods = last[1]
        self.ops = ops; self.mods = mods
        self.dst = set(); self.src = set(); self.srcC = set(); self.srcAB = set()
        self.passes = 0; self.dpp = False; self.wide_store_data = set(); self.lds_dma = False
        self.states = 1
        R = [parse_reg(o) for o in ops]
        allsrc = lambda i: set().union(*R[i:]) if len(R) > i else set()
        if mn.startswith('v_mfma'):
            self.kind = 'mfma'
            self.dst = R[0]; self.srcAB = R[1] | R[2]; self.srcC = R[3]; self.src = self.srcAB | self.srcC
            self.passes = 8 if '32x32x16' in mn else 4
            assert ('32x32x16' in mn or '16x16x32' in mn), mn
        elif mn.startswith('v_'):
            self.kind = 'trans' if mn.startswith(TRANS) else 'valu'
            if mn == 'v_nop':
                pass
            elif mn.startswith('v_permlane') and 'swap' in mn:
                self.dst = R[0] | R[1]; self.src = R[0] | R[1]
            elif mn.startswith(('v_add_co', 'v_sub_co', 'v_subrev_co', 'v_addc_co', 'v_subb_co')):
                self.dst = R[0] | R[1]; self.src = allsrc(2)
            else:
                self.dst = R[0]; self.src = allsrc(1)
                if mn.startswith(('v_fmac', 'v_pk_fmac', 'v_dot2c')): self.src |= R[0]
                if mn.startswith('v_cndmask') and len(ops) == 3: self.src |= {('vcc', 0)}
            if any(x in mods for x in ('quad_perm', 'row_shr', 'row_shl', 'row_ror', 'row_mirror', 'row_half_mirror', 'row_bcast', 'wave_', 'row_newbcast')):
                self.dpp = True
                self.src |= R[0]
        elif mn.startswith('ds_'):
            self.kind = 'ds'
            if mn.startswith(('ds_read', 'ds_bpermute', 'ds_permute', 'ds_swizzle')) or '_rtn' in mn:
                self.dst = R[0]; self.src = allsrc(1)
            else:
                self.src = allsrc(0)
        elif mn.startswith(('buffer_', 'global_', 'flat_')):
            self.kind = 'vmem'
            islds = bool(re.search(r'\blds\b', mods)) or 'load_lds' in mn
            if islds:
                self.lds_dma = True; self.src = allsrc(0) | {('m0', 0)}
            elif 'load' in mn:
                self.dst = R[0]; self.src = allsrc(1)
            elif 'atomic' in mn:
                self.src = allsrc(0)
                if 'sc0' in mods: self.dst = R[0]
            elif mn in ('buffer_wbl2', 'buffer_inv'):
                pass
            else:
                self.src = allsrc(0)
                if mn.endswith(('x3', 'x4')):
                    self.wide_store_data = R[0] if mn.startswith('buffer_') else R[1]
        elif mn.startswith('s_'):
            self.kind = 'salu'
            if mn == 's_nop':
                self.states = int(ops[0], 0) + 1
            elif mn.startswith(('s_cmp', 's_waitcnt', 's_barrier', 's_branch', 's_cbranch', 's_endpgm', 's_setprio', 's_sleep', 's_bitcmp')):
                self.src = allsrc(0)
            elif mn.startswith(('s_load', 's_buffer_load', 's_memtime', 's_memrealtime', 's_atomic')):
                self.kind = 'smem'; self.dst = R[0]; self.src = allsrc(1)
            else:
                self.dst = R[0]; self.src = allsrc(1)
                if 'saveexec' in mn: self.dst |= {('exec', 0)}
        else:
            raise ValueError('unknown instr ' + text)

def isv(s): return {r for r in s if r[0] in 'va' and r[0] != 'vcc'}
def issg(s): return {r for r in s if r[0] in ('s', 'vcc')}

def need(p, c):
    n = 0
    pv = p.kind in ('valu', 'trans')
    cv = c.kind in ('valu', 'trans')
    if pv:
        pd = isv(p.dst)
        if c.kind == 'mfma' and pd & c.src: n = max(n, 2)
        if cv and c.dpp and pd & c.src: n = max(n, 2)
        if cv and c.mn.startswith(('v_readlane', 'v_readfirstlane')) and pd & c.src: n = max(n, 1)
        if cv and c.mn.startswith('v_permlane') and pd & c.src: n = max(n, 2)
        if p.kind == 'trans' and c.kind != 'trans' and pd & c.src: n = max(n, 1)
        if ('op_sel' in p.mods or 'dst_sel' in p.mods) and not p.mn.startswith('v_pk') and pd & (c.src | c.dst): n = max(n, 1)
        ps = issg(p.dst)
        if ps:
            if c.kind == 'vmem' and ps & c.src: n = max(n, 5)
            if cv and ps & c.src:
                n = max(n, 4 if c.mn.startswith(('v_readlane', 'v_writelane', 'v_div_fmas')) else 2)
            if c.kind in ('salu', 'smem') and ps & c.src: n = max(n, 1)
        if ('exec', 0) in p.dst:
            n = max(n, 5)
    if p.kind == 'mfma':
        big = p.passes == 8
        if c.kind == 'mfma':
            if p.dst & c.srcAB: n = max(n, 12 if big else 8)
            if p.dst & c.srcC:
                if not (p.dst == c.srcC and p.passes == c.passes): n = max(n, 10 if big else 6)
            if p.dst & c.dst and not (p.dst == c.srcC): n = max(n, 12 if big else 8)
        elif p.dst & (c.src | c.dst): n = max(n, 12 if big else 8)
        if cv and p.srcC & c.dst: n = max(n, 7 if big else 3)
    if p.kind == 'salu' and ('m0', 0) in p.dst and c.lds_dma: n = max(n, 1)
    if p.wide_store_data and p.wide_store_data & c.dst: n = max(n, 2 if cv else 1)
    return n

class Asm:
    def __init__(self):
        self.lines = []
        self.vm = []
        self.lg = []
        self.uid = 0
    def raw(self, text): self.lines.append(('r', text))
    def label(self, name):
        self.lines.append(('l', name))
    def __call__(self, text, tag=None):
        for t in text.strip().split('\n'):
            t = t.strip()
            if not t or t.startswith(';'): continue
            ins = Ins(t)
            self.lines.append(('i', ins))
            if ins.kind == 'vmem' and ins.mn not in ('buffer_wbl2', 'buffer_inv'):
                self.vm.append(tag)
            elif ins.kind == 'ds':
                self.lg.append(tag)
            elif ins.mn == 's_waitcnt':
                m = re.search(r'vmcnt\((\d+)\)', t)
                if m:
                    n = int(m.group(1)); self.vm = self.vm[len(self.vm) - n:] if n < len(self.vm) else self.vm
                    if n == 0: self.vm = []
                m = re.search(r'lgkmcnt\((\d+)\)', t)
                if m:
                    n = int(m.group(1)); self.lg = self.lg[len(self.lg) - n:] if n < len(self.lg) else self.lg
                    if n == 0: self.lg = []
    def _cnt(self, lst, tags, maxn):
        if not isinstance(tags, (list, tuple, set)): tags = [tags]
        idx = -1
        for i, t in enumerate(lst):
            if t in tags: idx = i
        if idx < 0: return None
        n = len(lst) - 1 - idx
        return min(n, maxn)
    def wait(self, vm=None, lg=None):
        parts = []
        if vm is not None:
            n = self._cnt(self.vm, vm, 63)
            if n is not None: parts.append(f'vmcnt({n})')
        if lg is not None:
            n = self._cnt(self.lg, lg, 15)
            if n is not None: parts.append(f'lgkmcnt({n})')
        if parts: self('s_waitcnt ' + ' '.join(parts))
    def stamp(self, i):
        if not DIAG: return
        self("s_memrealtime s[72:73]")
        self("s_waitcnt lgkmcnt(0)")
        self(f"s_mov_b32 s{76+i}, s72")
    def cstamp(self, i):
        if not DIAG: return
        self("s_memtime s[72:73]")
        self("s_waitcnt lgkmcnt(0)")
        self(f"s_mov_b32 s{76+i}, s72")
    def flush_stamps(self, kidx, n, wave_s=40, vt=250, ws=12):
        if not DIAG: return
        self("s_waitcnt vmcnt(0)")
        self.stamp(n); n += 1
        self("s_getreg_b32 s74, hwreg(HW_REG_HW_ID)")
        self("s_getreg_b32 s75, hwreg(HW_REG_XCC_ID)")
        self(f"v_mov_b32 v{vt}, 0")
        for i in range(n): self(f"v_writelane_b32 v{vt}, s{76+i}, {i}")
        self(f"v_writelane_b32 v{vt}, s75, 15")
        self(f"s_mov_b32 s92, s{ws}")
        self(f"s_and_b32 s93, s{ws+1}, 0xffff")
        self("s_mov_b32 s94, 0x2000000")
        self("s_mov_b32 s95, 0x00020000")
        self("s_lshl_b32 s72, s2, 3")
        self(f"s_add_u32 s72, s72, s{wave_s}")
        self("s_lshl_b32 s72, s72, 6")
        self(f"s_add_u32 s72, s72, {0x1000000 + kidx * 0x100000}")
        self(f"v_and_b32 v{vt+1}, 63, v0")
        self(f"v_lshlrev_b32 v{vt+1}, 2, v{vt+1}")
        self("s_mov_b64 exec, 0xffff")
        self(f"buffer_store_dword v{vt}, v{vt+1}, s[92:95], s72 offen")
    def reset_counts(self):
        self.vm = []; self.lg = []
    def render(self):
        out = []
        hist = []
        for kind, x in self.lines:
            if kind == 'r':
                out.append(x); continue
            if kind == 'l':
                out.append(f'{x}:')
                out.append('    s_nop 4')
                hist.append(Ins('s_nop 4'))
                continue
            ins = x
            dist = 0; pad = 0
            for p in reversed(hist[-24:]):
                n = need(p, ins)
                if n > dist: pad = max(pad, n - dist)
                dist += p.states
                if dist >= 20: break
            while pad > 0:
                k = min(pad, 16)
                nop = Ins(f's_nop {k-1}')
                out.append('    ' + nop.text); hist.append(nop); pad -= k
            out.append('    ' + ins.text); hist.append(ins)
        return '\n'.join(out) + '\n'

def kernel_header(name):
    return f""".text
.globl {name}
.p2align 8
.type {name},@function
{name}:
"""

def kernel_desc(name, vgpr, sgpr, accum=None):
    if accum is None: accum = (vgpr + 3) // 4 * 4
    if DIAG: sgpr = 100
    return f""".section .rodata,"a"
.p2align 6
.amdhsa_kernel {name}
  .amdhsa_next_free_vgpr {vgpr}
  .amdhsa_next_free_sgpr {sgpr}
  .amdhsa_accum_offset {accum}
  .amdhsa_group_segment_fixed_size 0
  .amdhsa_kernarg_size 112
  .amdhsa_user_sgpr_count 2
  .amdhsa_user_sgpr_kernarg_segment_ptr 1
  .amdhsa_system_sgpr_workgroup_id_x 1
  .amdhsa_float_denorm_mode_32 3
  .amdhsa_float_denorm_mode_16_64 3
.end_amdhsa_kernel
"""
```

```python
from asmlib import *
import os, struct, math
E = lambda k, d: type(d)(os.environ.get(k, d))

S, D, F = 2048, 640, 1536
XBYTES = S * D * 2
EP_OFF = 0
FA_OFF = 0x1000
FK_OFF = 0xB000
FG_OFF = 0xF000
FZ_OFF = 0x13000
ST_OFF = 0x16000
HF_OFF = 0x20000
KVR_OFF = 0x2A0000
Z_OFF = 0x520000
GF_OFF = 0x7A0000
WS_TOTAL = 0x980000
FS = 16

NS = 6
RING = NS * 4096
HCOPY = 4160
HB_CH = 4 * HCOPY
KB_CH = 512 + 4096
L_H = 4 * RING
L_K = L_H + 3 * HB_CH
L_MISC = L_K + 3 * KB_CH
L_CNT = L_MISC
L_ST = L_MISC + 64
LDS_TOTAL = L_MISC + 128
HJ = 3 * HCOPY
L_KS = L_H + HJ
L_VS = L_KS + 12 * 1024
L_KVT = L_VS + 10 * 1024
assert L_KVT + 4 * 768 <= L_K
C_RED, C_RD, C_KVL, C_KVD, C_LNW, C_LNR, C_HIS, C_FLG, C_FT = [L_CNT + 4 * i for i in range(9)]
assert LDS_TOTAL <= 163840
THREADS = 512
NT = E('NT', 'nt')
SC = "sc1"
SCL = os.environ.get("SCL", "sc1")
NTB = os.environ.get("NTB", "")
FT0 = E("FT0", 0)
PRE1 = E("PRE1", 12)
LEADD = E("LEADD", 12)
LEADR = E("LEADR", 6)
PFSTEPS = E("PFSTEPS", 4)
FTGATE = E("FTGATE", 1)
FKGATE = E("FKGATE", 1)
CVPAUSE = E("CVPAUSE", 8)
SPIN_MAX = 1 << 16
FT1 = E('FT1', 2)
NR1, NH = 6, 4
NR2, NS2, NG = 5, 5, 3
ROT = E('ROT', 0)
PSLEEP = E('PSLEEP', 6)
FTWAIT = E('FTWAIT', 1)
PFMOD = os.environ.get('PFMOD', '')
W2EARLY = E('W2EARLY', 0)
EXACT = E('EXACT', 1)
W2SIG = E('W2SIG', 0)

def f2u(x): return struct.unpack('<I', struct.pack('<f', x))[0]
GELU_K0 = -2.0 * math.sqrt(2.0 / math.pi) * math.log2(math.e)
GELU_K1 = GELU_K0 * 0.044715
def pr(r): return f"v[{r}:{r+1}]"
def q4(r): return f"v[{r}:{r+3}]"

P_Q, P_K, P_V, P_SK, P_SSMK, P_SSMD, P_BX, P_W1, P_B1, P_W2, P_B2, P_OUT, P_WS = 4, 6, 8, 10, 12, 14, 16, 18, 20, 22, 24, 26, 28
TAG = 30
WS = "s[32:35]"

def srd(a, d, base, nbytes):
    a(f"s_mov_b32 s{d}, s{base}")
    a(f"s_and_b32 s{d+1}, s{base+1}, 0xffff")
    a(f"s_mov_b32 s{d+2}, {nbytes}")
    a(f"s_mov_b32 s{d+3}, 0x00020000")
    return f"s[{d}:{d+3}]"

def reduce2(a, x, y, tx, ty):
    for m in ("quad_perm:[1,0,3,2]", "quad_perm:[2,3,0,1]", "row_half_mirror", "row_mirror"):
        a(f"v_add_f32_dpp v{x}, v{x}, v{x} {m} row_mask:0xf bank_mask:0xf")
        a(f"v_add_f32_dpp v{y}, v{y}, v{y} {m} row_mask:0xf bank_mask:0xf")
    for p in ("v_permlane16_swap_b32", "v_permlane32_swap_b32"):
        a(f"v_mov_b32 v{tx}, v{x}")
        a(f"v_mov_b32 v{ty}, v{y}")
        a(f"{p} v{x}, v{tx}")
        a(f"{p} v{y}, v{ty}")
        a(f"v_add_f32 v{x}, v{x}, v{tx}")
        a(f"v_add_f32 v{y}, v{y}, v{ty}")

def unpack(a, dst, src, n):
    for i in range(n):
        a(f"v_lshlrev_b32 v{dst+2*i}, 16, v{src+i}")
        a(f"v_and_b32 v{dst+2*i+1}, 0xffff0000, v{src+i}")

def pack(a, dst, src, n):
    for i in range(n):
        a(f"v_cvt_pk_bf16_f32 v{dst+i}, v{src+2*i}, v{src+2*i+1}")

def round_bf16(a, reg, n2, tmp):
    pack(a, tmp, reg, n2); unpack(a, reg, tmp, n2)

_uid = [0]
def lbl(p):
    _uid[0] += 1
    return f"{p}_{_uid[0]}"

def set_exec(a, n):
    m = (1 << n) - 1
    a(f"s_mov_b32 exec_lo, {hex(m & 0xffffffff)}")
    a(f"s_mov_b32 exec_hi, {hex(m >> 32)}")

def poll(a, vaddr, soff, vt, nlanes=64, sleep=0):
    L = lbl("POLL"); Lx = lbl("POLLX")
    a("s_mov_b32 s70, 0")
    if nlanes < 64: set_exec(a, nlanes)
    a.label(L)
    a(f"buffer_load_dwordx2 {pr(vt)}, v{vaddr}, {WS}, s{soff} offen {SC}")
    a("s_add_u32 s70, s70, 1")
    a("s_waitcnt vmcnt(0)")
    a(f"v_cmp_ne_u64 vcc, s[{TAG}:{TAG+1}], {pr(vt)}")
    a(f"s_cmp_gt_u32 s70, {SPIN_MAX}")
    a(f"s_cbranch_scc1 {Lx}")
    a(f"s_cbranch_vccz {Lx}")
    if sleep: a(f"s_sleep {sleep}")
    a(f"s_branch {L}")
    a.label(Lx)
    if nlanes < 64: a("s_mov_b64 exec, -1")

def set_flag(a, soff, vt):
    a(f"v_mov_b32 v{vt}, s{TAG}")
    a(f"v_mov_b32 v{vt+1}, s{TAG+1}")
    a(f"v_mov_b32 v{vt+2}, 0")
    a("s_mov_b64 exec, 1")
    a(f"buffer_store_dwordx2 {pr(vt)}, v{vt+2}, {WS}, s{soff} offen {SC}")
    a("s_mov_b64 exec, -1")

def lds_sync(a, cnt_off, va, vb, target):
    L = lbl("LSYNC"); Lx = lbl("LSYNCX")
    a(f"v_mov_b32 v{va}, {cnt_off}")
    a(f"v_mov_b32 v{vb}, 1")
    a("s_waitcnt lgkmcnt(0)")
    a("s_mov_b64 exec, 1")
    a(f"ds_add_u32 v{va}, v{vb}")
    a("s_mov_b64 exec, -1")
    a("s_mov_b32 s70, 0")
    a.label(L)
    a(f"ds_read_b32 v{vb}, v{va}")
    a("s_add_u32 s70, s70, 1")
    a("s_waitcnt lgkmcnt(0)")
    a(f"v_readfirstlane_b32 s71, v{vb}")
    a(f"s_cmp_gt_u32 s70, {SPIN_MAX*4}")
    a(f"s_cbranch_scc1 {Lx}")
    a(f"s_cmp_lt_u32 s71, {target}")
    a(f"s_cbranch_scc1 {L}")
    a.label(Lx)

class Coll:
    def __init__(self): self.l = []
    def __call__(self, t, tag=None): self.l.append(t)

def reduce2c(a, x, y, tx, ty): reduce2(a, x, y, tx, ty)

def ln_row(RAW, X, T, Q, sh):
    a = Coll()
    S1, S1h, S2, S2h, M, R = Q, Q + 1, Q + 2, Q + 3, Q + 4, Q + 5
    unpack(a, X, RAW, 5)
    a(f"v_readfirstlane_b32 s{sh}, v{X}")
    for i in range(10): a(f"v_subrev_f32 v{T+i}, s{sh}, v{X+i}")
    def sums(src):
        a(f"v_pk_add_f32 {pr(S1)}, {pr(src)}, {pr(src+2)}")
        a(f"v_pk_mul_f32 {pr(S2)}, {pr(src)}, {pr(src)}")
        for i in range(1, 5):
            if i >= 2: a(f"v_pk_add_f32 {pr(S1)}, {pr(S1)}, {pr(src+2*i)}")
            a(f"v_pk_fma_f32 {pr(S2)}, {pr(src+2*i)}, {pr(src+2*i)}, {pr(S2)}")
        a(f"v_add_f32 v{S1}, v{S1}, v{S1h}")
        a(f"v_add_f32 v{S2}, v{S2}, v{S2h}")
        reduce2(a, S1, S2, S1h, S2h)
    def stats(shift):
        a(f"v_mul_f32 v{S1}, s60, v{S1}")
        a(f"v_mul_f32 v{S2}, s60, v{S2}")
        a(f"v_fma_f32 v{S2}, -v{S1}, v{S1}, v{S2}")
        a(f"v_max_f32 v{S2}, 0, v{S2}")
        if shift: a(f"v_add_f32 v{S1}, s{sh}, v{S1}")
        a(f"v_cvt_pk_bf16_f32 v{S1h}, v{S1}, v{S2}")
        a(f"v_lshlrev_b32 v{M}, 16, v{S1h}")
        a(f"v_and_b32 v{S2}, 0xffff0000, v{S1h}")
        a(f"v_add_f32 v{S2}, 0x3727c5ac, v{S2}")
        a(f"v_cvt_pk_bf16_f32 v{S2}, v{S2}, v{S2}")
        a(f"v_lshlrev_b32 v{S2}, 16, v{S2}")
        a(f"v_sqrt_f32 v{S2}, v{S2}")
        a(f"v_cvt_pk_bf16_f32 v{S2}, v{S2}, v{S2}")
        a(f"v_lshlrev_b32 v{S2}, 16, v{S2}")
        a(f"v_rcp_f32 v{R}, v{S2}")
    def normalize():
        for i in range(5):
            a(f"v_pk_add_f32 {pr(T+2*i)}, {pr(X+2*i)}, {pr(M)} op_sel_hi:[1,0] neg_lo:[0,1] neg_hi:[0,1]")
        round_bf16(a, T, 5, RAW)
        for i in range(5):
            a(f"v_pk_mul_f32 {pr(T+2*i)}, {pr(T+2*i)}, {pr(M)} op_sel:[0,1] op_sel_hi:[1,1]")
        pack(a, RAW, T, 5)
    sums(T); stats(True)
    p1 = a.l; a.l = []
    normalize()
    unpack(a, X, RAW, 5)
    sums(X); stats(False)
    normalize()
    return p1, a.l

def common_entry(a):
    a("s_waitcnt lgkmcnt(0)")
    a(f"s_load_dwordx2 s[{TAG}:{TAG+1}], s[{P_WS}:{P_WS+1}], {EP_OFF}")

def tag_ready(a):
    a("s_waitcnt lgkmcnt(0)")
    a(f"s_add_u32 s{TAG}, s{TAG}, 0x9E3779B9")
    a(f"s_add_u32 s{TAG+1}, s{TAG+1}, 0x7F4A7C15")

RA, RB_ = 8, 72
def ln_addr_and_load(a):
    a("s_lshr_b32 s41, s2, 2")
    a("s_and_b32 s42, s2, 3")
    a("s_lshl_b32 s43, s41, 5")
    a("s_lshl_b32 s56, s42, 2")
    a("s_add_u32 s43, s43, s56")
    a("s_and_b32 s56, s40, 1")
    a("s_lshl_b32 s56, s56, 1")
    a("s_add_u32 s43, s43, s56")
    a("s_lshr_b32 s56, s40, 1")
    a("s_lshl_b32 s56, s56, 4")
    a("s_add_u32 s43, s43, s56")
    a("s_mul_i32 s43, s43, 1280")
    a("v_lshlrev_b32 v3, 3, v2")
    a("v_lshlrev_b32 v4, 2, v2")
    a(f"v_add_u32 v5, {L_CNT}, v4")
    a("v_mov_b32 v6, 0")
    a("s_mov_b64 exec, 0xffff")
    a("ds_write_b32 v5, v6")
    a("s_mov_b64 exec, -1")
    common_entry(a)
    X = srd(a, 36, P_Q, XBYTES)
    for r, o in ((RA, 0), (RB_, 1280)):
        a(f"buffer_load_dwordx2 {pr(r)}, v3, {X}, s43 offen offset:{o} {NT}", tag='x')
        a(f"buffer_load_dwordx2 {pr(r+2)}, v3, {X}, s43 offen offset:{o+512} {NT}", tag='x')
        a(f"buffer_load_dword v{r+4}, v4, {X}, s43 offen offset:{o+1024} {NT}", tag='x')
    a("s_barrier")
    srd(a, 32, P_WS, WS_TOTAL)

def ln_compute_publish(a, hook=None):
    a("s_mul_i32 s56, s40, 2688")
    a(f"s_add_u32 s56, s56, {L_K}")
    a("v_add_u32 v5, s56, v3")
    a("v_add_u32 v6, s56, v4")
    a("v_bfe_u32 v40, v2, 2, 2")
    a("s_movk_i32 s57, 1344")
    a("v_mul_u32_u24 v40, s57, v40")
    a("v_lshrrev_b32 v41, 4, v2")
    a("v_lshl_add_u32 v40, v41, 5, v40")
    a("v_and_b32 v42, 3, v2")
    a("v_lshl_add_u32 v40, v42, 3, v40")
    a("s_lshl_b32 s57, s40, 7")
    a(f"s_add_u32 s57, s57, {L_K}")
    a("v_add_u32 v40, s57, v40")
    a("v_and_b32 v42, 15, v2")
    a("v_lshlrev_b32 v42, 4, v42")
    a("v_lshl_add_u32 v42, v41, 10, v42")
    a("s_lshl_b32 s57, s40, 6")
    a("s_add_u32 s57, s57, s41")
    a("s_lshl_b32 s57, s57, 12")
    a("s_lshl_b32 s58, s42, 8")
    a("s_add_u32 s57, s57, s58")
    a(f"s_add_u32 s57, s57, {HF_OFF}")
    a("s_lshl_b32 s59, s40, 8")
    a("s_add_u32 s59, s59, s2")
    a(f"s_mul_i32 s59, s59, {FS}")
    a(f"s_add_u32 s59, s59, {FA_OFF}")
    a("s_mov_b32 s60, 0x3acccccd")
    a("s_lshl_b32 s61, s40, 4")
    a(f"s_add_u32 s61, s61, {L_ST}")
    a("v_mov_b32 v43, s61")
    a(f"v_lshlrev_b32 v54, {(4*256*FS).bit_length()-1}, v2")
    tag_ready(a)
    a.stamp(1)
    a.wait(vm='x')
    a.stamp(2)
    A1, A2 = ln_row(RA, 16, 44, 26, 62)
    B1, B2 = ln_row(RB_, 80, 92, 104, 63)
    for x, y in zip(A1, B1): a(x); a(y)
    a("s_mov_b64 exec, 1")
    a("ds_write_b64 v43, v[30:31]")
    a("ds_write_b64 v43, v[108:109] offset:8")
    a("s_mov_b64 exec, -1")
    for x, y in zip(A2, B2): a(x); a(y)
    for r, o in ((RA, 0), (RB_, 1344)):
        a(f"ds_write_b64 v5, {pr(r)} offset:{o}")
        a(f"ds_write_b64 v5, {pr(r+2)} offset:{o+512}")
        a(f"ds_write_b32 v6, v{r+4} offset:{o+1024}")
    lds_arrive(a, C_LNW, 44, 45)
    a.stamp(3)
    lds_wait(a, C_LNW, 44, 45, 8)
    for k in range(2):
        a(f"ds_read_b64_tr_b16 {pr(16+4*k)}, v40 offset:{512*k}", tag=('t', k))
        a(f"ds_read_b64_tr_b16 {pr(18+4*k)}, v40 offset:{4*1344+512*k}", tag=('t', k))
    a(f"s_add_u32 s58, s57, {4*64*4096}")
    a.wait(lg=[('t', 0)])
    a(f"buffer_store_dwordx4 v[16:19], v42, {WS}, s57 offen {SC}")
    L1 = lbl("LN1")
    a("s_mov_b32 s56, 3")
    a("s_cmp_ge_u32 s40, 2")
    a(f"s_cbranch_scc1 {L1}")
    a("ds_read_b64_tr_b16 v[24:25], v40 offset:1024")
    a(f"ds_read_b64_tr_b16 v[26:27], v40 offset:{4*1344+1024}")
    a(f"v_add_u32 v44, {L_ST}, v3")
    a("ds_read_b64 v[28:29], v44")
    a(f"s_add_u32 s57, s57, {8*64*4096}")
    a("s_lshl_b32 s61, s2, 6")
    a(f"s_add_u32 s61, s61, {ST_OFF}")
    a("s_mov_b32 s56, 7")
    a("s_waitcnt lgkmcnt(0)")
    a(f"buffer_store_dwordx4 v[24:27], v42, {WS}, s57 offen {SC}")
    a("s_mov_b64 exec, 0xff")
    a(f"buffer_store_dwordx2 v[28:29], v3, {WS}, s61 offen {SC}")
    a("s_mov_b64 exec, -1")
    a.label(L1)
    a("s_waitcnt lgkmcnt(0)")
    a(f"buffer_store_dwordx4 v[20:23], v42, {WS}, s58 offen {SC}", tag='hs')
    lds_arrive(a, C_LNR, 44, 45)
    a(f"v_mov_b32 v44, s{TAG}")
    a(f"v_mov_b32 v45, s{TAG+1}")
    a("s_mov_b32 s61, s56")
    if hook: hook()
    a.wait(vm='hs')
    a("s_mov_b32 exec_lo, s61")
    a("s_mov_b32 exec_hi, 0")
    a(f"buffer_store_dwordx2 v[44:45], v54, {WS}, s59 offen {SC}")
    a("s_mov_b64 exec, -1")
    a.stamp(4)

def gen(name):
    a = Asm()
    a.raw(kernel_header(name))
    a("s_cmp_ge_u32 s2, 256")
    a("s_cbranch_scc1 KF_DONE")
    a("s_load_dwordx16 s[4:19], s[0:1], 0")
    a("s_load_dwordx8 s[20:27], s[0:1], 64")
    a("s_load_dwordx2 s[28:29], s[0:1], 104")
    a.stamp(0)
    a("v_lshrrev_b32 v1, 6, v0")
    a("v_and_b32 v2, 63, v0")
    a("v_readfirstlane_b32 s40, v1")
    a("s_cmp_ge_u32 s40, 4")
    a("s_cbranch_scc1 KF_AUX")
    gen_gemm(a)
    a.label("KF_AUX")
    a.reset_counts()
    gen_aux(a)
    a.label("KF_DONE")
    a("s_endpgm")
    return a.render(), kernel_desc(name, 256, 72)

def lds_arrive(a, cnt_off, va, vb):
    a(f"v_mov_b32 v{va}, {cnt_off}")
    a(f"v_mov_b32 v{vb}, 1")
    a("s_waitcnt lgkmcnt(0)")
    a("s_mov_b64 exec, 1")
    a(f"ds_add_u32 v{va}, v{vb}")
    a("s_mov_b64 exec, -1")

def lds_wait(a, cnt_off, va, vb, target, sleep=0):
    L = lbl("LW"); Lx = lbl("LWX")
    a(f"v_mov_b32 v{va}, {cnt_off}")
    a("s_mov_b32 s70, 0")
    a.label(L)
    a(f"ds_read_b32 v{vb}, v{va}")
    a("s_add_u32 s70, s70, 1")
    a("s_waitcnt lgkmcnt(0)")
    a(f"v_readfirstlane_b32 s71, v{vb}")
    a(f"s_cmp_gt_u32 s70, {SPIN_MAX*4}")
    a(f"s_cbranch_scc1 {Lx}")
    a(f"s_cmp_ge_u32 s71, {target}")
    a(f"s_cbranch_scc1 {Lx}")
    if sleep: a(f"s_sleep {sleep}")
    a(f"s_branch {L}")
    a.label(Lx)

def gen_gemm(a):
    a("s_setprio 2")
    VD, VT, VH, VL = 56, 60, 64, 68
    ACC = 72
    WR = 152
    HS = [8, 24, 40, 136]
    WR2 = 176
    GS = [8, 28, 152]
    a("s_and_b32 s64, s2, 7")
    a("s_lshr_b32 s65, s2, 3")
    ln_addr_and_load(a)
    a("s_mul_i32 s66, s65, 171")
    a("s_lshr_b32 s66, s66, 9")
    a("s_mul_i32 s67, s66, 3")
    a("s_sub_u32 s67, s65, s67")
    a("s_mul_i32 s68, s66, 1639")
    a("s_lshr_b32 s68, s68, 10")
    a("s_and_b32 s68, s68, 15")
    a("s_mul_i32 s69, s64, 3")
    a("s_add_u32 s67, s67, s69")
    a(f"v_lshlrev_b32 v{VL}, 4, v2")
    a("v_bfe_u32 v69, v2, 1, 2")
    a("v_lshrrev_b32 v70, 4, v2")
    a("v_xor_b32 v69, v69, v70")
    a("v_lshlrev_b32 v69, 5, v69")
    a("v_and_b32 v70, 1, v2")
    a("v_lshl_add_u32 v69, v70, 4, v69")
    a("v_lshrrev_b32 v70, 3, v2")
    a("s_movk_i32 s56, 3072")
    a(f"v_mad_u32_u24 v{VD}, v70, s56, v69")
    for t in range(1, 4):
        a(f"v_add_u32 v{VD+t}, {t*(24576-1024)}, v{VD}")
    a(f"s_mul_i32 s44, s40, {512*3072}")
    a("s_lshl_b32 s56, s67, 7")
    a("s_add_u32 s44, s44, s56")
    a(f"s_mul_i32 s45, s40, {RING}")
    a("s_mov_b32 s46, s68")
    W1 = srd(a, 48, P_W1, S * F * 2)
    a("v_lshrrev_b32 v71, 2, v2")
    a("v_lshlrev_b32 v71, 7, v71")
    a("v_and_b32 v70, 3, v2")
    a("v_lshl_add_u32 v71, v70, 3, v71")
    a("v_add_u32 v71, s45, v71")
    a("v_bfe_u32 v70, v2, 3, 2")
    for phi in range(4):
        a(f"v_xor_b32 v13, {phi}, v70")
        a(f"v_lshl_add_u32 v{VT+phi}, v13, 5, v71")
    for i in range(4):
        a(f"s_add_u32 s56, s40, {i}")
        a("s_and_b32 s56, s56, 3")
        a("s_lshl_b32 s56, s56, 10")
        a(f"v_add_u32 v{VH+i}, s56, v{VL}")
    def dma1(t):
        mod = NT if t < FT1 else NTB
        a(f"s_mul_i32 s47, s46, {32*3072}")
        a("s_add_u32 s47, s47, s44")
        a(f"s_add_u32 m0, s45, {(t % NS)*4096}")
        for i in range(4):
            a(f"buffer_load_dwordx4 v{VD+i}, {W1}, s47 offen offset:{i*1024} {mod} lds", tag=('w', t))
        a("s_add_u32 s46, s46, 1")
        a("s_and_b32 s46, s46, 15")
    def hook():
        for t in range(FT0): dma1(t)
    ln_compute_publish(a, hook)
    a("s_cmp_ge_u32 s2, 240")
    a("s_cbranch_scc1 KF_G2")
    def trread(t):
        wb = WR + (t % NR1) * 16
        for phi in range(4):
            a(f"ds_read_b64_tr_b16 {pr(wb+phi*4)}, v{VT+phi} offset:{(t % NS)*4096}", tag=('r', t))
            a(f"ds_read_b64_tr_b16 {pr(wb+phi*4+2)}, v{VT+phi} offset:{(t % NS)*4096+2048}", tag=('r', t))
    NK = 16
    st = {'dma': FT0, 'rd': 0}
    def next_dma():
        t = st['dma']
        if t >= NS: a.wait(lg=[('r', t - NS)])
        dma1(t); st['dma'] += 1
    def next_rd():
        t = st['rd']
        a.wait(vm=[('w', t)])
        trread(t); st['rd'] += 1
    if FTGATE: lds_wait(a, C_FLG, 4, 5, 4, sleep=1)
    while st['dma'] < FT1: next_dma()
    a("s_lshl_b32 s57, s66, 6")
    a("s_lshl_b32 s56, s40, 4")
    a("s_add_u32 s57, s57, s56")
    a("s_lshl_b32 s57, s57, 12")
    a(f"s_add_u32 s57, s57, {HF_OFF}")
    a("s_lshl_b32 s58, s68, 12")
    a("s_lshl_b32 s59, s66, 8")
    a("s_lshl_b32 s56, s40, 6")
    a("s_add_u32 s59, s59, s56")
    a(f"s_mul_i32 s59, s59, {FS}")
    a(f"s_add_u32 s59, s59, {FA_OFF}")
    B1 = srd(a, 52, P_B1, F * 2)
    a("v_lshrrev_b32 v3, 4, v2")
    a("v_lshlrev_b32 v3, 3, v3")
    a("s_lshl_b32 s56, s67, 7")
    BI = 248
    for phi in range(4):
        a(f"buffer_load_dwordx2 {pr(BI+2*phi)}, v3, {B1}, s56 offen offset:{phi*32}", tag='b')
    if FT1 and FTWAIT: a.wait(vm=[('w', FT1 - 1)])
    lds_arrive(a, C_FT, 4, 5)
    a.stamp(5)
    while st['dma'] < PRE1 - 2:
        while st['rd'] <= st['dma'] - NS + 1 and st['rd'] < NR1: next_rd()
        next_dma()
    a(f"buffer_load_dwordx2 v[4:5], v{VL}, {WS}, s59 offen {SC}", tag='fa')
    while st['dma'] < PRE1:
        while st['rd'] <= st['dma'] - NS + 1 and st['rd'] < NR1: next_rd()
        next_dma()
    while st['rd'] < min(LEADR, FT1): next_rd()
    a.wait(vm='fa')
    keep = list(a.vm)
    Lok = lbl("FAOK")
    a(f"v_cmp_ne_u64 vcc, s[{TAG}:{TAG+1}], v[4:5]")
    a(f"s_cbranch_vccz {Lok}")
    poll(a, VL, 59, 4, sleep=2)
    a.label(Lok)
    a.vm = keep
    a.stamp(6)
    def hload(t, i):
        if i == 0: a("s_add_u32 s61, s57, s58")
        a(f"buffer_load_dwordx4 {q4(HS[t % NH]+i*4)}, v{VH+i}, {WS}, s61 offen {SCL}", tag=('h', t))
        if i == 3:
            a("s_add_u32 s58, s58, 4096")
            a("s_and_b32 s58, s58, 0xffff")
    for t in range(NH):
        for i in range(4): hload(t, i)
        if st['dma'] < min(NK, LEADD, st['rd'] + NS): next_dma()
    while st['rd'] < min(LEADR, st['dma']): next_rd()
    def w2_setup():
        a("s_lshr_b32 s62, s65, 2")
        a("s_and_b32 s63, s65, 3")
        a("s_lshl_b32 s56, s64, 2")
        a("s_add_u32 s63, s63, s56")
        a("v_lshrrev_b32 v3, 3, v2")
        a(f"v_lshl_add_u32 v{VD}, v3, 12, v69")
        for t in range(1, 4):
            a(f"v_add_u32 v{VD+t}, {t*(32768-1024)}, v{VD}")
        a(f"s_mul_i32 s44, s40, {384*4096}")
        a("s_lshl_b32 s56, s63, 7")
        a("s_add_u32 s44, s44, s56")
        if ROT:
            a("s_and_b32 s46, s65, 3")
            a("s_mul_i32 s46, s46, 3")
            a("s_mul_i32 s56, s62, 3")
            a("s_lshr_b32 s56, s56, 1")
            a("s_add_u32 s46, s46, s56")
            a("s_cmp_ge_u32 s46, 12")
            a("s_cselect_b32 s56, 12, 0")
            a("s_sub_u32 s46, s46, s56")
        else:
            a("s_mov_b32 s46, 0")
        a("s_mov_b32 s68, s46")
        srd(a, 48, P_W2, S * F * 2)
        for si in range(4):
            a(f"s_add_u32 s56, s40, {si}")
            a("s_and_b32 s56, s56, 3")
            a("v_xor_b32 v3, s56, v70")
            a(f"v_lshl_add_u32 v{VT+si}, v3, 5, v71")
    W2 = "s[48:51]"
    SL2 = [3, 4, 5, 3, 4, 5, 3, 4, 0, 1, 5, 3]
    def trread2(t):
        wb = WR2 + (t % NR2) * 16
        so = SL2[t] * 4096
        for si in range(4):
            a(f"ds_read_b64_tr_b16 {pr(wb+si*4)}, v{VT+si} offset:{so}", tag=('r2', t))
            a(f"ds_read_b64_tr_b16 {pr(wb+si*4+2)}, v{VT+si} offset:{so+2048}", tag=('r2', t))
    def dma2(t):
        mod = NTB
        a(f"s_lshl_b32 s47, s46, 17")
        a("s_add_u32 s47, s47, s44")
        a(f"s_add_u32 m0, s45, {SL2[t]*4096}")
        for i in range(4):
            a(f"buffer_load_dwordx4 v{VD+i}, {W2}, s47 offen offset:{i*1024} {mod} lds", tag=('w2', t))
        a("s_add_u32 s46, s46, 1")
        a("s_cmp_eq_u32 s46, 12")
        a("s_cselect_b32 s46, 0, s46")
    for t in range(NK):
        wb = WR + (t % NR1) * 16
        hb = HS[t % NH]
        a.wait(vm=[('h', t)], lg=[('r', t)])
        for di in range(4):
            for phi in range(4):
                c = ACC + (phi * 4 + di) * 4
                src = "0" if t == 0 else q4(c)
                a(f"v_mfma_f32_16x16x32_bf16 {q4(c)}, {q4(wb+phi*4)}, {q4(hb+di*4)}, {src}")
            if t + NH < NK: hload(t + NH, di)
        if st['rd'] < NK and st['rd'] <= t + LEADR: next_rd()
        if st['dma'] < min(NK, st['rd'] + NS - 1, t + 1 + LEADD): next_dma()
        if t >= NK - 6 and st['dma'] == NK and st['rd'] < NK and st['rd'] <= t + NR1 - 1: next_rd()
        if t == NK - NH - 1:
            a(f"v_mov_b32 v3, {C_HIS}")
            a("v_mov_b32 v4, 1")
            a("s_mov_b64 exec, 1")
            a("ds_add_u32 v3, v4")
            a("s_mov_b64 exec, -1")
        if t == NK - 3:
            assert st['rd'] == NK and st['dma'] == NK, st
            a.wait(lg=[('r', NK - 1)])
            w2_setup()
        if t >= NK - 3: dma2(t - (NK - 3))
        if t == 5: a.stamp(7)
    a.stamp(8)
    a(f"v_add_u32 v4, s45, v{VL}")
    for di in range(1, 4):
        for phi in range(4):
            a(f"ds_write_b128 v4, {q4(ACC+(phi*4+di)*4)} offset:{(di-1)*4096+phi*1024}")
    for di in range(1, 4):
        a(f"s_sub_u32 s56, s40, {di}")
        a("s_and_b32 s56, s56, 3")
        a(f"s_mul_i32 s56, s56, {RING}")
        a(f"v_add_u32 v{4+di}, s56, v{VL}")
    a("s_lshl_b32 s56, s66, 2")
    a("s_add_u32 s56, s56, s40")
    a("s_mul_i32 s57, s56, 205")
    a("s_lshr_b32 s57, s57, 10")
    a("s_mul_i32 s58, s57, 5")
    a("s_sub_u32 s58, s56, s58")
    a("s_mul_i32 s57, s57, 48")
    a("s_lshl_b32 s59, s67, 1")
    a("s_add_u32 s57, s57, s59")
    a("s_mul_i32 s57, s57, 5")
    a("s_add_u32 s57, s57, s58")
    a("s_lshl_b32 s57, s57, 10")
    a(f"s_add_u32 s57, s57, {GF_OFF}")
    a("s_add_u32 s58, s57, 5120")
    a("s_mul_i32 s59, s56, 24")
    a("s_add_u32 s59, s59, s67")
    a(f"s_mul_i32 s59, s59, {FS}")
    a(f"s_add_u32 s59, s59, {FG_OFF}")
    a(f"s_mov_b32 s60, {f2u(GELU_K1):#x}")
    BF, RB, SUM, OUT, TM, K0, ONE = 136, 8, 152, 168, ACC + 4, ACC + 12, ACC + 13
    a.wait(vm='b')
    unpack(a, BF, BI, 8)
    if not EXACT:
        for phi in range(4):
            for h in range(2):
                c = ACC + (phi * 4) * 4 + 2 * h
                a(f"v_pk_add_f32 {pr(c)}, {pr(c)}, {pr(BF+phi*4+2*h)}")
    lds_arrive(a, C_RED, 3, 4)
    for u in range(3):
        a.wait(vm=[('w2', u)])
        trread2(u)
    lds_wait(a, C_RED, 3, 4, 4)
    for di in range(1, 4):
        for phi in range(4):
            a(f"ds_read_b128 {q4(RB+((di-1)*4+phi)*4)}, v{4+di} offset:{(di-1)*4096+phi*1024}", tag=('p', di))
    a(f"v_mov_b32 v{K0}, {f2u(GELU_K0):#x}")
    for di in range(1, 4):
        a.wait(lg=[('p', di)])
        for phi in range(4):
            for h in range(2):
                s0 = ACC + (phi * 4) * 4 + 2 * h if di == 1 else SUM + phi * 4 + 2 * h
                a(f"v_pk_add_f32 {pr(SUM+phi*4+2*h)}, {pr(s0)}, {pr(RB+((di-1)*4+phi)*4+2*h)}")
    lds_arrive(a, C_RD, 3, ONE)
    n = 16
    if EXACT:
        round_bf16(a, SUM, 8, TM)
        for i in range(0, n, 2): a(f"v_pk_add_f32 {pr(SUM+i)}, {pr(SUM+i)}, {pr(BF+i)}")
        round_bf16(a, SUM, 8, TM)
    for half in range(2):
        R8 = range(8 * half, 8 * half + 8)
        for i in R8[::2]: a(f"v_pk_mul_f32 {pr(BF+i)}, {pr(SUM+i)}, {pr(SUM+i)}")
        for i in R8: a(f"v_fma_f32 v{BF+i}, v{BF+i}, s60, v{K0}")
        for i in R8[::2]: a(f"v_pk_mul_f32 {pr(BF+i)}, {pr(BF+i)}, {pr(SUM+i)}")
        for i in R8: a(f"v_exp_f32 v{BF+i}, v{BF+i}")
        for i in R8: a(f"v_add_f32 v{BF+i}, 1.0, v{BF+i}")
        for i in R8: a(f"v_rcp_f32 v{BF+i}, v{BF+i}")
        for i in R8[::2]: a(f"v_pk_mul_f32 {pr(SUM+i)}, {pr(SUM+i)}, {pr(BF+i)}")
        pack(a, OUT + 4 * half, SUM + 8 * half, 4)
        a(f"buffer_store_dwordx4 {q4(OUT+4*half)}, v{VL}, {WS}, s{57+half} offen {SC}", tag='gs')
    for u in range(3, 6): dma2(u)
    a.wait(vm='gs')
    set_flag(a, 59, 4)
    a.stamp(9)
    keep = [t for t in a.vm if t is not None]
    a("s_or_b32 s56, s2, s40")
    a("s_cmp_lg_u32 s56, 0")
    a("s_cbranch_scc1 KF_NOEP")
    a(f"s_mov_b32 s56, {EP_OFF}")
    set_flag(a, 56, 4)
    a.label("KF_NOEP")
    lds_wait(a, C_RD, 3, 4, 4)
    a("s_branch KF_G2B")
    a.label("KF_G2")
    w2_setup()
    lds_arrive(a, C_RED, 3, 4)
    lds_arrive(a, C_HIS, 3, 4)
    lds_arrive(a, C_FT, 3, 4)
    if FTGATE: lds_wait(a, C_FLG, 4, 5, 4, sleep=1)
    a("v_lshrrev_b32 v3, 5, v2")
    a("v_lshlrev_b32 v3, 12, v3")
    a("v_and_b32 v4, 31, v2")
    a("v_lshl_add_u32 v3, v4, 4, v3")
    a(f"s_mul_i32 s57, s40, {384*4096}")
    a("s_and_b32 s56, s65, 1")
    a("s_lshl_b32 s56, s56, 17")
    a("s_add_u32 s57, s57, s56")
    a("s_lshl_b32 s56, s64, 9")
    a("s_add_u32 s57, s57, s56")
    a("s_mov_b32 s58, 0")
    a.label("KF_PF")
    for k in range(16):
        a(f"buffer_load_dwordx4 {q4(ACC+4*k)}, v3, {W2}, s57 offen {PFMOD}")
        a(f"s_add_u32 s57, s57, {2*4096}")
        a("s_waitcnt vmcnt(8)")
    a(f"s_add_u32 s57, s57, {32*4096}")
    a("s_add_u32 s58, s58, 1")
    a(f"s_cmp_lt_u32 s58, {PFSTEPS//2}")
    a("s_cbranch_scc1 KF_PF")
    for i in range(5, 10): a.stamp(i)
    a.reset_counts()
    for u in range(3): dma2(u)
    for u in range(3):
        a.wait(vm=[('w2', u)])
        trread2(u)
    a("s_waitcnt lgkmcnt(0)")
    for u in range(3, 6): dma2(u)
    assert a.vm == keep, (a.vm, keep)
    a.label("KF_G2B")
    NK = 12
    dma2_order = [8, 9]
    for u in (3, 4):
        a.wait(vm=[('w2', u)])
        trread2(u)
    for u in (6, 7):
        a.wait(lg=[('r2', u - 3)])
        dma2(u)
    for u in (8, 9): dma2(u)
    a("s_mul_i32 s57, s62, 48")
    a("s_mul_i32 s56, s40, 12")
    a("s_add_u32 s57, s57, s56")
    a("s_mul_i32 s57, s57, 5120")
    a(f"s_add_u32 s57, s57, {GF_OFF}")
    a("s_mov_b32 s58, s68")
    a(f"v_add_u32 v{VH}, 4096, v{VL}")
    a("v_mul_u32_u24 v3, 43, v2")
    a("v_lshrrev_b32 v3, 8, v3")
    a("v_mul_u32_u24 v3, 18, v3")
    a("v_add_u32 v3, v3, v2")
    a(f"v_mul_u32_u24 v3, {FS}, v3")
    a("s_mul_i32 s59, s62, 120")
    a("s_mul_i32 s56, s40, 6")
    a("s_add_u32 s59, s59, s56")
    a(f"s_mul_i32 s59, s59, {FS}")
    a(f"s_add_u32 s59, s59, {FG_OFF}")
    XS = srd(a, 36, P_Q, XBYTES)
    B2 = srd(a, 52, P_B2, S * 2)
    a(f"v_and_b32 v6, 15, v2")
    a(f"v_lshrrev_b32 v7, 4, v2")
    a("s_movk_i32 s56, 1280")
    a(f"v_mul_u32_u24 v{VH+1}, s56, v6")
    a(f"v_lshl_add_u32 v{VH+1}, v7, 3, v{VH+1}")
    a(f"v_lshlrev_b32 v{VH+2}, 1, v6")
    a("v_lshrrev_b32 v7, 2, v6")
    a("v_lshlrev_b32 v7, 6, v7")
    a("v_and_b32 v6, 3, v6")
    a(f"v_lshl_add_u32 v{VH+3}, v6, 3, v7")
    a("s_lshl_b32 s60, s63, 6")
    a("s_lshl_b32 s56, s40, 4")
    a("s_add_u32 s60, s60, s56")
    a("s_mul_i32 s61, s60, 1280")
    a("s_mul_i32 s56, s62, 160")
    a("s_add_u32 s61, s61, s56")
    STT, B2V = 172, 174
    XRL = [48, 50, 52, 54, 6]
    for i5 in range(5):
        a(f"buffer_load_dwordx2 {pr(XRL[i5])}, v{VH+1}, {XS}, s61 offen offset:{32*i5} {NT}", tag='x')
    a("s_lshl_b32 s56, s60, 1")
    a(f"buffer_load_ushort v{B2V}, v{VH+2}, {B2}, s56 offen", tag='x')
    a.stamp(10)
    poll(a, 3, 59, 4, 30)
    a.reset_counts()
    a.stamp(11)
    def gload(t, i):
        gb = GS[t % NG]
        if i == 0:
            a("s_mul_i32 s69, s58, 5120")
            a("s_add_u32 s69, s69, s57")
        if i < 4: a(f"buffer_load_dwordx4 {q4(gb+i*4)}, v{VL}, {WS}, s69 offen offset:{i*1024} {SCL}", tag=('g', t))
        else:
            a(f"buffer_load_dwordx4 {q4(gb+16)}, v{VH}, {WS}, s69 offen {SCL}", tag=('g', t))
            a("s_add_u32 s58, s58, 1")
            a("s_cmp_eq_u32 s58, 12")
            a("s_cselect_b32 s58, 0, s58")
    for t in range(NG):
        for i in range(5): gload(t, i)
    a("s_mul_i32 s59, s62, 80")
    a(f"s_mul_i32 s59, s59, {FS}")
    a(f"s_add_u32 s59, s59, {FZ_OFF}")
    a(f"s_add_u32 s56, s59, {64*FS}")
    a(f"v_add_u32 v3, s56, v{VL}")
    a("s_lshr_b32 s56, s60, 5")
    a(f"s_mul_i32 s56, s56, {4*FS}")
    a(f"s_add_u32 s56, s56, {FA_OFF}")
    a("v_and_b32 v69, 3, v2")
    a("v_lshlrev_b32 v69, 4, v69")
    a("v_add_u32 v69, s56, v69")
    a("v_cmp_gt_u32 vcc, 16, v2")
    a("v_cndmask_b32 v69, v69, v3, vcc")
    a("v_lshrrev_b32 v3, 1, v2")
    a("v_lshlrev_b32 v3, 12, v3")
    a("v_and_b32 v70, 1, v2")
    a("v_lshl_add_u32 v3, v70, 4, v3")
    TZ1, TZ2 = E('TZ1', 5), E('TZ2', 8)
    for t in range(NK):
        wb = WR2 + (t % NR2) * 16
        gb = GS[t % NG]
        a.wait(vm=[('g', t)], lg=[('r2', t)])
        for i5 in range(5):
            for si in range(4):
                c = ACC + (i5 * 4 + si) * 4
                src = "0" if t == 0 else q4(c)
                a(f"v_mfma_f32_16x16x32_bf16 {q4(c)}, {q4(gb+i5*4)}, {q4(wb+si*4)}, {src}")
            if t + NG < NK: gload(t + NG, i5)
        if t >= 1 and t - 1 + NR2 + NS2 < NK:
            assert SL2[t - 1 + NR2 + NS2] == SL2[t - 1 + NR2]
            a.wait(lg=[('r2', t - 1 + NR2)])
            dma2(t - 1 + NR2 + NS2)
        if t + NR2 < NK:
            a.wait(vm=[('w2', t + NR2)])
            trread2(t + NR2)
        if t == TZ1:
            a(f"buffer_load_dwordx2 v[4:5], v{VL}, {WS}, s59 offen {SC}", tag='zf')
            a(f"buffer_load_dwordx2 v[70:71], v69, {WS}, 0 offen {SC}", tag='zf')
        if t == TZ2:
            Lok = lbl("ZOK"); Lp = lbl("ZP")
            a.wait(vm='zf')
            keep = list(a.vm)
            a("s_mov_b32 s70, 0")
            a.label(Lp)
            a(f"v_cmp_ne_u64 vcc, s[{TAG}:{TAG+1}], v[4:5]")
            a(f"v_cmp_ne_u64 s[66:67], s[{TAG}:{TAG+1}], v[70:71]")
            a("s_or_b64 vcc, vcc, s[66:67]")
            a(f"s_cbranch_scc0 {Lok}")
            a("s_add_u32 s70, s70, 1")
            a(f"s_cmp_gt_u32 s70, {SPIN_MAX}")
            a(f"s_cbranch_scc1 {Lok}")
            a(f"buffer_load_dwordx2 v[4:5], v{VL}, {WS}, s59 offen {SC}")
            a(f"buffer_load_dwordx2 v[70:71], v69, {WS}, 0 offen {SC}")
            a("s_waitcnt vmcnt(0)")
            a(f"s_branch {Lp}")
            a.label(Lok)
            a.vm = keep
            a(f"s_mul_i32 s59, s62, {80*4096}")
            a("s_lshl_b32 s56, s60, 1")
            a("s_add_u32 s59, s59, s56")
            a(f"s_add_u32 s59, s59, {Z_OFF}")
            for k in range(3):
                a(f"s_add_u32 m0, s45, {2*4096 + k*1024}")
                if k == 2: set_exec(a, 32)
                a(f"buffer_load_dwordx4 v3, {WS}, s59 offen {SC} lds", tag='z')
                if k == 2: a("s_mov_b64 exec, -1")
                a(f"s_add_u32 s59, s59, {32*4096}")
            a("s_lshr_b32 s59, s60, 5")
            a("s_lshl_b32 s59, s59, 8")
            a("s_and_b32 s56, s60, 16")
            a("s_lshl_b32 s56, s56, 1")
            a("s_add_u32 s59, s59, s56")
            a(f"s_add_u32 s59, s59, {ST_OFF}")
            a(f"buffer_load_dwordx2 {pr(STT)}, v{VH+3}, {WS}, s59 offen {SC}", tag='z')
        if t == 3: a.stamp(12)
    a.stamp(13)
    a(f"v_add_u32 v4, s45, v{VL}")
    def red_off(si, i5):
        k = (si - 1) * 5 + i5
        return (k if k < 8 else k + 4) * 1024
    for si in range(1, 4):
        for i5 in range(5):
            a(f"ds_write_b128 v4, {q4(ACC+(i5*4+si)*4)} offset:{red_off(si, i5)}")
    XF, XN, TP, ZR, ZF = 176, 196, 216, 226, 8
    for i5 in range(5):
        unpack(a, XF + 4 * i5, XRL[i5], 2)
    for si in range(1, 4):
        a(f"s_sub_u32 s56, s40, {si}")
        a("s_and_b32 s56, s56, 3")
        a(f"s_mul_i32 s56, s56, {RING}")
        a(f"v_add_u32 v{4+si}, s56, v{VL}")
    a("v_lshlrev_b32 v48, 3, v2")
    a("v_add_u32 v48, s45, v48")
    a(f"v_lshlrev_b32 v{B2V}, 16, v{B2V}")
    OUTS = srd(a, 52, P_OUT, XBYTES)
    a.wait(vm='z')
    for i5 in range(5):
        a(f"ds_read_b64_tr_b16 {pr(ZR+2*i5)}, v48 offset:{8192+i5*512}", tag='zr')
    for i in range(10):
        a(f"v_pk_add_f32 {pr(XN+2*i)}, {pr(XF+2*i)}, {pr(STT)} op_sel_hi:[1,0] neg_lo:[0,1] neg_hi:[0,1]")
    lds_arrive(a, C_RED, 3, 49)
    round_bf16(a, XN, 10, TP)
    for i in range(10):
        a(f"v_pk_mul_f32 {pr(XN+2*i)}, {pr(XN+2*i)}, {pr(STT)} op_sel:[0,1] op_sel_hi:[1,1]")
    round_bf16(a, XN, 10, TP)
    unpack(a, ZF, ZR, 10)
    if EXACT:
        for i in range(10): a(f"v_pk_mul_f32 {pr(ZF+2*i)}, {pr(ZF+2*i)}, {pr(XN+2*i)}")
        round_bf16(a, ZF, 10, TP)
        for i in range(10): a(f"v_pk_add_f32 {pr(ZF+2*i)}, {pr(ZF+2*i)}, {pr(XF+2*i)}")
        round_bf16(a, ZF, 10, TP)
    else:
        for i in range(10): a(f"v_pk_fma_f32 {pr(ZF+2*i)}, {pr(ZF+2*i)}, {pr(XN+2*i)}, {pr(XF+2*i)}")
        for i in range(10): a(f"v_pk_add_f32 {pr(ZF+2*i)}, {pr(ZF+2*i)}, {pr(B2V)} op_sel_hi:[1,0]")
        for i5 in range(5):
            for h in range(2):
                c = ACC + (i5 * 4) * 4 + 2 * h
                a(f"v_pk_add_f32 {pr(c)}, {pr(c)}, {pr(ZF+4*i5+2*h)}")
    lds_wait(a, C_RED, 3, 49, 8)
    for si in range(1, 4):
        for i5 in range(5):
            a(f"ds_read_b128 {q4(ACC+(i5*4+si)*4)}, v{4+si} offset:{red_off(si, i5)}", tag=('p', si))
    for si in range(1, 4):
        a.wait(lg=[('p', si)])
        for i5 in range(5):
            for h in range(2):
                c = ACC + (i5 * 4) * 4 + 2 * h
                a(f"v_pk_add_f32 {pr(c)}, {pr(c)}, {pr(c+4*si)}")
    for i5 in range(5):
        for h in range(2):
            c = ACC + (i5 * 4) * 4 + 2 * h
            a(f"v_cvt_pk_bf16_f32 v{TP+2*i5+h}, v{c}, v{c+1}")
    if EXACT:
        YF = XN
        unpack(a, YF, TP, 10)
        for i in range(10): a(f"v_pk_add_f32 {pr(YF+2*i)}, {pr(YF+2*i)}, {pr(B2V)} op_sel_hi:[1,0]")
        round_bf16(a, YF, 10, TP)
        for i in range(10): a(f"v_pk_add_f32 {pr(YF+2*i)}, {pr(YF+2*i)}, {pr(ZF+2*i)}")
        pack(a, TP, YF, 10)
    for i5 in range(5):
        a(f"buffer_store_dwordx2 {pr(TP+2*i5)}, v{VH+1}, {OUTS}, s61 offen offset:{32*i5}")
    a.flush_stamps(0, 14, vt=250, ws=P_WS)
    a("s_endpgm")

def gen_aux(a):
    a("s_setprio 3")
    a("s_sub_u32 s64, s40, 4")
    a("s_and_b32 s66, s2, 7")
    a("s_lshl_b32 s66, s66, 2")
    a("s_lshr_b32 s67, s2, 3")
    a("s_and_b32 s56, s67, 3")
    a("s_add_u32 s66, s66, s56")
    a("s_lshr_b32 s67, s67, 2")
    a("s_mul_i32 s68, s66, 81920")
    a("s_mul_i32 s56, s67, 160")
    a("s_add_u32 s68, s68, s56")
    a("s_lshl_b32 s56, s64, 6")
    a("v_add_u32 v56, s56, v2")
    a("s_lshl_b32 s57, s64, 10")
    a("s_sub_u32 s58, s68, 3840")
    a("s_movk_i32 s59, 1280")
    a("v_mov_b32 v63, -1")
    for i in range(3):
        if i: a("v_add_u32 v56, 256, v56")
        a("v_mul_u32_u24 v57, 729, v56")
        a("v_lshrrev_b32 v57, 16, v57")
        a("v_mul_u32_u24 v58, 90, v57")
        a("v_sub_u32 v58, v56, v58")
        a("v_mul_u32_u24 v59, 205, v58")
        a("v_lshrrev_b32 v59, 11, v59")
        a("v_mul_u32_u24 v60, 10, v59")
        a("v_sub_u32 v60, v58, v60")
        a("v_lshl_add_u32 v61, v59, 3, v57")
        a("v_lshlrev_b32 v60, 4, v60")
        a("v_mad_u32_u24 v60, v61, s59, v60")
        a("v_add_u32 v60, s58, v60")
        a("v_cmp_gt_u32 vcc, 67, v61")
        a("v_cndmask_b32 v60, v63, v60, vcc")
        a("v_cmp_gt_u32 vcc, 8, v57")
        a(f"v_cndmask_b32 v{40+i}, v63, v60, vcc")
    a("v_add_u32 v56, s56, v2")
    for i in range(3):
        if i: a("v_add_u32 v56, 256, v56")
        a("v_mul_u32_u24 v57, 820, v56")
        a("v_lshrrev_b32 v57, 16, v57")
        a("v_mul_u32_u24 v58, 80, v57")
        a("v_sub_u32 v58, v56, v58")
        a("v_mul_u32_u24 v59, 205, v58")
        a("v_lshrrev_b32 v59, 11, v59")
        a("v_mul_u32_u24 v60, 10, v59")
        a("v_sub_u32 v60, v58, v60")
        a("v_lshl_add_u32 v61, v59, 3, v57")
        a("v_lshlrev_b32 v60, 4, v60")
        a(f"v_mad_u32_u24 v{43+i}, v61, s59, v60")
    a("s_lshl_b32 s67, s67, 2")
    a("s_add_u32 s67, s67, s64")
    a("v_mul_u32_u24 v56, 52, v2")
    a("v_lshrrev_b32 v56, 8, v56")
    a("v_mul_u32_u24 v57, 5, v56")
    a("v_sub_u32 v57, v2, v57")
    a("v_lshlrev_b32 v61, 5, v57")
    a("s_mul_i32 s69, s67, 160")
    KR, VR, SK = 64, 86, 102
    a("s_movk_i32 s56, 160")
    a("v_mul_u32_u24 v58, s56, v56")
    a("v_lshl_add_u32 v58, v57, 3, v58")
    a("s_mul_i32 s56, s64, 40")
    a(f"s_add_u32 s56, s56, {L_KS}")
    a("v_add_u32 v58, s56, v58")
    a("s_lshl_b32 s41, s64, 8")
    a("s_sub_u32 s42, 255, s2")
    a("s_add_u32 s41, s41, s42")
    a(f"s_mul_i32 s42, s64, {HCOPY}")
    a(f"s_add_u32 s42, s42, {L_H}")
    a(f"s_mul_i32 s43, s64, {KB_CH}")
    a(f"s_add_u32 s43, s43, {L_K}")
    a("v_lshlrev_b32 v3, 4, v2")
    a("s_lshl_b32 s62, s41, 12")
    a("v_mov_b32 v4, 0")
    common_entry(a)
    KS = srd(a, 44, P_K, XBYTES)
    VS = srd(a, 48, P_V, XBYTES)
    SKS = srd(a, 52, P_SK, D * 8)
    SM = srd(a, 36, P_SSMK, D * S * 2)
    a("s_barrier")
    a.stamp(1)
    for i in range(3):
        a(f"s_add_u32 m0, s57, {L_KS + i*4096}")
        a(f"buffer_load_dwordx4 v{40+i}, {KS}, 0 offen {NT} lds")
    for i in range(2):
        a(f"s_add_u32 m0, s57, {L_VS + i*4096}")
        a(f"buffer_load_dwordx4 v{43+i}, {VS}, s68 offen {NT} lds")
    Ls = lbl("NOV")
    a("s_cmp_ge_u32 s64, 2")
    a(f"s_cbranch_scc1 {Ls}")
    a(f"s_add_u32 m0, s57, {L_VS + 2*4096}")
    a(f"buffer_load_dwordx4 v45, {VS}, s68 offen {NT} lds")
    a.label(Ls)
    tag_ready(a)
    lds_arrive(a, C_LNW, 5, 6)
    a(f"buffer_load_dwordx4 {q4(SK)}, v61, {SKS}, s69 offen")
    a(f"buffer_load_dwordx4 {q4(SK+4)}, v61, {SKS}, s69 offen offset:16")
    HL, HN = 192, 208
    for t in range(4):
        a(f"buffer_load_dwordx4 {q4(HL+4*t)}, v3, {SM}, s62 offen offset:{t*1024} {NT}")
    for t in range(4):
        a(f"buffer_load_dwordx2 {pr(HN+2*t)}, v3, {SM}, s62 offen offset:{t*1024+16}")
    SD = srd(a, 44, P_SSMD, D * 2)
    a("s_lshl_b32 s56, s41, 1")
    a(f"buffer_load_ushort v8, v4, {SD}, s56 offen")
    a.stamp(2)
    srd(a, 32, P_WS, WS_TOTAL)
    a("s_waitcnt vmcnt(9)")
    a.vm = []
    a.stamp(3)
    lds_arrive(a, C_KVL, 5, 6)
    a("v_lshrrev_b32 v12, 3, v2")
    a("v_and_b32 v13, 7, v2")
    a("v_lshlrev_b32 v9, 14, v12")
    a("v_lshl_add_u32 v9, v13, 4, v9")
    a(f"s_mul_i32 s57, s67, {20*4096}")
    a("s_lshl_b32 s56, s66, 7")
    a("s_add_u32 s57, s57, s56")
    a(f"s_add_u32 s57, s57, {KVR_OFF}")
    a("s_mul_i32 s58, s64, 768")
    a(f"s_add_u32 s58, s58, {L_KVT}")
    a("s_movk_i32 s56, 144")
    a("v_mul_u32_u24 v10, s56, v57")
    a("v_lshl_add_u32 v10, v56, 4, v10")
    a("v_add_u32 v10, s58, v10")
    a("v_mul_u32_u24 v11, s56, v12")
    a("v_lshl_add_u32 v11, v13, 4, v11")
    a("v_add_u32 v11, s58, v11")
    lds_wait(a, C_KVL, 5, 6, 4)
    set_exec(a, 40)
    for t in range(11):
        a(f"ds_read_b64 {pr(KR+2*t)}, v58 offset:{(t % 8)*1440 + (t // 8)*160}")
    for t in range(8):
        a(f"ds_read_b64 {pr(VR+2*t)}, v58 offset:{12*1024 + t*1280}")
    a("s_waitcnt lgkmcnt(0)")
    W, KF, VF, O = 112, 120, 142, 160
    for p in range(2):
        for e in range(2):
            c = 2 * p + e
            a(f"v_lshlrev_b32 v{W+0+e}, 16, v{SK+2*c}")
            a(f"v_and_b32 v{W+2+e}, 0xffff0000, v{SK+2*c}")
            a(f"v_lshlrev_b32 v{W+4+e}, 16, v{SK+2*c+1}")
            a(f"v_and_b32 v{W+6+e}, 0xffff0000, v{SK+2*c+1}")
        for t in range(11):
            a(f"v_lshlrev_b32 v{KF+2*t}, 16, v{KR+2*t+p}")
            a(f"v_and_b32 v{KF+2*t+1}, 0xffff0000, v{KR+2*t+p}")
        for t in range(8):
            a(f"v_lshlrev_b32 v{VF+2*t}, 16, v{VR+2*t+p}")
            a(f"v_and_b32 v{VF+2*t+1}, 0xffff0000, v{VR+2*t+p}")
        for r in range(8):
            a(f"v_pk_mul_f32 {pr(KF+2*r)}, {pr(KF+2*r)}, {pr(W+6)}")
            a(f"v_pk_fma_f32 {pr(KF+2*r)}, {pr(KF+2*(r+1))}, {pr(W+4)}, {pr(KF+2*r)}")
            a(f"v_pk_fma_f32 {pr(KF+2*r)}, {pr(KF+2*(r+2))}, {pr(W+2)}, {pr(KF+2*r)}")
            a(f"v_pk_fma_f32 {pr(KF+2*r)}, {pr(KF+2*(r+3))}, {pr(W+0)}, {pr(KF+2*r)}")
        for r in range(8):
            a(f"v_pk_mul_f32 {pr(VF+2*r)}, {pr(VF+2*r)}, {pr(KF+2*r)}")
        for e in range(2):
            Ob = O + 8 * p + 4 * e
            for q in range(4):
                a(f"v_cvt_pk_bf16_f32 v{Ob+q}, v{VF+2*(7-2*q)+e}, v{VF+2*(6-2*q)+e}")
            a(f"ds_write_b128 v10, {q4(Ob)}")
            a(f"ds_read_b128 {q4(Ob)}, v11")
    a("s_waitcnt lgkmcnt(0)")
    for c in range(4):
        a(f"buffer_store_dwordx4 {q4(O+4*c)}, v9, {WS}, s57 offen {SC}", tag='ks')
        a("s_add_u32 s57, s57, 4096")
    a("s_mov_b64 exec, -1")
    a.stamp(4)
    lds_arrive(a, C_KVD, 5, 6)
    a("s_lshl_b32 s59, s67, 5")
    a("s_add_u32 s59, s59, s66")
    a(f"s_mul_i32 s59, s59, {FS}")
    a(f"s_add_u32 s59, s59, {FK_OFF}")
    a(f"s_cmp_ge_u32 s41, {D}")
    a("s_cbranch_scc1 KF_NOCONV")
    a.wait(vm='ks')
    set_flag(a, 59, 12)
    lds_arrive(a, C_FLG, 5, 6)
    a.stamp(5)
    lds_wait(a, C_KVD, 5, 6, 4)
    lds_wait(a, C_LNR, 5, 6, 4)
    a("v_add_u32 v9, s42, v3")
    TA = 216
    for t in range(4):
        d = [HL + 4 * t + i for i in range(4)] + [HN + 2 * t, HN + 2 * t + 1]
        a(f"ds_write_b128 v9, {q4(d[0])} offset:{32+t*1024}")
        for i in range(4): a(f"v_alignbit_b32 v{TA+i}, v{d[i+1]}, v{d[i]}, 16")
        for i in range(4): a(f"v_mov_b32 v{TA+4+i}, v{d[i+1]}")
        for i in range(4): a(f"v_alignbit_b32 v{TA+8+i}, v{d[i+2]}, v{d[i+1]}, 16")
        for j in range(1, 4):
            a(f"ds_write_b128 v9, {q4(TA+4*(j-1))} offset:{j*HJ+32+t*1024}")
        TA = 216 + 12 * ((t + 1) & 1)
    a(f"v_readfirstlane_b32 s60, v{HL}")
    a(f"v_readfirstlane_b32 s61, v{HL+1}")
    a("v_mov_b32 v6, s60")
    a("v_mov_b32 v7, s61")
    a("v_lshlrev_b32 v9, 3, v2")
    a("v_add_u32 v9, s43, v9")
    a("v_mov_b32 v5, 0")
    a("ds_write_b64 v9, v[4:5]")
    a("v_and_b32 v11, 15, v2")
    a("v_lshrrev_b32 v12, 4, v2")
    a("v_add_u32 v13, 1, v11")
    a("v_and_b32 v14, 3, v13")
    a(f"s_movk_i32 s56, {HJ}")
    a("v_mul_u32_u24 v10, s56, v14")
    a("v_and_b32 v14, 0x1c, v13")
    a("v_lshl_add_u32 v10, v14, 1, v10")
    a("v_lshl_add_u32 v10, v12, 4, v10")
    a("v_add_u32 v10, s42, v10")
    a("v_lshlrev_b32 v15, 1, v11")
    a("v_sub_u32 v15, v15, v12")
    a("v_lshlrev_b32 v15, 4, v15")
    a(f"s_add_u32 s57, s43, {33*16-448}")
    a("v_add_u32 v15, s57, v15")
    a("v_lshrrev_b32 v16, 2, v2")
    a("v_and_b32 v17, 3, v2")
    a("v_mul_u32_u24 v18, s56, v16")
    a("v_lshl_add_u32 v18, v17, 3, v18")
    a("v_add_u32 v18, s42, v18")
    a("v_lshlrev_b32 v19, 4, v16")
    a("v_sub_u32 v19, 64, v19")
    a("v_lshlrev_b32 v20, 3, v12")
    a("v_add_u32 v20, v20, v11")
    a("v_sub_u32 v20, 15, v20")
    a("v_and_b32 v21, 1, v20")
    a("v_lshlrev_b32 v21, 4, v21")
    a("v_lshrrev_b32 v20, 1, v20")
    a("v_lshlrev_b32 v22, 5, v11")
    a("v_lshl_add_u32 v22, v12, 3, v22")
    a("s_mul_i32 s59, s41, 3277")
    a("s_lshr_b32 s59, s59, 16")
    a(f"s_mul_i32 s59, s59, {32*FS}")
    a(f"s_add_u32 s59, s59, {FK_OFF}")
    if FKGATE: lds_wait(a, C_FT, 28, 29, 4, sleep=2)
    poll(a, 3, 59, 28, 32, sleep=PSLEEP)
    a.stamp(6)
    a("s_add_u32 m0, s43, 512")
    a(f"s_add_u32 s57, s62, {KVR_OFF}")
    for t in range(4):
        a(f"buffer_load_dwordx4 v3, {WS}, s57 offen offset:{t*1024} {SC} lds")
    a("v_lshlrev_b64 v[6:7], v19, v[6:7]")
    a("s_mov_b32 s60, 0x8880")
    a("s_mov_b32 s61, 0")
    a("v_cndmask_b32 v6, 0, v6, s[60:61]")
    a("v_cndmask_b32 v7, 0, v7, s[60:61]")
    a("s_mov_b64 exec, 0xffff")
    a("ds_write_b64 v18, v[6:7]")
    a("s_mov_b64 exec, -1")
    a("v_lshlrev_b32 v8, v21, v8")
    DF = 24
    for j in range(4):
        a(f"v_cmp_eq_u32 vcc, {j}, v20")
        a(f"v_cndmask_b32 v{DF+j}, 0, v8, vcc")
    CACC, AB, BB = 32, 64, 128
    def rd(r, idx):
        buf = (r & 1) * 32
        if idx < 8:
            q = 8 * idx - r
            a(f"ds_read_b128 {q4(BB+buf+idx*4)}, v15 offset:{64*(q+7)}")
        else:
            kap = idx - 8
            k = 8 * kap + r
            a(f"ds_read_b64 {pr(AB+buf+kap*4)}, v10 offset:{64*k}")
            a(f"ds_read_b64 {pr(AB+buf+kap*4+2)}, v10 offset:{64*k+8}")
    for idx in range(8, 16): rd(0, idx)
    a("s_setprio 0")
    a("s_waitcnt vmcnt(0)")
    a.stamp(7)
    for idx in range(8): rd(0, idx)
    for r in range(8):
        buf = (r & 1) * 32
        a("s_waitcnt lgkmcnt(0)")
        if r == CVPAUSE:
            lds_wait(a, C_RED, 5, 6, 4, sleep=4)
        seq = []
        if r == 0:
            for n in range(8): seq.append(('d', n))
        for kap in range(8):
            for n in range(kap, 8): seq.append((kap, n))
        nxt = list(range(16)) if r < 7 else []
        for i, (kap, n) in enumerate(seq):
            c = q4(CACC + n * 4)
            if kap == 'd':
                a(f"v_mfma_f32_16x16x32_bf16 {c}, {q4(DF)}, {q4(BB+buf+n*4)}, 0")
            else:
                a(f"v_mfma_f32_16x16x32_bf16 {c}, {q4(AB+buf+kap*4)}, {q4(BB+buf+(n-kap)*4)}, {c}")
            if nxt and i % 2 == 0:
                rd(r + 1, nxt.pop(0))
        if r == 3: a.stamp(8)
    a.stamp(9)
    a("s_setprio 3")
    a(f"s_add_u32 s57, s62, {Z_OFF}")
    for n in range(8):
        a(f"v_cvt_pk_bf16_f32 v{AB+2*n}, v{CACC+4*n}, v{CACC+4*n+1}")
        a(f"v_cvt_pk_bf16_f32 v{AB+2*n+1}, v{CACC+4*n+2}, v{CACC+4*n+3}")
        a(f"buffer_store_dwordx2 {pr(AB+2*n)}, v22, {WS}, s57 offen offset:{512*n} {SC}")
    a(f"s_mul_i32 s59, s41, {FS}")
    a(f"s_add_u32 s59, s59, {FZ_OFF}")
    a("s_waitcnt vmcnt(0)")
    set_flag(a, 59, 12)
    a.stamp(10)
    a.flush_stamps(0, 11, vt=250, ws=P_WS)
    a("s_endpgm")
    a.label("KF_NOCONV")
    a("s_waitcnt vmcnt(0)")
    set_flag(a, 59, 12)
    lds_arrive(a, C_FLG, 5, 6)
    a.stamp(5)
    if PFSTEPS < 12:
        a("s_cmp_lg_u32 s64, 3")
        a("s_cbranch_scc1 KF_AUXEND")
        nrow = (12 - PFSTEPS) * 16
        a("s_lshr_b32 s56, s2, 3")
        a("s_lshr_b32 s57, s56, 2")
        a("s_and_b32 s56, s56, 3")
        a("s_and_b32 s58, s2, 7")
        a("s_lshl_b32 s58, s58, 2")
        a("s_add_u32 s56, s56, s58")
        a("s_lshr_b32 s58, s57, 1")
        a("s_mul_i32 s58, s58, 384")
        a("s_and_b32 s57, s57, 1")
        a(f"s_mul_i32 s57, s57, {nrow}")
        a("s_add_u32 s57, s57, s58")
        a(f"s_add_u32 s57, s57, {32*PFSTEPS}")
        a("s_lshl_b32 s57, s57, 12")
        a("s_lshl_b32 s56, s56, 7")
        a("s_add_u32 s57, s57, s56")
        a("v_lshrrev_b32 v59, 3, v2")
        a("v_and_b32 v60, 7, v2")
        a("v_lshlrev_b32 v60, 4, v60")
        a("v_lshl_add_u32 v62, v59, 12, v60")
        W2 = srd(a, 36, P_W2, S * F * 2)
        lds_wait(a, C_HIS, 5, 6, 4, sleep=4)
        for k in range(nrow // 8):
            a(f"buffer_load_dwordx4 {q4(64+4*k)}, v62, {W2}, s57 offen {NT}")
            a(f"s_add_u32 s57, s57, {8*4096}")
    a.label("KF_AUXEND")
    a.flush_stamps(0, 6, vt=250, ws=P_WS)

NAME = "parallel_sum__ssm_conv_h3__mixer_token_mlp__prompt"
def build(path, as_list=True):
    ref = open(f"cdna_kernels/{NAME}.s.ref").read().split("\n")
    hdr = [l for l in ref if l.startswith(";") and "@launch" not in l and "Override launch" not in l and "grid=ceil" not in l]
    kn = NAME + "_kernel"
    t, d = gen(kn)
    s = "\n".join(hdr) + "\n"
    if as_list: s += f"; @launch kernel={kn} grid=(256,1,1) block=({THREADS},1,1) lds={LDS_TOTAL}\n"
    else: s += f"; @launch grid=(256,1,1) block=({THREADS},1,1) lds={LDS_TOTAL}\n"
    s += '.amdgcn_target "amdgcn-amd-amdhsa--gfx950"\n' + t + d
    open(path, "w").write(s)
if __name__ == "__main__":
    import sys
    build(sys.argv[1], as_list=(len(sys.argv) <= 2))
```

```python
from asmlib import *
import os, struct, math
E = lambda k, d: type(d)(os.environ.get(k, d))

S, D, F = 2048, 640, 1536
XBYTES = S * D * 2
EP_OFF = 0
FA_OFF = 0x1000
FK_OFF = 0xB000
FG_OFF = 0xF000
FZ_OFF = 0x13000
ST_OFF = 0x16000
HF_OFF = 0x20000
KVR_OFF = 0x2A0000
Z_OFF = 0x520000
GF_OFF = 0x7A0000
WS_TOTAL = 0x980000
FS = 16

NS = 6
RING = NS * 4096
HCOPY = 4160
HB_CH = 4 * HCOPY
KB_CH = 512 + 4096
L_H = 4 * RING
L_K = L_H + 3 * HB_CH
L_MISC = L_K + 3 * KB_CH
L_CNT = L_MISC
L_ST = L_MISC + 64
LDS_TOTAL = L_MISC + 128
HJ = 3 * HCOPY
L_KS = L_H + HJ
L_VS = L_KS + 12 * 1024
L_KVT = L_VS + 10 * 1024
assert L_KVT + 4 * 768 <= L_K
C_RED, C_RD, C_KVL, C_KVD, C_LNW, C_LNR, C_HIS, C_FLG, C_FT = [L_CNT + 4 * i for i in range(9)]
assert LDS_TOTAL <= 163840
THREADS = 512
NT = os.environ.get('NT', 'nt')
NTW = os.environ.get('NTW', NT)
SC = "sc1"
SCL = os.environ.get("SCL", "sc1")
NTB = os.environ.get("NTB", "")
FT0 = E("FT0", 0)
PRE1 = E("PRE1", 12)
LEADD = E("LEADD", 12)
LEADR = E("LEADR", 6)
PFSTEPS = E("PFSTEPS", 4)
FTGATE = E("FTGATE", 1)
FKGATE = E("FKGATE", 1)
CVPAUSE = E("CVPAUSE", 8)
SPIN_MAX = 1 << 16
FT1 = E('FT1', 2)
NR1, NH = 6, 4
NR2, NS2, NG = 5, 5, 3
ROT = E('ROT', 0)
PSLEEP = E('PSLEEP', 6)
FTWAIT = E('FTWAIT', 1)
PFMOD = os.environ.get('PFMOD', '')
W2EARLY = E('W2EARLY', 0)
EXACT = E('EXACT', 1)
W2SIG = E('W2SIG', 0)

def f2u(x): return struct.unpack('<I', struct.pack('<f', x))[0]
GELU_K0 = -2.0 * math.sqrt(2.0 / math.pi) * math.log2(math.e)
GELU_K1 = GELU_K0 * 0.044715
def pr(r): return f"v[{r}:{r+1}]"
def q4(r): return f"v[{r}:{r+3}]"

P_Q, P_K, P_V, P_SK, P_SSMK, P_SSMD, P_BX, P_W1, P_B1, P_W2, P_B2, P_OUT, P_WS = 4, 6, 8, 10, 12, 14, 16, 18, 20, 22, 24, 26, 28
TAG = 30
WS = "s[32:35]"

def srd(a, d, base, nbytes):
    a(f"s_mov_b32 s{d}, s{base}")
    a(f"s_and_b32 s{d+1}, s{base+1}, 0xffff")
    a(f"s_mov_b32 s{d+2}, {nbytes}")
    a(f"s_mov_b32 s{d+3}, 0x00020000")
    return f"s[{d}:{d+3}]"

def reduce2(a, x, y, tx, ty):
    for m in ("quad_perm:[1,0,3,2]", "quad_perm:[2,3,0,1]", "row_half_mirror", "row_mirror"):
        a(f"v_add_f32_dpp v{x}, v{x}, v{x} {m} row_mask:0xf bank_mask:0xf")
        a(f"v_add_f32_dpp v{y}, v{y}, v{y} {m} row_mask:0xf bank_mask:0xf")
    for p in ("v_permlane16_swap_b32", "v_permlane32_swap_b32"):
        a(f"v_mov_b32 v{tx}, v{x}")
        a(f"v_mov_b32 v{ty}, v{y}")
        a(f"{p} v{x}, v{tx}")
        a(f"{p} v{y}, v{ty}")
        a(f"v_add_f32 v{x}, v{x}, v{tx}")
        a(f"v_add_f32 v{y}, v{y}, v{ty}")

def unpack(a, dst, src, n):
    for i in range(n):
        a(f"v_lshlrev_b32 v{dst+2*i}, 16, v{src+i}")
        a(f"v_and_b32 v{dst+2*i+1}, 0xffff0000, v{src+i}")

def pack(a, dst, src, n):
    for i in range(n):
        a(f"v_cvt_pk_bf16_f32 v{dst+i}, v{src+2*i}, v{src+2*i+1}")

def round_bf16(a, reg, n2, tmp):
    pack(a, tmp, reg, n2); unpack(a, reg, tmp, n2)

_uid = [0]
def lbl(p):
    _uid[0] += 1
    return f"{p}_{_uid[0]}"

def set_exec(a, n):
    m = (1 << n) - 1
    a(f"s_mov_b32 exec_lo, {hex(m & 0xffffffff)}")
    a(f"s_mov_b32 exec_hi, {hex(m >> 32)}")

def poll(a, vaddr, soff, vt, nlanes=64, sleep=0):
    L = lbl("POLL"); Lx = lbl("POLLX")
    a("s_mov_b32 s70, 0")
    if nlanes < 64: set_exec(a, nlanes)
    a.label(L)
    a(f"buffer_load_dwordx2 {pr(vt)}, v{vaddr}, {WS}, s{soff} offen {SC}")
    a("s_add_u32 s70, s70, 1")
    a("s_waitcnt vmcnt(0)")
    a(f"v_cmp_ne_u64 vcc, s[{TAG}:{TAG+1}], {pr(vt)}")
    a(f"s_cmp_gt_u32 s70, {SPIN_MAX}")
    a(f"s_cbranch_scc1 {Lx}")
    a(f"s_cbranch_vccz {Lx}")
    if sleep: a(f"s_sleep {sleep}")
    a(f"s_branch {L}")
    a.label(Lx)
    if nlanes < 64: a("s_mov_b64 exec, -1")

def set_flag(a, soff, vt):
    a(f"v_mov_b32 v{vt}, s{TAG}")
    a(f"v_mov_b32 v{vt+1}, s{TAG+1}")
    a(f"v_mov_b32 v{vt+2}, 0")
    a("s_mov_b64 exec, 1")
    a(f"buffer_store_dwordx2 {pr(vt)}, v{vt+2}, {WS}, s{soff} offen {SC}")
    a("s_mov_b64 exec, -1")

def lds_sync(a, cnt_off, va, vb, target):
    L = lbl("LSYNC"); Lx = lbl("LSYNCX")
    a(f"v_mov_b32 v{va}, {cnt_off}")
    a(f"v_mov_b32 v{vb}, 1")
    a("s_waitcnt lgkmcnt(0)")
    a("s_mov_b64 exec, 1")
    a(f"ds_add_u32 v{va}, v{vb}")
    a("s_mov_b64 exec, -1")
    a("s_mov_b32 s70, 0")
    a.label(L)
    a(f"ds_read_b32 v{vb}, v{va}")
    a("s_add_u32 s70, s70, 1")
    a("s_waitcnt lgkmcnt(0)")
    a(f"v_readfirstlane_b32 s71, v{vb}")
    a(f"s_cmp_gt_u32 s70, {SPIN_MAX*4}")
    a(f"s_cbranch_scc1 {Lx}")
    a(f"s_cmp_lt_u32 s71, {target}")
    a(f"s_cbranch_scc1 {L}")
    a.label(Lx)

class Coll:
    def __init__(self): self.l = []
    def __call__(self, t, tag=None): self.l.append(t)

def reduce2c(a, x, y, tx, ty): reduce2(a, x, y, tx, ty)

def ln_row(RAW, X, T, Q, sh):
    a = Coll()
    S1, S1h, S2, S2h, M, R = Q, Q + 1, Q + 2, Q + 3, Q + 4, Q + 5
    unpack(a, X, RAW, 5)
    a(f"v_readfirstlane_b32 s{sh}, v{X}")
    for i in range(10): a(f"v_subrev_f32 v{T+i}, s{sh}, v{X+i}")
    def sums(src):
        a(f"v_pk_add_f32 {pr(S1)}, {pr(src)}, {pr(src+2)}")
        a(f"v_pk_mul_f32 {pr(S2)}, {pr(src)}, {pr(src)}")
        for i in range(1, 5):
            if i >= 2: a(f"v_pk_add_f32 {pr(S1)}, {pr(S1)}, {pr(src+2*i)}")
            a(f"v_pk_fma_f32 {pr(S2)}, {pr(src+2*i)}, {pr(src+2*i)}, {pr(S2)}")
        a(f"v_add_f32 v{S1}, v{S1}, v{S1h}")
        a(f"v_add_f32 v{S2}, v{S2}, v{S2h}")
        reduce2(a, S1, S2, S1h, S2h)
    def stats(shift):
        a(f"v_mul_f32 v{S1}, s60, v{S1}")
        a(f"v_mul_f32 v{S2}, s60, v{S2}")
        a(f"v_fma_f32 v{S2}, -v{S1}, v{S1}, v{S2}")
        a(f"v_max_f32 v{S2}, 0, v{S2}")
        if shift: a(f"v_add_f32 v{S1}, s{sh}, v{S1}")
        a(f"v_cvt_pk_bf16_f32 v{S1h}, v{S1}, v{S2}")
        a(f"v_lshlrev_b32 v{M}, 16, v{S1h}")
        a(f"v_and_b32 v{S2}, 0xffff0000, v{S1h}")
        a(f"v_add_f32 v{S2}, 0x3727c5ac, v{S2}")
        a(f"v_cvt_pk_bf16_f32 v{S2}, v{S2}, v{S2}")
        a(f"v_lshlrev_b32 v{S2}, 16, v{S2}")
        a(f"v_sqrt_f32 v{S2}, v{S2}")
        a(f"v_cvt_pk_bf16_f32 v{S2}, v{S2}, v{S2}")
        a(f"v_lshlrev_b32 v{S2}, 16, v{S2}")
        a(f"v_rcp_f32 v{R}, v{S2}")
    def normalize():
        for i in range(5):
            a(f"v_pk_add_f32 {pr(T+2*i)}, {pr(X+2*i)}, {pr(M)} op_sel_hi:[1,0] neg_lo:[0,1] neg_hi:[0,1]")
        round_bf16(a, T, 5, RAW)
        for i in range(5):
            a(f"v_pk_mul_f32 {pr(T+2*i)}, {pr(T+2*i)}, {pr(M)} op_sel:[0,1] op_sel_hi:[1,1]")
        pack(a, RAW, T, 5)
    sums(T); stats(True)
    p1 = a.l; a.l = []
    normalize()
    unpack(a, X, RAW, 5)
    sums(X); stats(False)
    normalize()
    return p1, a.l

def common_entry(a):
    a("s_waitcnt lgkmcnt(0)")
    a(f"s_load_dwordx2 s[{TAG}:{TAG+1}], s[{P_WS}:{P_WS+1}], {EP_OFF}")

def tag_ready(a):
    a("s_waitcnt lgkmcnt(0)")
    a(f"s_add_u32 s{TAG}, s{TAG}, 0x9E3779B9")
    a(f"s_add_u32 s{TAG+1}, s{TAG+1}, 0x7F4A7C15")

RA, RB_ = 8, 72
def ln_addr_and_load(a):
    a("s_lshr_b32 s41, s2, 2")
    a("s_and_b32 s42, s2, 3")
    a("s_lshl_b32 s43, s41, 5")
    a("s_lshl_b32 s56, s42, 2")
    a("s_add_u32 s43, s43, s56")
    a("s_and_b32 s56, s40, 1")
    a("s_lshl_b32 s56, s56, 1")
    a("s_add_u32 s43, s43, s56")
    a("s_lshr_b32 s56, s40, 1")
    a("s_lshl_b32 s56, s56, 4")
    a("s_add_u32 s43, s43, s56")
    a("s_mul_i32 s43, s43, 1280")
    a("v_lshlrev_b32 v3, 3, v2")
    a("v_lshlrev_b32 v4, 2, v2")
    a(f"v_add_u32 v5, {L_CNT}, v4")
    a("v_mov_b32 v6, 0")
    a("s_mov_b64 exec, 0xffff")
    a("ds_write_b32 v5, v6")
    a("s_mov_b64 exec, -1")
    common_entry(a)
    X = srd(a, 36, P_Q, XBYTES)
    for r, o in ((RA, 0), (RB_, 1280)):
        a(f"buffer_load_dwordx2 {pr(r)}, v3, {X}, s43 offen offset:{o} {NT}", tag='x')
        a(f"buffer_load_dwordx2 {pr(r+2)}, v3, {X}, s43 offen offset:{o+512} {NT}", tag='x')
        a(f"buffer_load_dword v{r+4}, v4, {X}, s43 offen offset:{o+1024} {NT}", tag='x')
    a("s_barrier")
    srd(a, 32, P_WS, WS_TOTAL)

def ln_compute_publish(a, hook=None):
    a("s_mul_i32 s56, s40, 2688")
    a(f"s_add_u32 s56, s56, {L_K}")
    a("v_add_u32 v5, s56, v3")
    a("v_add_u32 v6, s56, v4")
    a("v_bfe_u32 v40, v2, 2, 2")
    a("s_movk_i32 s57, 1344")
    a("v_mul_u32_u24 v40, s57, v40")
    a("v_lshrrev_b32 v41, 4, v2")
    a("v_lshl_add_u32 v40, v41, 5, v40")
    a("v_and_b32 v42, 3, v2")
    a("v_lshl_add_u32 v40, v42, 3, v40")
    a("s_lshl_b32 s57, s40, 7")
    a(f"s_add_u32 s57, s57, {L_K}")
    a("v_add_u32 v40, s57, v40")
    a("v_and_b32 v42, 15, v2")
    a("v_lshlrev_b32 v42, 4, v42")
    a("v_lshl_add_u32 v42, v41, 10, v42")
    a("s_lshl_b32 s57, s40, 6")
    a("s_add_u32 s57, s57, s41")
    a("s_lshl_b32 s57, s57, 12")
    a("s_lshl_b32 s58, s42, 8")
    a("s_add_u32 s57, s57, s58")
    a(f"s_add_u32 s57, s57, {HF_OFF}")
    a("s_lshl_b32 s59, s40, 8")
    a("s_add_u32 s59, s59, s2")
    a(f"s_mul_i32 s59, s59, {FS}")
    a(f"s_add_u32 s59, s59, {FA_OFF}")
    a("s_mov_b32 s60, 0x3acccccd")
    a("s_lshl_b32 s61, s40, 4")
    a(f"s_add_u32 s61, s61, {L_ST}")
    a("v_mov_b32 v43, s61")
    a(f"v_lshlrev_b32 v54, {(4*256*FS).bit_length()-1}, v2")
    tag_ready(a)
    a.stamp(1)
    a.wait(vm='x')
    a.stamp(2)
    A1, A2 = ln_row(RA, 16, 44, 26, 62)
    B1, B2 = ln_row(RB_, 80, 92, 104, 63)
    for x, y in zip(A1, B1): a(x); a(y)
    a("s_mov_b64 exec, 1")
    a("ds_write_b64 v43, v[30:31]")
    a("ds_write_b64 v43, v[108:109] offset:8")
    a("s_mov_b64 exec, -1")
    for x, y in zip(A2, B2): a(x); a(y)
    for r, o in ((RA, 0), (RB_, 1344)):
        a(f"ds_write_b64 v5, {pr(r)} offset:{o}")
        a(f"ds_write_b64 v5, {pr(r+2)} offset:{o+512}")
        a(f"ds_write_b32 v6, v{r+4} offset:{o+1024}")
    lds_arrive(a, C_LNW, 44, 45)
    a.stamp(3)
    lds_wait(a, C_LNW, 44, 45, 8)
    for k in range(2):
        a(f"ds_read_b64_tr_b16 {pr(16+4*k)}, v40 offset:{512*k}", tag=('t', k))
        a(f"ds_read_b64_tr_b16 {pr(18+4*k)}, v40 offset:{4*1344+512*k}", tag=('t', k))
    a(f"s_add_u32 s58, s57, {4*64*4096}")
    a.wait(lg=[('t', 0)])
    a(f"buffer_store_dwordx4 v[16:19], v42, {WS}, s57 offen {SC}")
    L1 = lbl("LN1")
    a("s_mov_b32 s56, 3")
    a("s_cmp_ge_u32 s40, 2")
    a(f"s_cbranch_scc1 {L1}")
    a("ds_read_b64_tr_b16 v[24:25], v40 offset:1024")
    a(f"ds_read_b64_tr_b16 v[26:27], v40 offset:{4*1344+1024}")
    a(f"v_add_u32 v44, {L_ST}, v3")
    a("ds_read_b64 v[28:29], v44")
    a(f"s_add_u32 s57, s57, {8*64*4096}")
    a("s_lshl_b32 s61, s2, 6")
    a(f"s_add_u32 s61, s61, {ST_OFF}")
    a("s_mov_b32 s56, 7")
    a("s_waitcnt lgkmcnt(0)")
    a(f"buffer_store_dwordx4 v[24:27], v42, {WS}, s57 offen {SC}")
    a("s_mov_b64 exec, 0xff")
    a(f"buffer_store_dwordx2 v[28:29], v3, {WS}, s61 offen {SC}")
    a("s_mov_b64 exec, -1")
    a.label(L1)
    a("s_waitcnt lgkmcnt(0)")
    a(f"buffer_store_dwordx4 v[20:23], v42, {WS}, s58 offen {SC}", tag='hs')
    lds_arrive(a, C_LNR, 44, 45)
    a(f"v_mov_b32 v44, s{TAG}")
    a(f"v_mov_b32 v45, s{TAG+1}")
    a("s_mov_b32 s61, s56")
    if hook: hook()
    a.wait(vm='hs')
    a("s_mov_b32 exec_lo, s61")
    a("s_mov_b32 exec_hi, 0")
    a(f"buffer_store_dwordx2 v[44:45], v54, {WS}, s59 offen {SC}")
    a("s_mov_b64 exec, -1")
    a.stamp(4)

def gen(name):
    a = Asm()
    a.raw(kernel_header(name))
    a("s_cmp_ge_u32 s2, 256")
    a("s_cbranch_scc1 KF_DONE")
    a("s_load_dwordx16 s[4:19], s[0:1], 0")
    a("s_load_dwordx8 s[20:27], s[0:1], 64")
    a("s_load_dwordx2 s[28:29], s[0:1], 104")
    a.stamp(0)
    a("v_lshrrev_b32 v1, 6, v0")
    a("v_and_b32 v2, 63, v0")
    a("v_readfirstlane_b32 s40, v1")
    a("s_cmp_ge_u32 s40, 4")
    a("s_cbranch_scc1 KF_AUX")
    gen_gemm(a)
    a.label("KF_AUX")
    a.reset_counts()
    gen_aux(a)
    a.label("KF_DONE")
    a("s_endpgm")
    return a.render(), kernel_desc(name, 256, 72)

def lds_arrive(a, cnt_off, va, vb):
    a(f"v_mov_b32 v{va}, {cnt_off}")
    a(f"v_mov_b32 v{vb}, 1")
    a("s_waitcnt lgkmcnt(0)")
    a("s_mov_b64 exec, 1")
    a(f"ds_add_u32 v{va}, v{vb}")
    a("s_mov_b64 exec, -1")

def lds_wait(a, cnt_off, va, vb, target, sleep=0):
    L = lbl("LW"); Lx = lbl("LWX")
    a(f"v_mov_b32 v{va}, {cnt_off}")
    a("s_mov_b32 s70, 0")
    a.label(L)
    a(f"ds_read_b32 v{vb}, v{va}")
    a("s_add_u32 s70, s70, 1")
    a("s_waitcnt lgkmcnt(0)")
    a(f"v_readfirstlane_b32 s71, v{vb}")
    a(f"s_cmp_gt_u32 s70, {SPIN_MAX*4}")
    a(f"s_cbranch_scc1 {Lx}")
    a(f"s_cmp_ge_u32 s71, {target}")
    a(f"s_cbranch_scc1 {Lx}")
    if sleep: a(f"s_sleep {sleep}")
    a(f"s_branch {L}")
    a.label(Lx)

def gen_gemm(a):
    a("s_setprio 2")
    VD, VT, VH, VL = 56, 60, 64, 68
    ACC = 72
    WR = 152
    HS = [8, 24, 40, 136]
    WR2 = 176
    GS = [8, 28, 152]
    a("s_and_b32 s64, s2, 7")
    a("s_lshr_b32 s65, s2, 3")
    ln_addr_and_load(a)
    a("s_mul_i32 s66, s65, 171")
    a("s_lshr_b32 s66, s66, 9")
    a("s_mul_i32 s67, s66, 3")
    a("s_sub_u32 s67, s65, s67")
    a("s_mul_i32 s68, s66, 1639")
    a("s_lshr_b32 s68, s68, 10")
    a("s_and_b32 s68, s68, 15")
    a("s_mul_i32 s69, s64, 3")
    a("s_add_u32 s67, s67, s69")
    a(f"v_lshlrev_b32 v{VL}, 4, v2")
    a("v_bfe_u32 v69, v2, 1, 2")
    a("v_lshrrev_b32 v70, 4, v2")
    a("v_xor_b32 v69, v69, v70")
    a("v_lshlrev_b32 v69, 5, v69")
    a("v_and_b32 v70, 1, v2")
    a("v_lshl_add_u32 v69, v70, 4, v69")
    a("v_lshrrev_b32 v70, 3, v2")
    a("s_movk_i32 s56, 3072")
    a(f"v_mad_u32_u24 v{VD}, v70, s56, v69")
    for t in range(1, 4):
        a(f"v_add_u32 v{VD+t}, {t*(24576-1024)}, v{VD}")
    a(f"s_mul_i32 s44, s40, {512*3072}")
    a("s_lshl_b32 s56, s67, 7")
    a("s_add_u32 s44, s44, s56")
    a(f"s_mul_i32 s45, s40, {RING}")
    a("s_mov_b32 s46, s68")
    W1 = srd(a, 48, P_W1, S * F * 2)
    a("v_lshrrev_b32 v71, 2, v2")
    a("v_lshlrev_b32 v71, 7, v71")
    a("v_and_b32 v70, 3, v2")
    a("v_lshl_add_u32 v71, v70, 3, v71")
    a("v_add_u32 v71, s45, v71")
    a("v_bfe_u32 v70, v2, 3, 2")
    for phi in range(4):
        a(f"v_xor_b32 v13, {phi}, v70")
        a(f"v_lshl_add_u32 v{VT+phi}, v13, 5, v71")
    for i in range(4):
        a(f"s_add_u32 s56, s40, {i}")
        a("s_and_b32 s56, s56, 3")
        a("s_lshl_b32 s56, s56, 10")
        a(f"v_add_u32 v{VH+i}, s56, v{VL}")
    def dma1(t):
        mod = NTW if t < FT1 else NTB
        a(f"s_mul_i32 s47, s46, {32*3072}")
        a("s_add_u32 s47, s47, s44")
        a(f"s_add_u32 m0, s45, {(t % NS)*4096}")
        for i in range(4):
            a(f"buffer_load_dwordx4 v{VD+i}, {W1}, s47 offen offset:{i*1024} {mod} lds", tag=('w', t))
        a("s_add_u32 s46, s46, 1")
        a("s_and_b32 s46, s46, 15")
    def hook():
        for t in range(FT0): dma1(t)
    ln_compute_publish(a, hook)
    a("s_cmp_ge_u32 s2, 240")
    a("s_cbranch_scc1 KF_G2")
    def trread(t):
        wb = WR + (t % NR1) * 16
        for phi in range(4):
            a(f"ds_read_b64_tr_b16 {pr(wb+phi*4)}, v{VT+phi} offset:{(t % NS)*4096}", tag=('r', t))
            a(f"ds_read_b64_tr_b16 {pr(wb+phi*4+2)}, v{VT+phi} offset:{(t % NS)*4096+2048}", tag=('r', t))
    NK = 16
    st = {'dma': FT0, 'rd': 0}
    def next_dma():
        t = st['dma']
        if t >= NS: a.wait(lg=[('r', t - NS)])
        dma1(t); st['dma'] += 1
    def next_rd():
        t = st['rd']
        a.wait(vm=[('w', t)])
        trread(t); st['rd'] += 1
    if FTGATE: lds_wait(a, C_FLG, 4, 5, 4, sleep=1)
    while st['dma'] < FT1: next_dma()
    a("s_lshl_b32 s57, s66, 6")
    a("s_lshl_b32 s56, s40, 4")
    a("s_add_u32 s57, s57, s56")
    a("s_lshl_b32 s57, s57, 12")
    a(f"s_add_u32 s57, s57, {HF_OFF}")
    a("s_lshl_b32 s58, s68, 12")
    a("s_lshl_b32 s59, s66, 8")
    a("s_lshl_b32 s56, s40, 6")
    a("s_add_u32 s59, s59, s56")
    a(f"s_mul_i32 s59, s59, {FS}")
    a(f"s_add_u32 s59, s59, {FA_OFF}")
    B1 = srd(a, 52, P_B1, F * 2)
    a("v_lshrrev_b32 v3, 4, v2")
    a("v_lshlrev_b32 v3, 3, v3")
    a("s_lshl_b32 s56, s67, 7")
    BI = 248
    for phi in range(4):
        a(f"buffer_load_dwordx2 {pr(BI+2*phi)}, v3, {B1}, s56 offen offset:{phi*32}", tag='b')
    if FT1 and FTWAIT: a.wait(vm=[('w', FT1 - 1)])
    lds_arrive(a, C_FT, 4, 5)
    a.stamp(5)
    while st['dma'] < PRE1 - 2:
        while st['rd'] <= st['dma'] - NS + 1 and st['rd'] < NR1: next_rd()
        next_dma()
    a(f"buffer_load_dwordx2 v[4:5], v{VL}, {WS}, s59 offen {SC}", tag='fa')
    while st['dma'] < PRE1:
        while st['rd'] <= st['dma'] - NS + 1 and st['rd'] < NR1: next_rd()
        next_dma()
    while st['rd'] < min(LEADR, FT1): next_rd()
    a.wait(vm='fa')
    keep = list(a.vm)
    Lok = lbl("FAOK")
    a(f"v_cmp_ne_u64 vcc, s[{TAG}:{TAG+1}], v[4:5]")
    a(f"s_cbranch_vccz {Lok}")
    poll(a, VL, 59, 4, sleep=2)
    a.label(Lok)
    a.vm = keep
    a.stamp(6)
    def hload(t, i):
        if i == 0: a("s_add_u32 s61, s57, s58")
        a(f"buffer_load_dwordx4 {q4(HS[t % NH]+i*4)}, v{VH+i}, {WS}, s61 offen {SCL}", tag=('h', t))
        if i == 3:
            a("s_add_u32 s58, s58, 4096")
            a("s_and_b32 s58, s58, 0xffff")
    for t in range(NH):
        for i in range(4): hload(t, i)
        if st['dma'] < min(NK, LEADD, st['rd'] + NS): next_dma()
    while st['rd'] < min(LEADR, st['dma']): next_rd()
    def w2_setup():
        a("s_lshr_b32 s62, s65, 2")
        a("s_and_b32 s63, s65, 3")
        a("s_lshl_b32 s56, s64, 2")
        a("s_add_u32 s63, s63, s56")
        a("v_lshrrev_b32 v3, 3, v2")
        a(f"v_lshl_add_u32 v{VD}, v3, 12, v69")
        for t in range(1, 4):
            a(f"v_add_u32 v{VD+t}, {t*(32768-1024)}, v{VD}")
        a(f"s_mul_i32 s44, s40, {384*4096}")
        a("s_lshl_b32 s56, s63, 7")
        a("s_add_u32 s44, s44, s56")
        if ROT:
            a("s_and_b32 s46, s65, 3")
            a("s_mul_i32 s46, s46, 3")
            a("s_mul_i32 s56, s62, 3")
            a("s_lshr_b32 s56, s56, 1")
            a("s_add_u32 s46, s46, s56")
            a("s_cmp_ge_u32 s46, 12")
            a("s_cselect_b32 s56, 12, 0")
            a("s_sub_u32 s46, s46, s56")
        else:
            a("s_mov_b32 s46, 0")
        a("s_mov_b32 s68, s46")
        srd(a, 48, P_W2, S * F * 2)
        for si in range(4):
            a(f"s_add_u32 s56, s40, {si}")
            a("s_and_b32 s56, s56, 3")
            a("v_xor_b32 v3, s56, v70")
            a(f"v_lshl_add_u32 v{VT+si}, v3, 5, v71")
    W2 = "s[48:51]"
    SL2 = [3, 4, 5, 3, 4, 5, 3, 4, 0, 1, 5, 3]
    def trread2(t):
        wb = WR2 + (t % NR2) * 16
        so = SL2[t] * 4096
        for si in range(4):
            a(f"ds_read_b64_tr_b16 {pr(wb+si*4)}, v{VT+si} offset:{so}", tag=('r2', t))
            a(f"ds_read_b64_tr_b16 {pr(wb+si*4+2)}, v{VT+si} offset:{so+2048}", tag=('r2', t))
    def dma2(t):
        mod = NTB
        a(f"s_lshl_b32 s47, s46, 17")
        a("s_add_u32 s47, s47, s44")
        a(f"s_add_u32 m0, s45, {SL2[t]*4096}")
        for i in range(4):
            a(f"buffer_load_dwordx4 v{VD+i}, {W2}, s47 offen offset:{i*1024} {mod} lds", tag=('w2', t))
        a("s_add_u32 s46, s46, 1")
        a("s_cmp_eq_u32 s46, 12")
        a("s_cselect_b32 s46, 0, s46")
    for t in range(NK):
        wb = WR + (t % NR1) * 16
        hb = HS[t % NH]
        a.wait(vm=[('h', t)], lg=[('r', t)])
        for di in range(4):
            for phi in range(4):
                c = ACC + (phi * 4 + di) * 4
                src = "0" if t == 0 else q4(c)
                a(f"v_mfma_f32_16x16x32_bf16 {q4(c)}, {q4(wb+phi*4)}, {q4(hb+di*4)}, {src}")
            if t + NH < NK: hload(t + NH, di)
        if st['rd'] < NK and st['rd'] <= t + LEADR: next_rd()
        if st['dma'] < min(NK, st['rd'] + NS - 1, t + 1 + LEADD): next_dma()
        if t >= NK - 6 and st['dma'] == NK and st['rd'] < NK and st['rd'] <= t + NR1 - 1: next_rd()
        if t == NK - NH - 1:
            a(f"v_mov_b32 v3, {C_HIS}")
            a("v_mov_b32 v4, 1")
            a("s_mov_b64 exec, 1")
            a("ds_add_u32 v3, v4")
            a("s_mov_b64 exec, -1")
        if t == NK - 3:
            assert st['rd'] == NK and st['dma'] == NK, st
            a.wait(lg=[('r', NK - 1)])
            w2_setup()
        if t >= NK - 3: dma2(t - (NK - 3))
        if t == 5: a.stamp(7)
    a.stamp(8)
    a(f"v_add_u32 v4, s45, v{VL}")
    for di in range(1, 4):
        for phi in range(4):
            a(f"ds_write_b128 v4, {q4(ACC+(phi*4+di)*4)} offset:{(di-1)*4096+phi*1024}")
    for di in range(1, 4):
        a(f"s_sub_u32 s56, s40, {di}")
        a("s_and_b32 s56, s56, 3")
        a(f"s_mul_i32 s56, s56, {RING}")
        a(f"v_add_u32 v{4+di}, s56, v{VL}")
    a("s_lshl_b32 s56, s66, 2")
    a("s_add_u32 s56, s56, s40")
    a("s_mul_i32 s57, s56, 205")
    a("s_lshr_b32 s57, s57, 10")
    a("s_mul_i32 s58, s57, 5")
    a("s_sub_u32 s58, s56, s58")
    a("s_mul_i32 s57, s57, 48")
    a("s_lshl_b32 s59, s67, 1")
    a("s_add_u32 s57, s57, s59")
    a("s_mul_i32 s57, s57, 5")
    a("s_add_u32 s57, s57, s58")
    a("s_lshl_b32 s57, s57, 10")
    a(f"s_add_u32 s57, s57, {GF_OFF}")
    a("s_add_u32 s58, s57, 5120")
    a("s_mul_i32 s59, s56, 24")
    a("s_add_u32 s59, s59, s67")
    a(f"s_mul_i32 s59, s59, {FS}")
    a(f"s_add_u32 s59, s59, {FG_OFF}")
    a(f"s_mov_b32 s60, {f2u(GELU_K1):#x}")
    BF, RB, SUM, OUT, TM, K0, ONE = 136, 8, 152, 168, ACC + 4, ACC + 12, ACC + 13
    a.wait(vm='b')
    unpack(a, BF, BI, 8)
    if not EXACT:
        for phi in range(4):
            for h in range(2):
                c = ACC + (phi * 4) * 4 + 2 * h
                a(f"v_pk_add_f32 {pr(c)}, {pr(c)}, {pr(BF+phi*4+2*h)}")
    lds_arrive(a, C_RED, 3, 4)
    for u in range(3):
        a.wait(vm=[('w2', u)])
        trread2(u)
    lds_wait(a, C_RED, 3, 4, 4)
    for di in range(1, 4):
        for phi in range(4):
            a(f"ds_read_b128 {q4(RB+((di-1)*4+phi)*4)}, v{4+di} offset:{(di-1)*4096+phi*1024}", tag=('p', di))
    a(f"v_mov_b32 v{K0}, {f2u(GELU_K0):#x}")
    for di in range(1, 4):
        a.wait(lg=[('p', di)])
        for phi in range(4):
            for h in range(2):
                s0 = ACC + (phi * 4) * 4 + 2 * h if di == 1 else SUM + phi * 4 + 2 * h
                a(f"v_pk_add_f32 {pr(SUM+phi*4+2*h)}, {pr(s0)}, {pr(RB+((di-1)*4+phi)*4+2*h)}")
    lds_arrive(a, C_RD, 3, ONE)
    n = 16
    if EXACT:
        round_bf16(a, SUM, 8, TM)
        for i in range(0, n, 2): a(f"v_pk_add_f32 {pr(SUM+i)}, {pr(SUM+i)}, {pr(BF+i)}")
        round_bf16(a, SUM, 8, TM)
    for half in range(2):
        R8 = range(8 * half, 8 * half + 8)
        for i in R8[::2]: a(f"v_pk_mul_f32 {pr(BF+i)}, {pr(SUM+i)}, {pr(SUM+i)}")
        for i in R8: a(f"v_fma_f32 v{BF+i}, v{BF+i}, s60, v{K0}")
        for i in R8[::2]: a(f"v_pk_mul_f32 {pr(BF+i)}, {pr(BF+i)}, {pr(SUM+i)}")
        for i in R8: a(f"v_exp_f32 v{BF+i}, v{BF+i}")
        for i in R8: a(f"v_add_f32 v{BF+i}, 1.0, v{BF+i}")
        for i in R8: a(f"v_rcp_f32 v{BF+i}, v{BF+i}")
        for i in R8[::2]: a(f"v_pk_mul_f32 {pr(SUM+i)}, {pr(SUM+i)}, {pr(BF+i)}")
        pack(a, OUT + 4 * half, SUM + 8 * half, 4)
        a(f"buffer_store_dwordx4 {q4(OUT+4*half)}, v{VL}, {WS}, s{57+half} offen {SC}", tag='gs')
    for u in range(3, 6): dma2(u)
    a.wait(vm='gs')
    set_flag(a, 59, 4)
    a.stamp(9)
    keep = [t for t in a.vm if t is not None]
    a("s_or_b32 s56, s2, s40")
    a("s_cmp_lg_u32 s56, 0")
    a("s_cbranch_scc1 KF_NOEP")
    a(f"s_mov_b32 s56, {EP_OFF}")
    set_flag(a, 56, 4)
    a.label("KF_NOEP")
    lds_wait(a, C_RD, 3, 4, 4)
    a("s_branch KF_G2B")
    a.label("KF_G2")
    w2_setup()
    lds_arrive(a, C_RED, 3, 4)
    lds_arrive(a, C_HIS, 3, 4)
    lds_arrive(a, C_FT, 3, 4)
    if FTGATE: lds_wait(a, C_FLG, 4, 5, 4, sleep=1)
    a("v_lshrrev_b32 v3, 5, v2")
    a("v_lshlrev_b32 v3, 12, v3")
    a("v_and_b32 v4, 31, v2")
    a("v_lshl_add_u32 v3, v4, 4, v3")
    a(f"s_mul_i32 s57, s40, {384*4096}")
    a("s_and_b32 s56, s65, 1")
    a("s_lshl_b32 s56, s56, 17")
    a("s_add_u32 s57, s57, s56")
    a("s_lshl_b32 s56, s64, 9")
    a("s_add_u32 s57, s57, s56")
    a("s_mov_b32 s58, 0")
    a.label("KF_PF")
    for k in range(16):
        a(f"buffer_load_dwordx4 {q4(ACC+4*k)}, v3, {W2}, s57 offen {PFMOD}")
        a(f"s_add_u32 s57, s57, {2*4096}")
        a("s_waitcnt vmcnt(8)")
    a(f"s_add_u32 s57, s57, {32*4096}")
    a("s_add_u32 s58, s58, 1")
    a(f"s_cmp_lt_u32 s58, {PFSTEPS//2}")
    a("s_cbranch_scc1 KF_PF")
    for i in range(5, 10): a.stamp(i)
    a.reset_counts()
    for u in range(3): dma2(u)
    for u in range(3):
        a.wait(vm=[('w2', u)])
        trread2(u)
    a("s_waitcnt lgkmcnt(0)")
    for u in range(3, 6): dma2(u)
    assert a.vm == keep, (a.vm, keep)
    a.label("KF_G2B")
    NK = 12
    dma2_order = [8, 9]
    for u in (3, 4):
        a.wait(vm=[('w2', u)])
        trread2(u)
    for u in (6, 7):
        a.wait(lg=[('r2', u - 3)])
        dma2(u)
    for u in (8, 9): dma2(u)
    a("s_mul_i32 s57, s62, 48")
    a("s_mul_i32 s56, s40, 12")
    a("s_add_u32 s57, s57, s56")
    a("s_mul_i32 s57, s57, 5120")
    a(f"s_add_u32 s57, s57, {GF_OFF}")
    a("s_mov_b32 s58, s68")
    a(f"v_add_u32 v{VH}, 4096, v{VL}")
    a("v_mul_u32_u24 v3, 43, v2")
    a("v_lshrrev_b32 v3, 8, v3")
    a("v_mul_u32_u24 v3, 18, v3")
    a("v_add_u32 v3, v3, v2")
    a(f"v_mul_u32_u24 v3, {FS}, v3")
    a("s_mul_i32 s59, s62, 120")
    a("s_mul_i32 s56, s40, 6")
    a("s_add_u32 s59, s59, s56")
    a(f"s_mul_i32 s59, s59, {FS}")
    a(f"s_add_u32 s59, s59, {FG_OFF}")
    XS = srd(a, 36, P_Q, XBYTES)
    B2 = srd(a, 52, P_B2, S * 2)
    a(f"v_and_b32 v6, 15, v2")
    a(f"v_lshrrev_b32 v7, 4, v2")
    a("s_movk_i32 s56, 1280")
    a(f"v_mul_u32_u24 v{VH+1}, s56, v6")
    a(f"v_lshl_add_u32 v{VH+1}, v7, 3, v{VH+1}")
    a(f"v_lshlrev_b32 v{VH+2}, 1, v6")
    a("v_lshrrev_b32 v7, 2, v6")
    a("v_lshlrev_b32 v7, 6, v7")
    a("v_and_b32 v6, 3, v6")
    a(f"v_lshl_add_u32 v{VH+3}, v6, 3, v7")
    a("s_lshl_b32 s60, s63, 6")
    a("s_lshl_b32 s56, s40, 4")
    a("s_add_u32 s60, s60, s56")
    a("s_mul_i32 s61, s60, 1280")
    a("s_mul_i32 s56, s62, 160")
    a("s_add_u32 s61, s61, s56")
    STT, B2V = 172, 174
    XRL = [48, 50, 52, 54, 6]
    for i5 in range(5):
        a(f"buffer_load_dwordx2 {pr(XRL[i5])}, v{VH+1}, {XS}, s61 offen offset:{32*i5} {NT}", tag='x')
    a("s_lshl_b32 s56, s60, 1")
    a(f"buffer_load_ushort v{B2V}, v{VH+2}, {B2}, s56 offen", tag='x')
    a.stamp(10)
    poll(a, 3, 59, 4, 30)
    a.reset_counts()
    a.stamp(11)
    def gload(t, i):
        gb = GS[t % NG]
        if i == 0:
            a("s_mul_i32 s69, s58, 5120")
            a("s_add_u32 s69, s69, s57")
        if i < 4: a(f"buffer_load_dwordx4 {q4(gb+i*4)}, v{VL}, {WS}, s69 offen offset:{i*1024} {SCL}", tag=('g', t))
        else:
            a(f"buffer_load_dwordx4 {q4(gb+16)}, v{VH}, {WS}, s69 offen {SCL}", tag=('g', t))
            a("s_add_u32 s58, s58, 1")
            a("s_cmp_eq_u32 s58, 12")
            a("s_cselect_b32 s58, 0, s58")
    for t in range(NG):
        for i in range(5): gload(t, i)
    a("s_mul_i32 s59, s62, 80")
    a(f"s_mul_i32 s59, s59, {FS}")
    a(f"s_add_u32 s59, s59, {FZ_OFF}")
    a(f"s_add_u32 s56, s59, {64*FS}")
    a(f"v_add_u32 v3, s56, v{VL}")
    a("s_lshr_b32 s56, s60, 5")
    a(f"s_mul_i32 s56, s56, {4*FS}")
    a(f"s_add_u32 s56, s56, {FA_OFF}")
    a("v_and_b32 v69, 3, v2")
    a("v_lshlrev_b32 v69, 4, v69")
    a("v_add_u32 v69, s56, v69")
    a("v_cmp_gt_u32 vcc, 16, v2")
    a("v_cndmask_b32 v69, v69, v3, vcc")
    a("v_lshrrev_b32 v3, 1, v2")
    a("v_lshlrev_b32 v3, 12, v3")
    a("v_and_b32 v70, 1, v2")
    a("v_lshl_add_u32 v3, v70, 4, v3")
    TZ1, TZ2 = E('TZ1', 5), E('TZ2', 8)
    for t in range(NK):
        wb = WR2 + (t % NR2) * 16
        gb = GS[t % NG]
        a.wait(vm=[('g', t)], lg=[('r2', t)])
        for i5 in range(5):
            for si in range(4):
                c = ACC + (i5 * 4 + si) * 4
                src = "0" if t == 0 else q4(c)
                a(f"v_mfma_f32_16x16x32_bf16 {q4(c)}, {q4(gb+i5*4)}, {q4(wb+si*4)}, {src}")
            if t + NG < NK: gload(t + NG, i5)
        if t >= 1 and t - 1 + NR2 + NS2 < NK:
            assert SL2[t - 1 + NR2 + NS2] == SL2[t - 1 + NR2]
            a.wait(lg=[('r2', t - 1 + NR2)])
            dma2(t - 1 + NR2 + NS2)
        if t + NR2 < NK:
            a.wait(vm=[('w2', t + NR2)])
            trread2(t + NR2)
        if t == TZ1:
            a(f"buffer_load_dwordx2 v[4:5], v{VL}, {WS}, s59 offen {SC}", tag='zf')
            a(f"buffer_load_dwordx2 v[70:71], v69, {WS}, 0 offen {SC}", tag='zf')
        if t == TZ2:
            Lok = lbl("ZOK"); Lp = lbl("ZP")
            a.wait(vm='zf')
            keep = list(a.vm)
            a("s_mov_b32 s70, 0")
            a.label(Lp)
            a(f"v_cmp_ne_u64 vcc, s[{TAG}:{TAG+1}], v[4:5]")
            a(f"v_cmp_ne_u64 s[66:67], s[{TAG}:{TAG+1}], v[70:71]")
            a("s_or_b64 vcc, vcc, s[66:67]")
            a(f"s_cbranch_scc0 {Lok}")
            a("s_add_u32 s70, s70, 1")
            a(f"s_cmp_gt_u32 s70, {SPIN_MAX}")
            a(f"s_cbranch_scc1 {Lok}")
            a(f"buffer_load_dwordx2 v[4:5], v{VL}, {WS}, s59 offen {SC}")
            a(f"buffer_load_dwordx2 v[70:71], v69, {WS}, 0 offen {SC}")
            a("s_waitcnt vmcnt(0)")
            a(f"s_branch {Lp}")
            a.label(Lok)
            a.vm = keep
            a(f"s_mul_i32 s59, s62, {80*4096}")
            a("s_lshl_b32 s56, s60, 1")
            a("s_add_u32 s59, s59, s56")
            a(f"s_add_u32 s59, s59, {Z_OFF}")
            for k in range(3):
                a(f"s_add_u32 m0, s45, {2*4096 + k*1024}")
                if k == 2: set_exec(a, 32)
                a(f"buffer_load_dwordx4 v3, {WS}, s59 offen {SC} lds", tag='z')
                if k == 2: a("s_mov_b64 exec, -1")
                a(f"s_add_u32 s59, s59, {32*4096}")
            a("s_lshr_b32 s59, s60, 5")
            a("s_lshl_b32 s59, s59, 8")
            a("s_and_b32 s56, s60, 16")
            a("s_lshl_b32 s56, s56, 1")
            a("s_add_u32 s59, s59, s56")
            a(f"s_add_u32 s59, s59, {ST_OFF}")
            a(f"buffer_load_dwordx2 {pr(STT)}, v{VH+3}, {WS}, s59 offen {SC}", tag='z')
        if t == 3: a.stamp(12)
    a.stamp(13)
    a(f"v_add_u32 v4, s45, v{VL}")
    def red_off(si, i5):
        k = (si - 1) * 5 + i5
        return (k if k < 8 else k + 4) * 1024
    for si in range(1, 4):
        for i5 in range(5):
            a(f"ds_write_b128 v4, {q4(ACC+(i5*4+si)*4)} offset:{red_off(si, i5)}")
    XF, XN, TP, ZR, ZF = 176, 196, 216, 226, 8
    for i5 in range(5):
        unpack(a, XF + 4 * i5, XRL[i5], 2)
    for si in range(1, 4):
        a(f"s_sub_u32 s56, s40, {si}")
        a("s_and_b32 s56, s56, 3")
        a(f"s_mul_i32 s56, s56, {RING}")
        a(f"v_add_u32 v{4+si}, s56, v{VL}")
    a("v_lshlrev_b32 v48, 3, v2")
    a("v_add_u32 v48, s45, v48")
    a(f"v_lshlrev_b32 v{B2V}, 16, v{B2V}")
    OUTS = srd(a, 52, P_OUT, XBYTES)
    a.wait(vm='z')
    for i5 in range(5):
        a(f"ds_read_b64_tr_b16 {pr(ZR+2*i5)}, v48 offset:{8192+i5*512}", tag='zr')
    for i in range(10):
        a(f"v_pk_add_f32 {pr(XN+2*i)}, {pr(XF+2*i)}, {pr(STT)} op_sel_hi:[1,0] neg_lo:[0,1] neg_hi:[0,1]")
    lds_arrive(a, C_RED, 3, 49)
    round_bf16(a, XN, 10, TP)
    for i in range(10):
        a(f"v_pk_mul_f32 {pr(XN+2*i)}, {pr(XN+2*i)}, {pr(STT)} op_sel:[0,1] op_sel_hi:[1,1]")
    round_bf16(a, XN, 10, TP)
    unpack(a, ZF, ZR, 10)
    if EXACT:
        for i in range(10): a(f"v_pk_mul_f32 {pr(ZF+2*i)}, {pr(ZF+2*i)}, {pr(XN+2*i)}")
        round_bf16(a, ZF, 10, TP)
        for i in range(10): a(f"v_pk_add_f32 {pr(ZF+2*i)}, {pr(ZF+2*i)}, {pr(XF+2*i)}")
        round_bf16(a, ZF, 10, TP)
    else:
        for i in range(10): a(f"v_pk_fma_f32 {pr(ZF+2*i)}, {pr(ZF+2*i)}, {pr(XN+2*i)}, {pr(XF+2*i)}")
        for i in range(10): a(f"v_pk_add_f32 {pr(ZF+2*i)}, {pr(ZF+2*i)}, {pr(B2V)} op_sel_hi:[1,0]")
        for i5 in range(5):
            for h in range(2):
                c = ACC + (i5 * 4) * 4 + 2 * h
                a(f"v_pk_add_f32 {pr(c)}, {pr(c)}, {pr(ZF+4*i5+2*h)}")
    lds_wait(a, C_RED, 3, 49, 8)
    for si in range(1, 4):
        for i5 in range(5):
            a(f"ds_read_b128 {q4(ACC+(i5*4+si)*4)}, v{4+si} offset:{red_off(si, i5)}", tag=('p', si))
    for si in range(1, 4):
        a.wait(lg=[('p', si)])
        for i5 in range(5):
            for h in range(2):
                c = ACC + (i5 * 4) * 4 + 2 * h
                a(f"v_pk_add_f32 {pr(c)}, {pr(c)}, {pr(c+4*si)}")
    for i5 in range(5):
        for h in range(2):
            c = ACC + (i5 * 4) * 4 + 2 * h
            a(f"v_cvt_pk_bf16_f32 v{TP+2*i5+h}, v{c}, v{c+1}")
    if EXACT:
        YF = XN
        unpack(a, YF, TP, 10)
        for i in range(10): a(f"v_pk_add_f32 {pr(YF+2*i)}, {pr(YF+2*i)}, {pr(B2V)} op_sel_hi:[1,0]")
        round_bf16(a, YF, 10, TP)
        for i in range(10): a(f"v_pk_add_f32 {pr(YF+2*i)}, {pr(YF+2*i)}, {pr(ZF+2*i)}")
        pack(a, TP, YF, 10)
    for i5 in range(5):
        a(f"buffer_store_dwordx2 {pr(TP+2*i5)}, v{VH+1}, {OUTS}, s61 offen offset:{32*i5}")
    a.flush_stamps(0, 14, vt=250, ws=P_WS)
    a("s_endpgm")

def gen_aux(a):
    a("s_setprio 3")
    a("s_sub_u32 s64, s40, 4")
    a("s_and_b32 s66, s2, 7")
    a("s_lshl_b32 s66, s66, 2")
    a("s_lshr_b32 s67, s2, 3")
    a("s_and_b32 s56, s67, 3")
    a("s_add_u32 s66, s66, s56")
    a("s_lshr_b32 s67, s67, 2")
    a("s_mul_i32 s68, s66, 81920")
    a("s_mul_i32 s56, s67, 160")
    a("s_add_u32 s68, s68, s56")
    a("s_lshl_b32 s56, s64, 6")
    a("v_add_u32 v56, s56, v2")
    a("s_lshl_b32 s57, s64, 10")
    a("s_sub_u32 s58, s68, 3840")
    a("s_movk_i32 s59, 1280")
    a("v_mov_b32 v63, -1")
    for i in range(3):
        if i: a("v_add_u32 v56, 256, v56")
        a("v_mul_u32_u24 v57, 729, v56")
        a("v_lshrrev_b32 v57, 16, v57")
        a("v_mul_u32_u24 v58, 90, v57")
        a("v_sub_u32 v58, v56, v58")
        a("v_mul_u32_u24 v59, 205, v58")
        a("v_lshrrev_b32 v59, 11, v59")
        a("v_mul_u32_u24 v60, 10, v59")
        a("v_sub_u32 v60, v58, v60")
        a("v_lshl_add_u32 v61, v59, 3, v57")
        a("v_lshlrev_b32 v60, 4, v60")
        a("v_mad_u32_u24 v60, v61, s59, v60")
        a("v_add_u32 v60, s58, v60")
        a("v_cmp_gt_u32 vcc, 67, v61")
        a("v_cndmask_b32 v60, v63, v60, vcc")
        a("v_cmp_gt_u32 vcc, 8, v57")
        a(f"v_cndmask_b32 v{40+i}, v63, v60, vcc")
    a("v_add_u32 v56, s56, v2")
    for i in range(3):
        if i: a("v_add_u32 v56, 256, v56")
        a("v_mul_u32_u24 v57, 820, v56")
        a("v_lshrrev_b32 v57, 16, v57")
        a("v_mul_u32_u24 v58, 80, v57")
        a("v_sub_u32 v58, v56, v58")
        a("v_mul_u32_u24 v59, 205, v58")
        a("v_lshrrev_b32 v59, 11, v59")
        a("v_mul_u32_u24 v60, 10, v59")
        a("v_sub_u32 v60, v58, v60")
        a("v_lshl_add_u32 v61, v59, 3, v57")
        a("v_lshlrev_b32 v60, 4, v60")
        a(f"v_mad_u32_u24 v{43+i}, v61, s59, v60")
    a("s_lshl_b32 s67, s67, 2")
    a("s_add_u32 s67, s67, s64")
    a("v_mul_u32_u24 v56, 52, v2")
    a("v_lshrrev_b32 v56, 8, v56")
    a("v_mul_u32_u24 v57, 5, v56")
    a("v_sub_u32 v57, v2, v57")
    a("v_lshlrev_b32 v61, 5, v57")
    a("s_mul_i32 s69, s67, 160")
    KR, VR, SK = 64, 86, 102
    a("s_movk_i32 s56, 160")
    a("v_mul_u32_u24 v58, s56, v56")
    a("v_lshl_add_u32 v58, v57, 3, v58")
    a("s_mul_i32 s56, s64, 40")
    a(f"s_add_u32 s56, s56, {L_KS}")
    a("v_add_u32 v58, s56, v58")
    a("s_lshl_b32 s41, s64, 8")
    a("s_sub_u32 s42, 255, s2")
    a("s_add_u32 s41, s41, s42")
    a(f"s_mul_i32 s42, s64, {HCOPY}")
    a(f"s_add_u32 s42, s42, {L_H}")
    a(f"s_mul_i32 s43, s64, {KB_CH}")
    a(f"s_add_u32 s43, s43, {L_K}")
    a("v_lshlrev_b32 v3, 4, v2")
    a("s_lshl_b32 s62, s41, 12")
    a("v_mov_b32 v4, 0")
    common_entry(a)
    KS = srd(a, 44, P_K, XBYTES)
    VS = srd(a, 48, P_V, XBYTES)
    SKS = srd(a, 52, P_SK, D * 8)
    SM = srd(a, 36, P_SSMK, D * S * 2)
    a("s_barrier")
    a.stamp(1)
    for i in range(3):
        a(f"s_add_u32 m0, s57, {L_KS + i*4096}")
        a(f"buffer_load_dwordx4 v{40+i}, {KS}, 0 offen {NT} lds")
    for i in range(2):
        a(f"s_add_u32 m0, s57, {L_VS + i*4096}")
        a(f"buffer_load_dwordx4 v{43+i}, {VS}, s68 offen {NT} lds")
    Ls = lbl("NOV")
    a("s_cmp_ge_u32 s64, 2")
    a(f"s_cbranch_scc1 {Ls}")
    a(f"s_add_u32 m0, s57, {L_VS + 2*4096}")
    a(f"buffer_load_dwordx4 v45, {VS}, s68 offen {NT} lds")
    a.label(Ls)
    tag_ready(a)
    lds_arrive(a, C_LNW, 5, 6)
    a(f"buffer_load_dwordx4 {q4(SK)}, v61, {SKS}, s69 offen")
    a(f"buffer_load_dwordx4 {q4(SK+4)}, v61, {SKS}, s69 offen offset:16")
    HL, HN = 192, 208
    for t in range(4):
        a(f"buffer_load_dwordx4 {q4(HL+4*t)}, v3, {SM}, s62 offen offset:{t*1024} {NT}")
    for t in range(4):
        a(f"buffer_load_dwordx2 {pr(HN+2*t)}, v3, {SM}, s62 offen offset:{t*1024+16}")
    SD = srd(a, 44, P_SSMD, D * 2)
    a("s_lshl_b32 s56, s41, 1")
    a(f"buffer_load_ushort v8, v4, {SD}, s56 offen")
    a.stamp(2)
    srd(a, 32, P_WS, WS_TOTAL)
    a("s_waitcnt vmcnt(9)")
    a.vm = []
    a.stamp(3)
    lds_arrive(a, C_KVL, 5, 6)
    a("v_lshrrev_b32 v12, 3, v2")
    a("v_and_b32 v13, 7, v2")
    a("v_lshlrev_b32 v9, 14, v12")
    a("v_lshl_add_u32 v9, v13, 4, v9")
    a(f"s_mul_i32 s57, s67, {20*4096}")
    a("s_lshl_b32 s56, s66, 7")
    a("s_add_u32 s57, s57, s56")
    a(f"s_add_u32 s57, s57, {KVR_OFF}")
    a("s_mul_i32 s58, s64, 768")
    a(f"s_add_u32 s58, s58, {L_KVT}")
    a("s_movk_i32 s56, 144")
    a("v_mul_u32_u24 v10, s56, v57")
    a("v_lshl_add_u32 v10, v56, 4, v10")
    a("v_add_u32 v10, s58, v10")
    a("v_mul_u32_u24 v11, s56, v12")
    a("v_lshl_add_u32 v11, v13, 4, v11")
    a("v_add_u32 v11, s58, v11")
    lds_wait(a, C_KVL, 5, 6, 4)
    set_exec(a, 40)
    for t in range(11):
        a(f"ds_read_b64 {pr(KR+2*t)}, v58 offset:{(t % 8)*1440 + (t // 8)*160}")
    for t in range(8):
        a(f"ds_read_b64 {pr(VR+2*t)}, v58 offset:{12*1024 + t*1280}")
    a("s_waitcnt lgkmcnt(0)")
    W, KF, VF, O = 112, 120, 142, 160
    for p in range(2):
        for e in range(2):
            c = 2 * p + e
            a(f"v_lshlrev_b32 v{W+0+e}, 16, v{SK+2*c}")
            a(f"v_and_b32 v{W+2+e}, 0xffff0000, v{SK+2*c}")
            a(f"v_lshlrev_b32 v{W+4+e}, 16, v{SK+2*c+1}")
            a(f"v_and_b32 v{W+6+e}, 0xffff0000, v{SK+2*c+1}")
        for t in range(11):
            a(f"v_lshlrev_b32 v{KF+2*t}, 16, v{KR+2*t+p}")
            a(f"v_and_b32 v{KF+2*t+1}, 0xffff0000, v{KR+2*t+p}")
        for t in range(8):
            a(f"v_lshlrev_b32 v{VF+2*t}, 16, v{VR+2*t+p}")
            a(f"v_and_b32 v{VF+2*t+1}, 0xffff0000, v{VR+2*t+p}")
        for r in range(8):
            a(f"v_pk_mul_f32 {pr(KF+2*r)}, {pr(KF+2*r)}, {pr(W+6)}")
            a(f"v_pk_fma_f32 {pr(KF+2*r)}, {pr(KF+2*(r+1))}, {pr(W+4)}, {pr(KF+2*r)}")
            a(f"v_pk_fma_f32 {pr(KF+2*r)}, {pr(KF+2*(r+2))}, {pr(W+2)}, {pr(KF+2*r)}")
            a(f"v_pk_fma_f32 {pr(KF+2*r)}, {pr(KF+2*(r+3))}, {pr(W+0)}, {pr(KF+2*r)}")
        for r in range(8):
            a(f"v_pk_mul_f32 {pr(VF+2*r)}, {pr(VF+2*r)}, {pr(KF+2*r)}")
        for e in range(2):
            Ob = O + 8 * p + 4 * e
            for q in range(4):
                a(f"v_cvt_pk_bf16_f32 v{Ob+q}, v{VF+2*(7-2*q)+e}, v{VF+2*(6-2*q)+e}")
            a(f"ds_write_b128 v10, {q4(Ob)}")
            a(f"ds_read_b128 {q4(Ob)}, v11")
    a("s_waitcnt lgkmcnt(0)")
    for c in range(4):
        a(f"buffer_store_dwordx4 {q4(O+4*c)}, v9, {WS}, s57 offen {SC}", tag='ks')
        a("s_add_u32 s57, s57, 4096")
    a("s_mov_b64 exec, -1")
    a.stamp(4)
    lds_arrive(a, C_KVD, 5, 6)
    a("s_lshl_b32 s59, s67, 5")
    a("s_add_u32 s59, s59, s66")
    a(f"s_mul_i32 s59, s59, {FS}")
    a(f"s_add_u32 s59, s59, {FK_OFF}")
    a(f"s_cmp_ge_u32 s41, {D}")
    a("s_cbranch_scc1 KF_NOCONV")
    a.wait(vm='ks')
    set_flag(a, 59, 12)
    lds_arrive(a, C_FLG, 5, 6)
    a.stamp(5)
    lds_wait(a, C_KVD, 5, 6, 4)
    lds_wait(a, C_LNR, 5, 6, 4)
    a("v_add_u32 v9, s42, v3")
    TA = 216
    for t in range(4):
        d = [HL + 4 * t + i for i in range(4)] + [HN + 2 * t, HN + 2 * t + 1]
        a(f"ds_write_b128 v9, {q4(d[0])} offset:{32+t*1024}")
        for i in range(4): a(f"v_alignbit_b32 v{TA+i}, v{d[i+1]}, v{d[i]}, 16")
        for i in range(4): a(f"v_mov_b32 v{TA+4+i}, v{d[i+1]}")
        for i in range(4): a(f"v_alignbit_b32 v{TA+8+i}, v{d[i+2]}, v{d[i+1]}, 16")
        for j in range(1, 4):
            a(f"ds_write_b128 v9, {q4(TA+4*(j-1))} offset:{j*HJ+32+t*1024}")
        TA = 216 + 12 * ((t + 1) & 1)
    a(f"v_readfirstlane_b32 s60, v{HL}")
    a(f"v_readfirstlane_b32 s61, v{HL+1}")
    a("v_mov_b32 v6, s60")
    a("v_mov_b32 v7, s61")
    a("v_lshlrev_b32 v9, 3, v2")
    a("v_add_u32 v9, s43, v9")
    a("v_mov_b32 v5, 0")
    a("ds_write_b64 v9, v[4:5]")
    a("v_and_b32 v11, 15, v2")
    a("v_lshrrev_b32 v12, 4, v2")
    a("v_add_u32 v13, 1, v11")
    a("v_and_b32 v14, 3, v13")
    a(f"s_movk_i32 s56, {HJ}")
    a("v_mul_u32_u24 v10, s56, v14")
    a("v_and_b32 v14, 0x1c, v13")
    a("v_lshl_add_u32 v10, v14, 1, v10")
    a("v_lshl_add_u32 v10, v12, 4, v10")
    a("v_add_u32 v10, s42, v10")
    a("v_lshlrev_b32 v15, 1, v11")
    a("v_sub_u32 v15, v15, v12")
    a("v_lshlrev_b32 v15, 4, v15")
    a(f"s_add_u32 s57, s43, {33*16-448}")
    a("v_add_u32 v15, s57, v15")
    a("v_lshrrev_b32 v16, 2, v2")
    a("v_and_b32 v17, 3, v2")
    a("v_mul_u32_u24 v18, s56, v16")
    a("v_lshl_add_u32 v18, v17, 3, v18")
    a("v_add_u32 v18, s42, v18")
    a("v_lshlrev_b32 v19, 4, v16")
    a("v_sub_u32 v19, 64, v19")
    a("v_lshlrev_b32 v20, 3, v12")
    a("v_add_u32 v20, v20, v11")
    a("v_sub_u32 v20, 15, v20")
    a("v_and_b32 v21, 1, v20")
    a("v_lshlrev_b32 v21, 4, v21")
    a("v_lshrrev_b32 v20, 1, v20")
    a("v_lshlrev_b32 v22, 5, v11")
    a("v_lshl_add_u32 v22, v12, 3, v22")
    a("s_mul_i32 s59, s41, 3277")
    a("s_lshr_b32 s59, s59, 16")
    a(f"s_mul_i32 s59, s59, {32*FS}")
    a(f"s_add_u32 s59, s59, {FK_OFF}")
    if FKGATE: lds_wait(a, C_FT, 28, 29, 4, sleep=2)
    poll(a, 3, 59, 28, 32, sleep=PSLEEP)
    a.stamp(6)
    a("s_add_u32 m0, s43, 512")
    a(f"s_add_u32 s57, s62, {KVR_OFF}")
    for t in range(4):
        a(f"buffer_load_dwordx4 v3, {WS}, s57 offen offset:{t*1024} {SC} lds")
    a("v_lshlrev_b64 v[6:7], v19, v[6:7]")
    a("s_mov_b32 s60, 0x8880")
    a("s_mov_b32 s61, 0")
    a("v_cndmask_b32 v6, 0, v6, s[60:61]")
    a("v_cndmask_b32 v7, 0, v7, s[60:61]")
    a("s_mov_b64 exec, 0xffff")
    a("ds_write_b64 v18, v[6:7]")
    a("s_mov_b64 exec, -1")
    a("v_lshlrev_b32 v8, v21, v8")
    DF = 24
    for j in range(4):
        a(f"v_cmp_eq_u32 vcc, {j}, v20")
        a(f"v_cndmask_b32 v{DF+j}, 0, v8, vcc")
    CACC, AB, BB = 32, 64, 128
    def rd(r, idx):
        buf = (r & 1) * 32
        if idx < 8:
            q = 8 * idx - r
            a(f"ds_read_b128 {q4(BB+buf+idx*4)}, v15 offset:{64*(q+7)}")
        else:
            kap = idx - 8
            k = 8 * kap + r
            a(f"ds_read_b64 {pr(AB+buf+kap*4)}, v10 offset:{64*k}")
            a(f"ds_read_b64 {pr(AB+buf+kap*4+2)}, v10 offset:{64*k+8}")
    for idx in range(8, 16): rd(0, idx)
    a("s_setprio 0")
    a("s_waitcnt vmcnt(0)")
    a.stamp(7)
    for idx in range(8): rd(0, idx)
    for r in range(8):
        buf = (r & 1) * 32
        a("s_waitcnt lgkmcnt(0)")
        if r == CVPAUSE:
            lds_wait(a, C_RED, 5, 6, 4, sleep=4)
        seq = []
        if r == 0:
            for n in range(8): seq.append(('d', n))
        for kap in range(8):
            for n in range(kap, 8): seq.append((kap, n))
        nxt = list(range(16)) if r < 7 else []
        for i, (kap, n) in enumerate(seq):
            c = q4(CACC + n * 4)
            if kap == 'd':
                a(f"v_mfma_f32_16x16x32_bf16 {c}, {q4(DF)}, {q4(BB+buf+n*4)}, 0")
            else:
                a(f"v_mfma_f32_16x16x32_bf16 {c}, {q4(AB+buf+kap*4)}, {q4(BB+buf+(n-kap)*4)}, {c}")
            if nxt and i % 2 == 0:
                rd(r + 1, nxt.pop(0))
        if r == 3: a.stamp(8)
    a.stamp(9)
    a("s_setprio 3")
    a(f"s_add_u32 s57, s62, {Z_OFF}")
    for n in range(8):
        a(f"v_cvt_pk_bf16_f32 v{AB+2*n}, v{CACC+4*n}, v{CACC+4*n+1}")
        a(f"v_cvt_pk_bf16_f32 v{AB+2*n+1}, v{CACC+4*n+2}, v{CACC+4*n+3}")
        a(f"buffer_store_dwordx2 {pr(AB+2*n)}, v22, {WS}, s57 offen offset:{512*n} {SC}")
    a(f"s_mul_i32 s59, s41, {FS}")
    a(f"s_add_u32 s59, s59, {FZ_OFF}")
    a("s_waitcnt vmcnt(0)")
    set_flag(a, 59, 12)
    a.stamp(10)
    a.flush_stamps(0, 11, vt=250, ws=P_WS)
    a("s_endpgm")
    a.label("KF_NOCONV")
    a("s_waitcnt vmcnt(0)")
    set_flag(a, 59, 12)
    lds_arrive(a, C_FLG, 5, 6)
    a.stamp(5)
    if PFSTEPS < 12:
        a("s_cmp_lg_u32 s64, 3")
        a("s_cbranch_scc1 KF_AUXEND")
        nrow = (12 - PFSTEPS) * 16
        a("s_lshr_b32 s56, s2, 3")
        a("s_lshr_b32 s57, s56, 2")
        a("s_and_b32 s56, s56, 3")
        a("s_and_b32 s58, s2, 7")
        a("s_lshl_b32 s58, s58, 2")
        a("s_add_u32 s56, s56, s58")
        a("s_lshr_b32 s58, s57, 1")
        a("s_mul_i32 s58, s58, 384")
        a("s_and_b32 s57, s57, 1")
        a(f"s_mul_i32 s57, s57, {nrow}")
        a("s_add_u32 s57, s57, s58")
        a(f"s_add_u32 s57, s57, {32*PFSTEPS}")
        a("s_lshl_b32 s57, s57, 12")
        a("s_lshl_b32 s56, s56, 7")
        a("s_add_u32 s57, s57, s56")
        a("v_lshrrev_b32 v59, 3, v2")
        a("v_and_b32 v60, 7, v2")
        a("v_lshlrev_b32 v60, 4, v60")
        a("v_lshl_add_u32 v62, v59, 12, v60")
        W2 = srd(a, 36, P_W2, S * F * 2)
        lds_wait(a, C_HIS, 5, 6, 4, sleep=4)
        for k in range(nrow // 8):
            a(f"buffer_load_dwordx4 {q4(64+4*k)}, v62, {W2}, s57 offen {NTW}")
            a(f"s_add_u32 s57, s57, {8*4096}")
    a.label("KF_AUXEND")
    a.flush_stamps(0, 6, vt=250, ws=P_WS)

NAME = "parallel_sum__ssm_conv_h3__mixer_token_mlp__prompt"
def build(path, as_list=True):
    ref = open(f"cdna_kernels/{NAME}.s.ref").read().split("\n")
    hdr = [l for l in ref if l.startswith(";") and "@launch" not in l and "Override launch" not in l and "grid=ceil" not in l]
    kn = NAME + "_kernel"
    t, d = gen(kn)
    s = "\n".join(hdr) + "\n"
    if as_list: s += f"; @launch kernel={kn} grid=(256,1,1) block=({THREADS},1,1) lds={LDS_TOTAL}\n"
    else: s += f"; @launch grid=(256,1,1) block=({THREADS},1,1) lds={LDS_TOTAL}\n"
    s += '.amdgcn_target "amdgcn-amd-amdhsa--gfx950"\n' + t + d
    open(path, "w").write(s)
if __name__ == "__main__":
    import sys
    build(sys.argv[1], as_list=(len(sys.argv) <= 2))
```

```python
from asmlib import *
import os, struct, math
E = lambda k, d: type(d)(os.environ.get(k, d))

S, D, F = 2048, 640, 1536
XBYTES = S * D * 2
EP_OFF = 0
FA_OFF = 0x1000
FK_OFF = 0xB000
FG_OFF = 0xF000
FZ_OFF = 0x13000
ST_OFF = 0x16000
HF_OFF = 0x20000
KVR_OFF = 0x2A0000
Z_OFF = 0x520000
GF_OFF = 0x7A0000
WS_TOTAL = 0x980000
FS = 16

NS = 6
RING = NS * 4096
HCOPY = 4160
HB_CH = 4 * HCOPY
KB_CH = 512 + 4096
L_H = 4 * RING
L_K = L_H + 3 * HB_CH
L_MISC = L_K + 3 * KB_CH
L_CNT = L_MISC
L_ST = L_MISC + 64
LDS_TOTAL = L_MISC + 128
HJ = 3 * HCOPY
L_KS = L_H + HJ
L_VS = L_KS + 12 * 1024
L_KVT = L_VS + 10 * 1024
assert L_KVT + 4 * 768 <= L_K
C_RED, C_RD, C_KVL, C_KVD, C_LNW, C_LNR, C_HIS, C_FLG, C_FT, C_PRO = [L_CNT + 4 * i for i in range(10)]
assert LDS_TOTAL <= 163840
THREADS = 512
NT = os.environ.get('NT', '')
CODEPF = E('CODEPF', 1)
FTP = E('FTP', 0)
FAL = E('FAL', 2)
FKT = E('FKT', 1)
XNOCONV = E('XNOCONV', 0)
XNOW2 = E('XNOW2', 0)
XNOMFMA = E('XNOMFMA', 0)
FTA = E('FTA', 1)
SSMLATE = E('SSMLATE', 0)
P1 = E('P1', 0)
P2 = E('P2', 0)
STAG = E('STAG', 8)
STAG0 = E('STAG0', 1)
PROG = E('PROG', 1)
OUTMOD = os.environ.get('OUTMOD', '')
NTW = os.environ.get('NTW', NT)
SC = "sc1"
SCL = os.environ.get("SCL", "sc1")
NTB = os.environ.get("NTB", "")
FT0 = E("FT0", 0)
PRE1 = E("PRE1", 12)
LEADD = E("LEADD", 12)
LEADR = E("LEADR", 6)
PFSTEPS = E("PFSTEPS", 4)
FTGATE = E("FTGATE", 1)
FKGATE = E("FKGATE", 1)
CVPAUSE = E("CVPAUSE", 8)
SPIN_MAX = 1 << 16
FT1 = E('FT1', 2)
NR1, NH = 6, 4
NR2, NS2, NG = 5, 5, 3
ROT = E('ROT', 0)
PSLEEP = E('PSLEEP', 6)
FTWAIT = E('FTWAIT', 1)
PFMOD = os.environ.get('PFMOD', '')
W2EARLY = E('W2EARLY', 0)
EXACT = E('EXACT', 1)
W2SIG = E('W2SIG', 0)

def f2u(x): return struct.unpack('<I', struct.pack('<f', x))[0]
GELU_K0 = -2.0 * math.sqrt(2.0 / math.pi) * math.log2(math.e)
GELU_K1 = GELU_K0 * 0.044715
def pr(r): return f"v[{r}:{r+1}]"
def q4(r): return f"v[{r}:{r+3}]"

P_Q, P_K, P_V, P_SK, P_SSMK, P_SSMD, P_BX, P_W1, P_B1, P_W2, P_B2, P_OUT, P_WS = 4, 6, 8, 10, 12, 14, 16, 18, 20, 22, 24, 26, 28
TAG = 30
WS = "s[32:35]"

def srd(a, d, base, nbytes):
    a(f"s_mov_b32 s{d}, s{base}")
    a(f"s_and_b32 s{d+1}, s{base+1}, 0xffff")
    a(f"s_mov_b32 s{d+2}, {nbytes}")
    a(f"s_mov_b32 s{d+3}, 0x00020000")
    return f"s[{d}:{d+3}]"

def reduce2(a, x, y, tx, ty):
    for m in ("quad_perm:[1,0,3,2]", "quad_perm:[2,3,0,1]", "row_half_mirror", "row_mirror"):
        a(f"v_add_f32_dpp v{x}, v{x}, v{x} {m} row_mask:0xf bank_mask:0xf")
        a(f"v_add_f32_dpp v{y}, v{y}, v{y} {m} row_mask:0xf bank_mask:0xf")
    for p in ("v_permlane16_swap_b32", "v_permlane32_swap_b32"):
        a(f"v_mov_b32 v{tx}, v{x}")
        a(f"v_mov_b32 v{ty}, v{y}")
        a(f"{p} v{x}, v{tx}")
        a(f"{p} v{y}, v{ty}")
        a(f"v_add_f32 v{x}, v{x}, v{tx}")
        a(f"v_add_f32 v{y}, v{y}, v{ty}")

def unpack(a, dst, src, n):
    for i in range(n):
        a(f"v_lshlrev_b32 v{dst+2*i}, 16, v{src+i}")
        a(f"v_and_b32 v{dst+2*i+1}, 0xffff0000, v{src+i}")

def pack(a, dst, src, n):
    for i in range(n):
        a(f"v_cvt_pk_bf16_f32 v{dst+i}, v{src+2*i}, v{src+2*i+1}")

def round_bf16(a, reg, n2, tmp):
    pack(a, tmp, reg, n2); unpack(a, reg, tmp, n2)

_uid = [0]
def lbl(p):
    _uid[0] += 1
    return f"{p}_{_uid[0]}"

def set_exec(a, n):
    m = (1 << n) - 1
    a(f"s_mov_b32 exec_lo, {hex(m & 0xffffffff)}")
    a(f"s_mov_b32 exec_hi, {hex(m >> 32)}")

def poll(a, vaddr, soff, vt, nlanes=64, sleep=0):
    L = lbl("POLL"); Lx = lbl("POLLX")
    a("s_mov_b32 s70, 0")
    if nlanes < 64: set_exec(a, nlanes)
    a.label(L)
    a(f"buffer_load_dwordx2 {pr(vt)}, v{vaddr}, {WS}, s{soff} offen {SC}")
    a("s_add_u32 s70, s70, 1")
    a("s_waitcnt vmcnt(0)")
    a(f"v_cmp_ne_u64 vcc, s[{TAG}:{TAG+1}], {pr(vt)}")
    a(f"s_cmp_gt_u32 s70, {SPIN_MAX}")
    a(f"s_cbranch_scc1 {Lx}")
    a(f"s_cbranch_vccz {Lx}")
    if sleep: a(f"s_sleep {sleep}")
    a(f"s_branch {L}")
    a.label(Lx)
    if nlanes < 64: a("s_mov_b64 exec, -1")

def set_flag(a, soff, vt):
    a(f"v_mov_b32 v{vt}, s{TAG}")
    a(f"v_mov_b32 v{vt+1}, s{TAG+1}")
    a(f"v_mov_b32 v{vt+2}, 0")
    a("s_mov_b64 exec, 1")
    a(f"buffer_store_dwordx2 {pr(vt)}, v{vt+2}, {WS}, s{soff} offen {SC}")
    a("s_mov_b64 exec, -1")

def lds_sync(a, cnt_off, va, vb, target):
    L = lbl("LSYNC"); Lx = lbl("LSYNCX")
    a(f"v_mov_b32 v{va}, {cnt_off}")
    a(f"v_mov_b32 v{vb}, 1")
    a("s_waitcnt lgkmcnt(0)")
    a("s_mov_b64 exec, 1")
    a(f"ds_add_u32 v{va}, v{vb}")
    a("s_mov_b64 exec, -1")
    a("s_mov_b32 s70, 0")
    a.label(L)
    a(f"ds_read_b32 v{vb}, v{va}")
    a("s_add_u32 s70, s70, 1")
    a("s_waitcnt lgkmcnt(0)")
    a(f"v_readfirstlane_b32 s71, v{vb}")
    a(f"s_cmp_gt_u32 s70, {SPIN_MAX*4}")
    a(f"s_cbranch_scc1 {Lx}")
    a(f"s_cmp_lt_u32 s71, {target}")
    a(f"s_cbranch_scc1 {L}")
    a.label(Lx)

class Coll:
    def __init__(self): self.l = []
    def __call__(self, t, tag=None): self.l.append(t)

def reduce2c(a, x, y, tx, ty): reduce2(a, x, y, tx, ty)

def ln_row(RAW, X, T, Q, sh):
    a = Coll()
    S1, S1h, S2, S2h, M, R = Q, Q + 1, Q + 2, Q + 3, Q + 4, Q + 5
    unpack(a, X, RAW, 5)
    a(f"v_readfirstlane_b32 s{sh}, v{X}")
    for i in range(10): a(f"v_subrev_f32 v{T+i}, s{sh}, v{X+i}")
    def sums(src):
        a(f"v_pk_add_f32 {pr(S1)}, {pr(src)}, {pr(src+2)}")
        a(f"v_pk_mul_f32 {pr(S2)}, {pr(src)}, {pr(src)}")
        for i in range(1, 5):
            if i >= 2: a(f"v_pk_add_f32 {pr(S1)}, {pr(S1)}, {pr(src+2*i)}")
            a(f"v_pk_fma_f32 {pr(S2)}, {pr(src+2*i)}, {pr(src+2*i)}, {pr(S2)}")
        a(f"v_add_f32 v{S1}, v{S1}, v{S1h}")
        a(f"v_add_f32 v{S2}, v{S2}, v{S2h}")
        reduce2(a, S1, S2, S1h, S2h)
    def stats(shift):
        a(f"v_mul_f32 v{S1}, s60, v{S1}")
        a(f"v_mul_f32 v{S2}, s60, v{S2}")
        a(f"v_fma_f32 v{S2}, -v{S1}, v{S1}, v{S2}")
        a(f"v_max_f32 v{S2}, 0, v{S2}")
        if shift: a(f"v_add_f32 v{S1}, s{sh}, v{S1}")
        a(f"v_cvt_pk_bf16_f32 v{S1h}, v{S1}, v{S2}")
        a(f"v_lshlrev_b32 v{M}, 16, v{S1h}")
        a(f"v_and_b32 v{S2}, 0xffff0000, v{S1h}")
        a(f"v_add_f32 v{S2}, 0x3727c5ac, v{S2}")
        a(f"v_cvt_pk_bf16_f32 v{S2}, v{S2}, v{S2}")
        a(f"v_lshlrev_b32 v{S2}, 16, v{S2}")
        a(f"v_sqrt_f32 v{S2}, v{S2}")
        a(f"v_cvt_pk_bf16_f32 v{S2}, v{S2}, v{S2}")
        a(f"v_lshlrev_b32 v{S2}, 16, v{S2}")
        a(f"v_rcp_f32 v{R}, v{S2}")
    def normalize():
        for i in range(5):
            a(f"v_pk_add_f32 {pr(T+2*i)}, {pr(X+2*i)}, {pr(M)} op_sel_hi:[1,0] neg_lo:[0,1] neg_hi:[0,1]")
        round_bf16(a, T, 5, RAW)
        for i in range(5):
            a(f"v_pk_mul_f32 {pr(T+2*i)}, {pr(T+2*i)}, {pr(M)} op_sel:[0,1] op_sel_hi:[1,1]")
        pack(a, RAW, T, 5)
    sums(T); stats(True)
    p1 = a.l; a.l = []
    normalize()
    unpack(a, X, RAW, 5)
    sums(X); stats(False)
    normalize()
    return p1, a.l

def common_entry(a):
    a("s_waitcnt lgkmcnt(0)")
    a(f"s_load_dwordx2 s[{TAG}:{TAG+1}], s[{P_WS}:{P_WS+1}], {EP_OFF}")

def tag_ready(a):
    a("s_waitcnt lgkmcnt(0)")
    a(f"s_add_u32 s{TAG}, s{TAG}, 0x9E3779B9")
    a(f"s_add_u32 s{TAG+1}, s{TAG+1}, 0x7F4A7C15")

RA, RB_ = 8, 72
def ln_addr_and_load(a):
    a("s_lshr_b32 s41, s2, 2")
    a("s_and_b32 s42, s2, 3")
    a("s_lshl_b32 s43, s41, 5")
    a("s_lshl_b32 s56, s42, 2")
    a("s_add_u32 s43, s43, s56")
    a("s_and_b32 s56, s40, 1")
    a("s_lshl_b32 s56, s56, 1")
    a("s_add_u32 s43, s43, s56")
    a("s_lshr_b32 s56, s40, 1")
    a("s_lshl_b32 s56, s56, 4")
    a("s_add_u32 s43, s43, s56")
    a("s_mul_i32 s43, s43, 1280")
    a("v_lshlrev_b32 v3, 3, v2")
    a("v_lshlrev_b32 v4, 2, v2")
    a(f"v_add_u32 v5, {L_CNT}, v4")
    a("v_mov_b32 v6, 0")
    a("s_mov_b64 exec, 0xffff")
    a("ds_write_b32 v5, v6")
    a("s_mov_b64 exec, -1")
    common_entry(a)
    X = srd(a, 36, P_Q, XBYTES)
    for r, o in ((RA, 0), (RB_, 1280)):
        a(f"buffer_load_dwordx2 {pr(r)}, v3, {X}, s43 offen offset:{o} {NT}", tag='x')
        a(f"buffer_load_dwordx2 {pr(r+2)}, v3, {X}, s43 offen offset:{o+512} {NT}", tag='x')
        a(f"buffer_load_dword v{r+4}, v4, {X}, s43 offen offset:{o+1024} {NT}", tag='x')
    a("s_barrier")
    srd(a, 32, P_WS, WS_TOTAL)

def ln_compute_publish(a, hook=None):
    a("s_mul_i32 s56, s40, 2688")
    a(f"s_add_u32 s56, s56, {L_K}")
    a("v_add_u32 v5, s56, v3")
    a("v_add_u32 v6, s56, v4")
    a("v_bfe_u32 v40, v2, 2, 2")
    a("s_movk_i32 s57, 1344")
    a("v_mul_u32_u24 v40, s57, v40")
    a("v_lshrrev_b32 v41, 4, v2")
    a("v_lshl_add_u32 v40, v41, 5, v40")
    a("v_and_b32 v42, 3, v2")
    a("v_lshl_add_u32 v40, v42, 3, v40")
    a("s_lshl_b32 s57, s40, 7")
    a(f"s_add_u32 s57, s57, {L_K}")
    a("v_add_u32 v40, s57, v40")
    a("v_and_b32 v42, 15, v2")
    a("v_lshlrev_b32 v42, 4, v42")
    a("v_lshl_add_u32 v42, v41, 10, v42")
    a("s_lshl_b32 s57, s40, 6")
    a("s_add_u32 s57, s57, s41")
    a("s_lshl_b32 s57, s57, 12")
    a("s_lshl_b32 s58, s42, 8")
    a("s_add_u32 s57, s57, s58")
    a(f"s_add_u32 s57, s57, {HF_OFF}")
    a("s_lshl_b32 s59, s40, 8")
    a("s_add_u32 s59, s59, s2")
    a(f"s_mul_i32 s59, s59, {FS}")
    a(f"s_add_u32 s59, s59, {FA_OFF}")
    a("s_mov_b32 s60, 0x3acccccd")
    a("s_lshl_b32 s61, s40, 4")
    a(f"s_add_u32 s61, s61, {L_ST}")
    a("v_mov_b32 v43, s61")
    a(f"v_lshlrev_b32 v54, {(4*256*FS).bit_length()-1}, v2")
    tag_ready(a)
    a.stamp(1)
    a.wait(vm='x')
    a.stamp(2)
    A1, A2 = ln_row(RA, 16, 44, 26, 62)
    B1, B2 = ln_row(RB_, 80, 92, 104, 63)
    for x, y in zip(A1, B1): a(x); a(y)
    a("s_mov_b64 exec, 1")
    a("ds_write_b64 v43, v[30:31]")
    a("ds_write_b64 v43, v[108:109] offset:8")
    a("s_mov_b64 exec, -1")
    for x, y in zip(A2, B2): a(x); a(y)
    for r, o in ((RA, 0), (RB_, 1344)):
        a(f"ds_write_b64 v5, {pr(r)} offset:{o}")
        a(f"ds_write_b64 v5, {pr(r+2)} offset:{o+512}")
        a(f"ds_write_b32 v6, v{r+4} offset:{o+1024}")
    lds_arrive(a, C_LNW, 44, 45)
    a.stamp(3)
    lds_wait(a, C_LNW, 44, 45, 8)
    for k in range(2):
        a(f"ds_read_b64_tr_b16 {pr(16+4*k)}, v40 offset:{512*k}", tag=('t', k))
        a(f"ds_read_b64_tr_b16 {pr(18+4*k)}, v40 offset:{4*1344+512*k}", tag=('t', k))
    a(f"s_add_u32 s58, s57, {4*64*4096}")
    a.wait(lg=[('t', 0)])
    a(f"buffer_store_dwordx4 v[16:19], v42, {WS}, s57 offen {SC}")
    L1 = lbl("LN1")
    a("s_mov_b32 s56, 3")
    a("s_cmp_ge_u32 s40, 2")
    a(f"s_cbranch_scc1 {L1}")
    a("ds_read_b64_tr_b16 v[24:25], v40 offset:1024")
    a(f"ds_read_b64_tr_b16 v[26:27], v40 offset:{4*1344+1024}")
    a(f"v_add_u32 v44, {L_ST}, v3")
    a("ds_read_b64 v[28:29], v44")
    a(f"s_add_u32 s57, s57, {8*64*4096}")
    a("s_lshl_b32 s61, s2, 6")
    a(f"s_add_u32 s61, s61, {ST_OFF}")
    a("s_mov_b32 s56, 7")
    a("s_waitcnt lgkmcnt(0)")
    a(f"buffer_store_dwordx4 v[24:27], v42, {WS}, s57 offen {SC}")
    a("s_mov_b64 exec, 0xff")
    a(f"buffer_store_dwordx2 v[28:29], v3, {WS}, s61 offen {SC}")
    a("s_mov_b64 exec, -1")
    a.label(L1)
    a("s_waitcnt lgkmcnt(0)")
    a(f"buffer_store_dwordx4 v[20:23], v42, {WS}, s58 offen {SC}", tag='hs')
    lds_arrive(a, C_LNR, 44, 45)
    a(f"v_mov_b32 v44, s{TAG}")
    a(f"v_mov_b32 v45, s{TAG+1}")
    a("s_mov_b32 s61, s56")
    if hook: hook()
    a.wait(vm='hs')
    a("s_mov_b32 exec_lo, s61")
    a("s_mov_b32 exec_hi, 0")
    a(f"buffer_store_dwordx2 v[44:45], v54, {WS}, s59 offen {SC}")
    a("s_mov_b64 exec, -1")
    a.stamp(4)

def gen(name):
    a = Asm()
    a.raw(kernel_header(name))
    a("s_cmp_ge_u32 s2, 256")
    a("s_cbranch_scc1 KF_DONE")
    a("s_load_dwordx16 s[4:19], s[0:1], 0")
    a("s_load_dwordx8 s[20:27], s[0:1], 64")
    a("s_load_dwordx2 s[28:29], s[0:1], 104")
    if CODEPF:
        a("s_getpc_b64 s[44:45]")
        a("s_and_b32 s44, s44, 0xffffff00")
        a("s_and_b32 s45, s45, 0xffff")
        a(f"s_mov_b32 s46, CODE_END-{name}")
        a("s_mov_b32 s47, 0x00020000")
        a("s_lshr_b32 s48, s2, 3")
        a("s_lshl_b32 s48, s48, 10")
        a("v_lshrrev_b32 v1, 6, v0")
        a("v_and_b32 v2, 7, v0")
        a("v_lshlrev_b32 v2, 4, v2")
        a("v_lshl_add_u32 v1, v1, 7, v2")
        a("buffer_load_dwordx4 v[252:255], v1, s[44:47], s48 offen")
    a.stamp(0)
    a("v_lshrrev_b32 v1, 6, v0")
    a("v_and_b32 v2, 63, v0")
    a("v_readfirstlane_b32 s40, v1")
    a("s_cmp_ge_u32 s40, 4")
    a("s_cbranch_scc1 KF_AUX")
    gen_gemm(a)
    a.label("KF_AUX")
    a.reset_counts()
    gen_aux(a)
    a.label("KF_DONE")
    a("s_endpgm")
    a.raw("CODE_END:")
    return a.render(), kernel_desc(name, 256, 72)

def lds_arrive(a, cnt_off, va, vb):
    a(f"v_mov_b32 v{va}, {cnt_off}")
    a(f"v_mov_b32 v{vb}, 1")
    a("s_waitcnt lgkmcnt(0)")
    a("s_mov_b64 exec, 1")
    a(f"ds_add_u32 v{va}, v{vb}")
    a("s_mov_b64 exec, -1")

def lds_wait(a, cnt_off, va, vb, target, sleep=0):
    L = lbl("LW"); Lx = lbl("LWX")
    a(f"v_mov_b32 v{va}, {cnt_off}")
    a("s_mov_b32 s70, 0")
    a.label(L)
    a(f"ds_read_b32 v{vb}, v{va}")
    a("s_add_u32 s70, s70, 1")
    a("s_waitcnt lgkmcnt(0)")
    a(f"v_readfirstlane_b32 s71, v{vb}")
    a(f"s_cmp_gt_u32 s70, {SPIN_MAX*4}")
    a(f"s_cbranch_scc1 {Lx}")
    a(f"s_cmp_ge_u32 s71, {target}")
    a(f"s_cbranch_scc1 {Lx}")
    if sleep: a(f"s_sleep {sleep}")
    a(f"s_branch {L}")
    a.label(Lx)

def tile1(a):
    if not P1:
        a("s_mul_i32 s66, s65, 171")
        a("s_lshr_b32 s66, s66, 9")
        a("s_mul_i32 s67, s66, 3")
        a("s_sub_u32 s67, s65, s67")
        a("s_mul_i32 s68, s66, 1639")
        a("s_lshr_b32 s68, s68, 10")
        a("s_and_b32 s68, s68, 15")
        a("s_mul_i32 s69, s64, 3")
        a("s_add_u32 s67, s67, s69")
    else:
        a("s_mul_i32 s66, s65, 43")
        a("s_lshr_b32 s66, s66, 8")
        a("s_mul_i32 s67, s66, 6")
        a("s_sub_u32 s67, s65, s67")
        a("s_mul_i32 s68, s66, 3277")
        a("s_lshr_b32 s68, s68, 10")
        a("s_and_b32 s68, s68, 15")
        a("s_lshr_b32 s69, s64, 2")
        a("s_mul_i32 s69, s69, 5")
        a("s_add_u32 s66, s66, s69")
        a("s_and_b32 s69, s64, 3")
        a("s_mul_i32 s69, s69, 6")
        a("s_add_u32 s67, s67, s69")

def gen_gemm(a):
    a("s_setprio 2")
    VD, VT, VH, VL = 56, 60, 64, 68
    VT2 = VT
    ACC = 72
    WR = 152
    HS = [8, 24, 40, 136]
    WR2 = 176
    GS = [8, 28, 152]
    a("s_and_b32 s64, s2, 7")
    a("s_lshr_b32 s65, s2, 3")
    ln_addr_and_load(a)
    ln_compute_publish(a)
    tile1(a)
    a(f"v_lshlrev_b32 v{VL}, 4, v2")
    a("v_bfe_u32 v69, v2, 1, 2")
    a("v_lshrrev_b32 v70, 4, v2")
    a("v_xor_b32 v69, v69, v70")
    a("v_lshlrev_b32 v69, 5, v69")
    a("v_and_b32 v70, 1, v2")
    a("v_lshl_add_u32 v69, v70, 4, v69")
    a("v_lshrrev_b32 v70, 3, v2")
    a("s_movk_i32 s56, 3072")
    a(f"v_mad_u32_u24 v{VD}, v70, s56, v69")
    for t in range(1, 4):
        a(f"v_add_u32 v{VD+t}, {t*(24576-1024)}, v{VD}")
    a(f"s_mul_i32 s44, s40, {512*3072}")
    a("s_lshl_b32 s56, s67, 7")
    a("s_add_u32 s44, s44, s56")
    a(f"s_mul_i32 s45, s40, {RING}")
    a(f"s_add_u32 s46, s68, {FT1}")
    a("s_and_b32 s46, s46, 15")
    W1 = srd(a, 48, P_W1, S * F * 2)
    a("v_lshrrev_b32 v71, 2, v2")
    a("v_lshlrev_b32 v71, 7, v71")
    a("v_and_b32 v70, 3, v2")
    a("v_lshl_add_u32 v71, v70, 3, v71")
    a("v_add_u32 v71, s45, v71")
    a("v_bfe_u32 v70, v2, 3, 2")
    for phi in range(4):
        a(f"v_xor_b32 v13, {phi}, v70")
        a(f"v_lshl_add_u32 v{VT+phi}, v13, 5, v71")
    for i in range(4):
        a(f"s_add_u32 s56, s40, {i}")
        a("s_and_b32 s56, s56, 3")
        a("s_lshl_b32 s56, s56, 10")
        a(f"v_add_u32 v{VH+i}, s56, v{VL}")
    def dma1_parts(t):
        mod = NTW if t < FT1 else NTB
        def p0():
            if t >= NS: a.wait(lg=[('r', t - NS)])
            a(f"s_mul_i32 s47, s46, {32*3072}")
            a("s_add_u32 s47, s47, s44")
            a(f"s_add_u32 m0, s45, {(t % NS)*4096}")
            a("s_add_u32 s46, s46, 1")
            a("s_and_b32 s46, s46, 15")
        ps = [p0]
        for i in range(4):
            ps.append(lambda i=i: a(f"buffer_load_dwordx4 v{VD+i}, {W1}, s47 offen offset:{i*1024} {mod} lds", tag=('w', t)))
        return ps
    def dma1(t):
        for p in dma1_parts(t): p()
    a("s_cmp_ge_u32 s2, 240")
    a("s_cbranch_scc1 KF_G2")
    def trread_parts(t):
        wb = WR + (t % NR1) * 16
        ps = []
        for phi in range(4):
            def p(phi=phi):
                if phi == 0: a.wait(vm=[('w', t)])
                a(f"ds_read_b64_tr_b16 {pr(wb+phi*4)}, v{VT+phi} offset:{(t % NS)*4096}", tag=('r', t))
                a(f"ds_read_b64_tr_b16 {pr(wb+phi*4+2)}, v{VT+phi} offset:{(t % NS)*4096+2048}", tag=('r', t))
            ps.append(p)
        return ps
    NK = 16
    st = {'dma': FT1, 'rd': 0}
    def next_dma(defer=None):
        t = st['dma']; st['dma'] += 1
        if defer is None: dma1(t)
        else: defer.extend(dma1_parts(t))
    def next_rd(defer=None):
        t = st['rd']; st['rd'] += 1
        ps = trread_parts(t)
        if defer is None:
            for p in ps: p()
        else: defer.extend(ps)
    a("s_lshl_b32 s57, s66, 6")
    a("s_lshl_b32 s56, s40, 4")
    a("s_add_u32 s57, s57, s56")
    a("s_lshl_b32 s57, s57, 12")
    a(f"s_add_u32 s57, s57, {HF_OFF}")
    a("s_lshl_b32 s58, s68, 12")
    a("s_lshl_b32 s59, s66, 8")
    a("s_lshl_b32 s56, s40, 6")
    a("s_add_u32 s59, s59, s56")
    a(f"s_mul_i32 s59, s59, {FS}")
    a(f"s_add_u32 s59, s59, {FA_OFF}")
    B1 = srd(a, 52, P_B1, F * 2)
    a("v_lshrrev_b32 v3, 4, v2")
    a("v_lshlrev_b32 v3, 3, v3")
    a("s_lshl_b32 s56, s67, 7")
    BI = 248
    for phi in range(4):
        a(f"buffer_load_dwordx2 {pr(BI+2*phi)}, v3, {B1}, s56 offen offset:{phi*32}", tag='b')
    lds_wait(a, C_FT, 4, 5, 4)
    a.stamp(5)
    while st['dma'] < PRE1 - FAL:
        while st['rd'] <= st['dma'] - NS + 1 and st['rd'] < NR1: next_rd()
        next_dma()
    a(f"v_mov_b32 v6, {C_PRO}")
    a("v_mov_b32 v7, 1")
    a("s_mov_b64 exec, 1")
    a("ds_add_u32 v6, v7")
    a("s_mov_b64 exec, -1")
    a(f"buffer_load_dwordx2 v[4:5], v{VL}, {WS}, s59 offen {SC}", tag='fa')
    while st['dma'] < PRE1:
        while st['rd'] <= st['dma'] - NS + 1 and st['rd'] < NR1: next_rd()
        next_dma()
    while st['rd'] < min(LEADR, FT1): next_rd()
    a.wait(vm='fa')
    def fa_mask():
        a(f"v_cmp_ne_u64 vcc, s[{TAG}:{TAG+1}], v[4:5]")
        a("s_lshl_b32 s56, s68, 2")
        a("s_lshr_b64 s[62:63], vcc, s56")
        a("s_sub_u32 s56, 64, s56")
        a("s_lshl_b64 vcc, vcc, s56")
        a("s_or_b64 s[62:63], s[62:63], vcc")
    def fa_need(lo, hi):
        m = ((1 << (4 * hi)) - 1) & ~((1 << (4 * lo)) - 1)
        Lok = lbl("FAOK"); Lp = lbl("FAP")
        keep = list(a.vm)
        a("s_mov_b32 s70, 0")
        a.label(Lp)
        a(f"s_and_b32 s56, s62, {hex(m & 0xffffffff)}")
        a(f"s_and_b32 s71, s63, {hex(m >> 32)}")
        a("s_or_b32 s56, s56, s71")
        a(f"s_cbranch_scc0 {Lok}")
        a("s_add_u32 s70, s70, 1")
        a(f"s_cmp_gt_u32 s70, {SPIN_MAX}")
        a(f"s_cbranch_scc1 {Lok}")
        a("s_sleep 2")
        a(f"buffer_load_dwordx2 v[4:5], v{VL}, {WS}, s59 offen {SC}")
        a("s_waitcnt vmcnt(0)")
        fa_mask()
        a(f"s_branch {Lp}")
        a.label(Lok)
        a.vm = keep
    fa_mask()
    fa_need(0, 4 if PROG else 16)
    a.stamp(6)
    def hload(t, i):
        if i == 0: a("s_add_u32 s61, s57, s58")
        a(f"buffer_load_dwordx4 {q4(HS[t % NH]+i*4)}, v{VH+i}, {WS}, s61 offen {SCL}", tag=('h', t))
        if i == 3:
            a("s_add_u32 s58, s58, 4096")
            a("s_and_b32 s58, s58, 0xffff")
    for t in range(NH):
        for i in range(4): hload(t, i)
        if st['dma'] < min(NK, LEADD, st['rd'] + NS): next_dma()
    while st['rd'] < min(LEADR, st['dma']): next_rd()
    def w2_setup():
        if not P2:
            a("s_lshr_b32 s62, s65, 2")
            a("s_and_b32 s63, s65, 3")
            a("s_lshl_b32 s56, s64, 2")
            a("s_add_u32 s63, s63, s56")
        else:
            a("s_lshr_b32 s62, s65, 3")
            a("s_and_b32 s56, s64, 4")
            a("s_add_u32 s62, s62, s56")
            a("s_and_b32 s63, s65, 7")
            a("s_and_b32 s56, s64, 3")
            a("s_lshl_b32 s56, s56, 3")
            a("s_add_u32 s63, s63, s56")
        a("v_lshrrev_b32 v7, 3, v2")
        a(f"v_lshl_add_u32 v{VD}, v7, 12, v69")
        for t in range(1, 4):
            a(f"v_add_u32 v{VD+t}, {t*(32768-1024)}, v{VD}")
        a(f"s_mul_i32 s44, s40, {384*4096}")
        a("s_lshl_b32 s56, s63, 7")
        a("s_add_u32 s44, s44, s56")
        if ROT:
            a("s_and_b32 s46, s65, 3")
            a("s_mul_i32 s46, s46, 3")
            a("s_mul_i32 s56, s62, 3")
            a("s_lshr_b32 s56, s56, 1")
            a("s_add_u32 s46, s46, s56")
            a("s_cmp_ge_u32 s46, 12")
            a("s_cselect_b32 s56, 12, 0")
            a("s_sub_u32 s46, s46, s56")
        else:
            a("s_mov_b32 s46, 0")
        a("s_mov_b32 s68, s46")
        srd(a, 48, P_W2, S * F * 2)
        for si in range(4):
            a(f"s_add_u32 s56, s40, {si}")
            a("s_and_b32 s56, s56, 3")
            a("v_xor_b32 v7, s56, v70")
            a(f"v_lshl_add_u32 v{VT+si}, v7, 5, v71")
    W2 = "s[48:51]"
    SL2 = [3, 4, 5, 3, 4, 5, 3, 4, 0, 1, 5, 3]
    def trread2_parts(t):
        wb = WR2 + (t % NR2) * 16
        so = SL2[t] * 4096
        ps = []
        for si in range(4):
            def p(si=si):
                if si == 0: a.wait(vm=[('w2', t)])
                a(f"ds_read_b64_tr_b16 {pr(wb+si*4)}, v{VT2+si} offset:{so}", tag=('r2', t))
                a(f"ds_read_b64_tr_b16 {pr(wb+si*4+2)}, v{VT2+si} offset:{so+2048}", tag=('r2', t))
            ps.append(p)
        return ps
    def trread2(t):
        for p in trread2_parts(t): p()
    def dma2_parts(t, pre=None):
        def p0():
            if pre: pre()
            a(f"s_lshl_b32 s47, s46, 17")
            a("s_add_u32 s47, s47, s44")
            a(f"s_add_u32 m0, s45, {SL2[t]*4096}")
            a("s_add_u32 s46, s46, 1")
        ps = [p0]
        for i in range(4):
            ps.append(lambda i=i: a(f"buffer_load_dwordx4 v{VD+i}, {W2}, s47 offen offset:{i*1024} {NTB} lds", tag=('w2', t)))
        return ps
    def dma2(t):
        for p in dma2_parts(t): p()
    W2T0 = E('W2T0', 11)
    a(f"v_mov_b32 v3, {C_HIS}")
    a("v_mov_b32 v6, 1")
    def prog():
        a("s_mov_b64 exec, 1")
        a("ds_add_u32 v3, v6")
        a("s_mov_b64 exec, -1")
    for t in range(NK):
        wb = WR + (t % NR1) * 16
        hb = HS[t % NH]
        fill = []
        if st['dma'] < min(NK, st['rd'] + NS): next_dma(fill)
        if st['rd'] < NK and st['rd'] <= t - 1 + NR1: next_rd(fill)
        if t < NK - NH: fill.append(prog)
        if t == W2T0:
            assert st['rd'] == NK and st['dma'] == NK, st
            fill.append(lambda: (a.wait(lg=[('r', NK - 1)]), w2_setup()))
        if W2T0 < t <= W2T0 + 3: fill.extend(dma2_parts(t - W2T0 - 1))
        if PROG and t % 4 == 0 and t + NH < NK: fa_need(t + NH, t + NH + 4)
        a.wait(vm=[('h', t)], lg=[('r', t)])
        for di in range(4):
            for phi in range(4):
                c = ACC + (phi * 4 + di) * 4
                src = "0" if t == 0 else q4(c)
                if not XNOMFMA or phi == 0: a(f"v_mfma_f32_16x16x32_bf16 {q4(c)}, {q4(wb+phi*4)}, {q4(hb+di*4)}, {src}")
                if phi < 3 and fill: fill.pop(0)()
            if t + NH < NK: hload(t + NH, di)
        while fill: fill.pop(0)()
        if t == 5: a.stamp(7)
    a.stamp(8)
    a(f"v_add_u32 v4, s45, v{VL}")
    for di in range(1, 4):
        for phi in range(4):
            a(f"ds_write_b128 v4, {q4(ACC+(phi*4+di)*4)} offset:{(di-1)*4096+phi*1024}")
    for di in range(1, 4):
        a(f"s_sub_u32 s56, s40, {di}")
        a("s_and_b32 s56, s56, 3")
        a(f"s_mul_i32 s56, s56, {RING}")
        a(f"v_add_u32 v{4+di}, s56, v{VL}")
    a("s_lshl_b32 s56, s66, 2")
    a("s_add_u32 s56, s56, s40")
    a("s_mul_i32 s57, s56, 205")
    a("s_lshr_b32 s57, s57, 10")
    a("s_mul_i32 s58, s57, 5")
    a("s_sub_u32 s58, s56, s58")
    a("s_mul_i32 s57, s57, 48")
    a("s_lshl_b32 s59, s67, 1")
    a("s_add_u32 s57, s57, s59")
    a("s_mul_i32 s57, s57, 5")
    a("s_add_u32 s57, s57, s58")
    a("s_lshl_b32 s57, s57, 10")
    a(f"s_add_u32 s57, s57, {GF_OFF}")
    a("s_add_u32 s58, s57, 5120")
    a("s_mul_i32 s59, s56, 24")
    a("s_add_u32 s59, s59, s67")
    a(f"s_mul_i32 s59, s59, {FS}")
    a(f"s_add_u32 s59, s59, {FG_OFF}")
    a(f"s_mov_b32 s60, {f2u(GELU_K1):#x}")
    BF, RB, SUM, OUT, TM, K0, ONE = 136, 8, 152, 168, ACC + 4, ACC + 12, ACC + 13
    a.wait(vm='b')
    unpack(a, BF, BI, 8)
    if not EXACT:
        for phi in range(4):
            for h in range(2):
                c = ACC + (phi * 4) * 4 + 2 * h
                a(f"v_pk_add_f32 {pr(c)}, {pr(c)}, {pr(BF+phi*4+2*h)}")
    lds_arrive(a, C_RED, 3, 4)
    for u in range(3): trread2(u)
    lds_wait(a, C_RED, 3, 4, 4)
    for di in range(1, 4):
        for phi in range(4):
            a(f"ds_read_b128 {q4(RB+((di-1)*4+phi)*4)}, v{4+di} offset:{(di-1)*4096+phi*1024}", tag=('p', di))
    for u in range(3, 6): dma2(u)
    a(f"v_mov_b32 v{K0}, {f2u(GELU_K0):#x}")
    for di in range(1, 4):
        a.wait(lg=[('p', di)])
        for phi in range(4):
            for h in range(2):
                s0 = ACC + (phi * 4) * 4 + 2 * h if di == 1 else SUM + phi * 4 + 2 * h
                a(f"v_pk_add_f32 {pr(SUM+phi*4+2*h)}, {pr(s0)}, {pr(RB+((di-1)*4+phi)*4+2*h)}")
    lds_arrive(a, C_RD, 3, ONE)
    n = 16
    if EXACT:
        round_bf16(a, SUM, 8, TM)
        for i in range(0, n, 2): a(f"v_pk_add_f32 {pr(SUM+i)}, {pr(SUM+i)}, {pr(BF+i)}")
        round_bf16(a, SUM, 8, TM)
    for half in range(2):
        R8 = range(8 * half, 8 * half + 8)
        for i in R8[::2]: a(f"v_pk_mul_f32 {pr(BF+i)}, {pr(SUM+i)}, {pr(SUM+i)}")
        for i in R8: a(f"v_fma_f32 v{BF+i}, v{BF+i}, s60, v{K0}")
        for i in R8[::2]: a(f"v_pk_mul_f32 {pr(BF+i)}, {pr(BF+i)}, {pr(SUM+i)}")
        for i in R8: a(f"v_exp_f32 v{BF+i}, v{BF+i}")
        for i in R8: a(f"v_add_f32 v{BF+i}, 1.0, v{BF+i}")
        for i in R8: a(f"v_rcp_f32 v{BF+i}, v{BF+i}")
        for i in R8[::2]: a(f"v_pk_mul_f32 {pr(SUM+i)}, {pr(SUM+i)}, {pr(BF+i)}")
        pack(a, OUT + 4 * half, SUM + 8 * half, 4)
        a(f"buffer_store_dwordx4 {q4(OUT+4*half)}, v{VL}, {WS}, s{57+half} offen {SC}", tag='gs')
    for u in (3, 4): trread2(u)
    a.wait(vm='gs')
    set_flag(a, 59, 4)
    a.stamp(9)
    keep = []
    a("s_or_b32 s56, s2, s40")
    a("s_cmp_lg_u32 s56, 0")
    a("s_cbranch_scc1 KF_NOEP")
    a(f"s_mov_b32 s56, {EP_OFF}")
    set_flag(a, 56, 4)
    a.label("KF_NOEP")
    lds_wait(a, C_RD, 3, 4, 4)
    a("s_branch KF_G2B")
    a.label("KF_G2")
    w2_setup()
    lds_arrive(a, C_RED, 3, 4)
    a(f"v_mov_b32 v3, {C_HIS}")
    a("v_mov_b32 v4, 12")
    a("s_mov_b64 exec, 1")
    a("ds_add_u32 v3, v4")
    a("s_mov_b64 exec, -1")
    lds_arrive(a, C_PRO, 3, 4)
    if FTGATE: lds_wait(a, C_FLG, 4, 5, 4, sleep=1)
    if not P2:
        a("v_lshrrev_b32 v3, 5, v2")
        a("v_lshlrev_b32 v3, 12, v3")
        a("v_and_b32 v4, 31, v2")
        a("v_lshl_add_u32 v3, v4, 4, v3")
    else:
        a(f"v_mov_b32 v3, v{VL}")
    a(f"s_mul_i32 s57, s40, {384*4096}")
    a("s_and_b32 s56, s65, 1")
    a(f"s_lshl_b32 s56, s56, {16 if P2 else 17}")
    a("s_add_u32 s57, s57, s56")
    if P2:
        a("s_and_b32 s56, s64, 3")
        a("s_lshl_b32 s56, s56, 10")
    else: a("s_lshl_b32 s56, s64, 9")
    a("s_add_u32 s57, s57, s56")
    a("s_mov_b32 s58, 0")
    a.label("KF_PF")
    for k in range(16):
        a(f"buffer_load_dwordx4 {q4(ACC+4*k)}, v3, {W2}, s57 offen {PFMOD}")
        a(f"s_add_u32 s57, s57, {(1 if P2 else 2)*4096}")
        a("s_waitcnt vmcnt(8)")
    a(f"s_add_u32 s57, s57, {(16 if P2 else 32)*4096}")
    a("s_add_u32 s58, s58, 1")
    a(f"s_cmp_lt_u32 s58, {PFSTEPS if P2 else PFSTEPS//2}")
    a("s_cbranch_scc1 KF_PF")
    for i in range(5, 10): a.stamp(i)
    a.reset_counts()
    for u in range(3): dma2(u)
    for u in range(3): trread2(u)
    a("s_waitcnt lgkmcnt(0)")
    for u in range(3, 6): dma2(u)
    for u in (3, 4): trread2(u)
    a("s_waitcnt vmcnt(0) lgkmcnt(0)")
    a.label("KF_G2B")
    NK = 12
    for u in (6, 7, 8, 9): dma2(u)
    a("s_mul_i32 s57, s62, 48")
    a("s_mul_i32 s56, s40, 12")
    a("s_add_u32 s57, s57, s56")
    a("s_mul_i32 s57, s57, 5120")
    a(f"s_add_u32 s57, s57, {GF_OFF}")
    a("s_mov_b32 s58, s68")
    a(f"v_add_u32 v{VH}, 4096, v{VL}")
    a("v_mul_u32_u24 v3, 43, v2")
    a("v_lshrrev_b32 v3, 8, v3")
    a("v_mul_u32_u24 v3, 18, v3")
    a("v_add_u32 v3, v3, v2")
    a(f"v_mul_u32_u24 v3, {FS}, v3")
    a("s_mul_i32 s59, s62, 120")
    a("s_mul_i32 s56, s40, 6")
    a("s_add_u32 s59, s59, s56")
    a(f"s_mul_i32 s59, s59, {FS}")
    a(f"s_add_u32 s59, s59, {FG_OFF}")
    XS = srd(a, 36, P_Q, XBYTES)
    B2 = srd(a, 52, P_B2, S * 2)
    a(f"v_and_b32 v6, 15, v2")
    a(f"v_lshrrev_b32 v7, 4, v2")
    a("s_movk_i32 s56, 1280")
    a(f"v_mul_u32_u24 v{VH+1}, s56, v6")
    a(f"v_lshl_add_u32 v{VH+1}, v7, 3, v{VH+1}")
    a(f"v_lshlrev_b32 v{VH+2}, 1, v6")
    a("v_lshrrev_b32 v7, 2, v6")
    a("v_lshlrev_b32 v7, 6, v7")
    a("v_and_b32 v6, 3, v6")
    a(f"v_lshl_add_u32 v{VH+3}, v6, 3, v7")
    a("s_lshl_b32 s60, s63, 6")
    a("s_lshl_b32 s56, s40, 4")
    a("s_add_u32 s60, s60, s56")
    a("s_mul_i32 s61, s60, 1280")
    a("s_mul_i32 s56, s62, 160")
    a("s_add_u32 s61, s61, s56")
    STT, B2V = 172, 174
    XRL = [48, 50, 52, 54, 6]
    for i5 in range(5):
        a(f"buffer_load_dwordx2 {pr(XRL[i5])}, v{VH+1}, {XS}, s61 offen offset:{32*i5} {NT}", tag='x')
    a("s_lshl_b32 s56, s60, 1")
    a(f"buffer_load_ushort v{B2V}, v{VH+2}, {B2}, s56 offen", tag='x')
    a.stamp(10)
    a("v_mov_b32 v175, v3")
    a("s_mov_b32 s41, s59")
    a("s_mov_b32 s42, -1")
    def fg_need(ps, first=False):
        m = 0
        for p in ps:
            for i5 in range(5): m |= 1 << (6 * i5 + p)
        Lok = lbl("FGOK"); Lp = lbl("FGP")
        keep = list(a.vm)
        a("s_mov_b32 s70, 0")
        a.label(Lp)
        a(f"s_and_b32 s56, s42, {hex(m)}")
        a(f"s_cbranch_scc0 {Lok}")
        a("s_add_u32 s70, s70, 1")
        a(f"s_cmp_gt_u32 s70, {SPIN_MAX}")
        a(f"s_cbranch_scc1 {Lok}")
        set_exec(a, 30)
        a(f"buffer_load_dwordx2 v[4:5], v175, {WS}, s41 offen {SC}")
        a("s_waitcnt vmcnt(0)")
        a(f"v_cmp_ne_u64 vcc, s[{TAG}:{TAG+1}], v[4:5]")
        a("s_mov_b64 exec, -1")
        a("s_mov_b32 s42, vcc_lo")
        a(f"s_branch {Lp}")
        a.label(Lok)
        a.vm = [] if first else keep
    assert not ROT
    fg_need([0, 1] if PROG else range(6), first=True)
    a.lg = []
    a.stamp(11)
    def gload(t, i):
        gb = GS[t % NG]
        if i == 0:
            a("s_mul_i32 s69, s58, 5120")
            a("s_add_u32 s69, s69, s57")
        if i < 4: a(f"buffer_load_dwordx4 {q4(gb+i*4)}, v{VL}, {WS}, s69 offen offset:{i*1024} {SCL}", tag=('g', t))
        else:
            a(f"buffer_load_dwordx4 {q4(gb+16)}, v{VH}, {WS}, s69 offen {SCL}", tag=('g', t))
            a("s_add_u32 s58, s58, 1")
            a("s_cmp_eq_u32 s58, 12")
            a("s_cselect_b32 s58, 0, s58")
    for t in range(NG):
        for i in range(5): gload(t, i)
    a("s_mul_i32 s59, s62, 80")
    a(f"s_mul_i32 s59, s59, {FS}")
    a(f"s_add_u32 s59, s59, {FZ_OFF}")
    a(f"s_add_u32 s56, s59, {64*FS}")
    a(f"v_add_u32 v3, s56, v{VL}")
    a("s_lshr_b32 s56, s60, 5")
    a(f"s_mul_i32 s56, s56, {4*FS}")
    a(f"s_add_u32 s56, s56, {FA_OFF}")
    a("v_and_b32 v69, 3, v2")
    a("v_lshlrev_b32 v69, 4, v69")
    a("v_add_u32 v69, s56, v69")
    a("v_cmp_gt_u32 vcc, 16, v2")
    a("v_cndmask_b32 v69, v69, v3, vcc")
    a("v_lshrrev_b32 v3, 1, v2")
    a("v_lshlrev_b32 v3, 12, v3")
    a("v_and_b32 v70, 1, v2")
    a("v_lshl_add_u32 v3, v70, 4, v3")
    TZ1, TZ2 = E('TZ1', 5), E('TZ2', 8)
    for t in range(NK):
        wb = WR2 + (t % NR2) * 16
        gb = GS[t % NG]
        if PROG and (t + NG) % 2 == 0 and t + NG < NK and t + NG >= 4: fg_need([(t + NG) // 2])
        fill = []
        if t >= 2 and t - 2 + NR2 + NS2 < NK:
            u = t - 2 + NR2 + NS2
            assert SL2[u] == SL2[u - NS2]
            fill.extend(dma2_parts(u, pre=lambda u=u: a.wait(lg=[('r2', u - NS2)])))
        if t >= 1 and t - 1 + NR2 < NK: fill.extend(trread2_parts(t - 1 + NR2))
        a.wait(vm=[('g', t)], lg=[('r2', t)])
        for i5 in range(5):
            for si in range(4):
                c = ACC + (i5 * 4 + si) * 4
                src = "0" if t == 0 else q4(c)
                if not XNOMFMA or si == 0: a(f"v_mfma_f32_16x16x32_bf16 {q4(c)}, {q4(gb+i5*4)}, {q4(wb+si*4)}, {src}")
                if si < 3 and fill: fill.pop(0)()
            if t + NG < NK: gload(t + NG, i5)
        while fill: fill.pop(0)()
        if t == TZ1:
            a(f"buffer_load_dwordx2 {pr(STT)}, v{VL}, {WS}, s59 offen {SC}", tag='zf')
            a(f"buffer_load_dwordx2 v[70:71], v69, {WS}, 0 offen {SC}", tag='zf')
        if t == TZ2:
            Lok = lbl("ZOK"); Lp = lbl("ZP")
            a.wait(vm='zf')
            keep = list(a.vm)
            a("s_mov_b32 s70, 0")
            a.label(Lp)
            a(f"v_cmp_ne_u64 vcc, s[{TAG}:{TAG+1}], {pr(STT)}")
            a(f"v_cmp_ne_u64 s[66:67], s[{TAG}:{TAG+1}], v[70:71]")
            a("s_or_b64 vcc, vcc, s[66:67]")
            a(f"s_branch {Lok}" if XNOCONV else f"s_cbranch_scc0 {Lok}")
            a("s_add_u32 s70, s70, 1")
            a(f"s_cmp_gt_u32 s70, {SPIN_MAX}")
            a(f"s_cbranch_scc1 {Lok}")
            a(f"buffer_load_dwordx2 {pr(STT)}, v{VL}, {WS}, s59 offen {SC}")
            a(f"buffer_load_dwordx2 v[70:71], v69, {WS}, 0 offen {SC}")
            a("s_waitcnt vmcnt(0)")
            a(f"s_branch {Lp}")
            a.label(Lok)
            a.vm = keep
            a(f"s_mul_i32 s59, s62, {80*4096}")
            a("s_lshl_b32 s56, s60, 1")
            a("s_add_u32 s59, s59, s56")
            a(f"s_add_u32 s59, s59, {Z_OFF}")
            for k in range(3):
                a(f"s_add_u32 m0, s45, {2*4096 + k*1024}")
                if k == 2: set_exec(a, 32)
                a(f"buffer_load_dwordx4 v3, {WS}, s59 offen {SC} lds", tag='z')
                if k == 2: a("s_mov_b64 exec, -1")
                a(f"s_add_u32 s59, s59, {32*4096}")
            a("s_lshr_b32 s59, s60, 5")
            a("s_lshl_b32 s59, s59, 8")
            a("s_and_b32 s56, s60, 16")
            a("s_lshl_b32 s56, s56, 1")
            a("s_add_u32 s59, s59, s56")
            a(f"s_add_u32 s59, s59, {ST_OFF}")
            a(f"buffer_load_dwordx2 {pr(STT)}, v{VH+3}, {WS}, s59 offen {SC}", tag='z')
        if t == 3: a.stamp(12)
    a.stamp(13)
    a(f"v_add_u32 v4, s45, v{VL}")
    def red_off(si, i5):
        k = (si - 1) * 5 + i5
        return (k if k < 8 else k + 4) * 1024
    for si in range(1, 4):
        for i5 in range(5):
            a(f"ds_write_b128 v4, {q4(ACC+(i5*4+si)*4)} offset:{red_off(si, i5)}")
    XF, XN, TP, ZR, ZF = 176, 196, 216, 226, 8
    for i5 in range(5):
        unpack(a, XF + 4 * i5, XRL[i5], 2)
    for si in range(1, 4):
        a(f"s_sub_u32 s56, s40, {si}")
        a("s_and_b32 s56, s56, 3")
        a(f"s_mul_i32 s56, s56, {RING}")
        a(f"v_add_u32 v{4+si}, s56, v{VL}")
    a("v_lshlrev_b32 v48, 3, v2")
    a("v_add_u32 v48, s45, v48")
    a(f"v_lshlrev_b32 v{B2V}, 16, v{B2V}")
    OUTS = srd(a, 52, P_OUT, XBYTES)
    a.wait(vm='z')
    for i5 in range(5):
        a(f"ds_read_b64_tr_b16 {pr(ZR+2*i5)}, v48 offset:{8192+i5*512}", tag='zr')
    for i in range(10):
        a(f"v_pk_add_f32 {pr(XN+2*i)}, {pr(XF+2*i)}, {pr(STT)} op_sel_hi:[1,0] neg_lo:[0,1] neg_hi:[0,1]")
    lds_arrive(a, C_RED, 3, 49)
    round_bf16(a, XN, 10, TP)
    for i in range(10):
        a(f"v_pk_mul_f32 {pr(XN+2*i)}, {pr(XN+2*i)}, {pr(STT)} op_sel:[0,1] op_sel_hi:[1,1]")
    round_bf16(a, XN, 10, TP)
    unpack(a, ZF, ZR, 10)
    if EXACT:
        for i in range(10): a(f"v_pk_mul_f32 {pr(ZF+2*i)}, {pr(ZF+2*i)}, {pr(XN+2*i)}")
        round_bf16(a, ZF, 10, TP)
        for i in range(10): a(f"v_pk_add_f32 {pr(ZF+2*i)}, {pr(ZF+2*i)}, {pr(XF+2*i)}")
        round_bf16(a, ZF, 10, TP)
    else:
        for i in range(10): a(f"v_pk_fma_f32 {pr(ZF+2*i)}, {pr(ZF+2*i)}, {pr(XN+2*i)}, {pr(XF+2*i)}")
        for i in range(10): a(f"v_pk_add_f32 {pr(ZF+2*i)}, {pr(ZF+2*i)}, {pr(B2V)} op_sel_hi:[1,0]")
        for i5 in range(5):
            for h in range(2):
                c = ACC + (i5 * 4) * 4 + 2 * h
                a(f"v_pk_add_f32 {pr(c)}, {pr(c)}, {pr(ZF+4*i5+2*h)}")
    lds_wait(a, C_RED, 3, 49, 8)
    for si in range(1, 4):
        for i5 in range(5):
            a(f"ds_read_b128 {q4(ACC+(i5*4+si)*4)}, v{4+si} offset:{red_off(si, i5)}", tag=('p', si))
    for si in range(1, 4):
        a.wait(lg=[('p', si)])
        for i5 in range(5):
            for h in range(2):
                c = ACC + (i5 * 4) * 4 + 2 * h
                a(f"v_pk_add_f32 {pr(c)}, {pr(c)}, {pr(c+4*si)}")
    for i5 in range(5):
        for h in range(2):
            c = ACC + (i5 * 4) * 4 + 2 * h
            a(f"v_cvt_pk_bf16_f32 v{TP+2*i5+h}, v{c}, v{c+1}")
    if EXACT:
        YF = XN
        unpack(a, YF, TP, 10)
        for i in range(10): a(f"v_pk_add_f32 {pr(YF+2*i)}, {pr(YF+2*i)}, {pr(B2V)} op_sel_hi:[1,0]")
        round_bf16(a, YF, 10, TP)
        for i in range(10): a(f"v_pk_add_f32 {pr(YF+2*i)}, {pr(YF+2*i)}, {pr(ZF+2*i)}")
        pack(a, TP, YF, 10)
    for i5 in range(5):
        a(f"buffer_store_dwordx2 {pr(TP+2*i5)}, v{VH+1}, {OUTS}, s61 offen offset:{32*i5} {OUTMOD}")
    a.flush_stamps(0, 14, vt=250, ws=P_WS)
    a("s_endpgm")

def gen_aux(a):
    a("s_setprio 3")
    a("s_and_b32 s64, s2, 7")
    a("s_lshr_b32 s65, s2, 3")
    tile1(a)
    a("s_sub_u32 s64, s40, 4")
    a(f"s_mul_i32 s60, s64, {512*3072}")
    a("s_lshl_b32 s56, s67, 7")
    a("s_add_u32 s60, s60, s56")
    a(f"s_mul_i32 s61, s64, {RING}")
    a("s_mov_b32 s63, s68")
    a("s_and_b32 s66, s2, 7")
    a("s_lshl_b32 s66, s66, 2")
    a("s_lshr_b32 s67, s2, 3")
    a("s_and_b32 s56, s67, 3")
    a("s_add_u32 s66, s66, s56")
    a("s_lshr_b32 s67, s67, 2")
    a("s_mul_i32 s68, s66, 81920")
    a("s_mul_i32 s56, s67, 160")
    a("s_add_u32 s68, s68, s56")
    a("s_lshl_b32 s56, s64, 6")
    a("v_add_u32 v56, s56, v2")
    a("s_lshl_b32 s57, s64, 10")
    a("s_sub_u32 s58, s68, 3840")
    a("s_movk_i32 s59, 1280")
    a("v_mov_b32 v63, -1")
    for i in range(3):
        if i: a("v_add_u32 v56, 256, v56")
        a("v_mul_u32_u24 v57, 729, v56")
        a("v_lshrrev_b32 v57, 16, v57")
        a("v_mul_u32_u24 v58, 90, v57")
        a("v_sub_u32 v58, v56, v58")
        a("v_mul_u32_u24 v59, 205, v58")
        a("v_lshrrev_b32 v59, 11, v59")
        a("v_mul_u32_u24 v60, 10, v59")
        a("v_sub_u32 v60, v58, v60")
        a("v_lshl_add_u32 v61, v59, 3, v57")
        a("v_lshlrev_b32 v60, 4, v60")
        a("v_mad_u32_u24 v60, v61, s59, v60")
        a("v_add_u32 v60, s58, v60")
        a("v_cmp_gt_u32 vcc, 67, v61")
        a("v_cndmask_b32 v60, v63, v60, vcc")
        a("v_cmp_gt_u32 vcc, 8, v57")
        a(f"v_cndmask_b32 v{40+i}, v63, v60, vcc")
    a("v_add_u32 v56, s56, v2")
    for i in range(3):
        if i: a("v_add_u32 v56, 256, v56")
        a("v_mul_u32_u24 v57, 820, v56")
        a("v_lshrrev_b32 v57, 16, v57")
        a("v_mul_u32_u24 v58, 80, v57")
        a("v_sub_u32 v58, v56, v58")
        a("v_mul_u32_u24 v59, 205, v58")
        a("v_lshrrev_b32 v59, 11, v59")
        a("v_mul_u32_u24 v60, 10, v59")
        a("v_sub_u32 v60, v58, v60")
        a("v_lshl_add_u32 v61, v59, 3, v57")
        a("v_lshlrev_b32 v60, 4, v60")
        a(f"v_mad_u32_u24 v{43+i}, v61, s59, v60")
    a("s_lshl_b32 s67, s67, 2")
    a("s_add_u32 s67, s67, s64")
    a("v_mul_u32_u24 v56, 52, v2")
    a("v_lshrrev_b32 v56, 8, v56")
    a("v_mul_u32_u24 v57, 5, v56")
    a("v_sub_u32 v57, v2, v57")
    a("v_lshlrev_b32 v61, 5, v57")
    a("s_mul_i32 s69, s67, 160")
    KR, VR, SK = 64, 86, 102
    a("s_movk_i32 s56, 160")
    a("v_mul_u32_u24 v58, s56, v56")
    a("v_lshl_add_u32 v58, v57, 3, v58")
    a("s_mul_i32 s56, s64, 40")
    a(f"s_add_u32 s56, s56, {L_KS}")
    a("v_add_u32 v58, s56, v58")
    a("s_lshl_b32 s41, s64, 8")
    a("s_sub_u32 s42, 255, s2")
    a("s_add_u32 s41, s41, s42")
    a(f"s_mul_i32 s42, s64, {HCOPY}")
    a(f"s_add_u32 s42, s42, {L_H}")
    a(f"s_mul_i32 s43, s64, {KB_CH}")
    a(f"s_add_u32 s43, s43, {L_K}")
    a("v_lshlrev_b32 v3, 4, v2")
    a("s_lshl_b32 s62, s41, 12")
    a("v_mov_b32 v4, 0")
    common_entry(a)
    KS = srd(a, 44, P_K, XBYTES)
    VS = srd(a, 48, P_V, XBYTES)
    SKS = srd(a, 52, P_SK, D * 8)
    a("s_barrier")
    a.stamp(1)
    for i in range(3):
        a(f"s_add_u32 m0, s57, {L_KS + i*4096}")
        a(f"buffer_load_dwordx4 v{40+i}, {KS}, 0 offen {NT} lds")
    for i in range(2):
        a(f"s_add_u32 m0, s57, {L_VS + i*4096}")
        a(f"buffer_load_dwordx4 v{43+i}, {VS}, s68 offen {NT} lds")
    Ls = lbl("NOV")
    a("s_cmp_ge_u32 s64, 2")
    a(f"s_cbranch_scc1 {Ls}")
    a(f"s_add_u32 m0, s57, {L_VS + 2*4096}")
    a(f"buffer_load_dwordx4 v45, {VS}, s68 offen {NT} lds")
    a.label(Ls)
    tag_ready(a)
    lds_arrive(a, C_LNW, 5, 6)
    a(f"buffer_load_dwordx4 {q4(SK)}, v61, {SKS}, s69 offen")
    a(f"buffer_load_dwordx4 {q4(SK+4)}, v61, {SKS}, s69 offen offset:16")
    a("v_bfe_u32 v50, v2, 1, 2")
    a("v_lshrrev_b32 v51, 4, v2")
    a("v_xor_b32 v50, v50, v51")
    a("v_lshlrev_b32 v50, 5, v50")
    a("v_and_b32 v51, 1, v2")
    a("v_lshl_add_u32 v50, v51, 4, v50")
    a("v_lshrrev_b32 v51, 3, v2")
    a("s_movk_i32 s56, 3072")
    a("v_mad_u32_u24 v46, v51, s56, v50")
    for t in range(1, 4):
        a(f"v_add_u32 v{46+t}, {t*(24576-1024)}, v46")
    a("s_cmp_lt_u32 s2, 240")
    W1 = srd(a, 36, P_W1, 0)
    a("s_cmp_lt_u32 s2, 240")
    a(f"s_cselect_b32 s38, {S*F*2}, 0")
    for t in range(FT1):
        a(f"s_mul_i32 s56, s63, {32*3072}")
        a("s_add_u32 s56, s56, s60")
        a(f"s_add_u32 m0, s61, {t*4096}")
        for i in range(4):
            a(f"buffer_load_dwordx4 v{46+i}, {W1}, s56 offen offset:{i*1024} {NTW} lds")
        a("s_add_u32 s63, s63, 1")
        a("s_and_b32 s63, s63, 15")
    SM = srd(a, 36, P_SSMK, D * S * 2)
    HL, HN = 192, 208
    def ssm_loads():
        for t in range(4):
            a(f"buffer_load_dwordx4 {q4(HL+4*t)}, v3, {SM}, s62 offen offset:{t*1024} {NT}")
        for t in range(4):
            a(f"buffer_load_dwordx2 {pr(HN+2*t)}, v3, {SM}, s62 offen offset:{t*1024+16}")
        SD = srd(a, 44, P_SSMD, D * 2)
        a("s_lshl_b32 s56, s41, 1")
        a(f"buffer_load_ushort v8, v4, {SD}, s56 offen")
    if not SSMLATE: ssm_loads()
    a.stamp(2)
    srd(a, 32, P_WS, WS_TOTAL)
    a(f"s_waitcnt vmcnt({4*FT1 + (0 if SSMLATE else 9)})")
    a.vm = []
    a.stamp(3)
    lds_arrive(a, C_KVL, 5, 6)
    a("v_lshrrev_b32 v12, 3, v2")
    a("v_and_b32 v13, 7, v2")
    a("v_lshlrev_b32 v9, 14, v12")
    a("v_lshl_add_u32 v9, v13, 4, v9")
    a(f"s_mul_i32 s57, s67, {20*4096}")
    a("s_lshl_b32 s56, s66, 7")
    a("s_add_u32 s57, s57, s56")
    a(f"s_add_u32 s57, s57, {KVR_OFF}")
    a("s_mul_i32 s58, s64, 768")
    a(f"s_add_u32 s58, s58, {L_KVT}")
    a("s_movk_i32 s56, 144")
    a("v_mul_u32_u24 v10, s56, v57")
    a("v_lshl_add_u32 v10, v56, 4, v10")
    a("v_add_u32 v10, s58, v10")
    a("v_mul_u32_u24 v11, s56, v12")
    a("v_lshl_add_u32 v11, v13, 4, v11")
    a("v_add_u32 v11, s58, v11")
    lds_wait(a, C_KVL, 5, 6, 4)
    set_exec(a, 40)
    for t in range(11):
        a(f"ds_read_b64 {pr(KR+2*t)}, v58 offset:{(t % 8)*1440 + (t // 8)*160}")
    for t in range(8):
        a(f"ds_read_b64 {pr(VR+2*t)}, v58 offset:{12*1024 + t*1280}")
    a("s_waitcnt lgkmcnt(0)")
    W, KF, VF, O = 112, 120, 142, 160
    for p in range(2):
        for e in range(2):
            c = 2 * p + e
            a(f"v_lshlrev_b32 v{W+0+e}, 16, v{SK+2*c}")
            a(f"v_and_b32 v{W+2+e}, 0xffff0000, v{SK+2*c}")
            a(f"v_lshlrev_b32 v{W+4+e}, 16, v{SK+2*c+1}")
            a(f"v_and_b32 v{W+6+e}, 0xffff0000, v{SK+2*c+1}")
        for t in range(11):
            a(f"v_lshlrev_b32 v{KF+2*t}, 16, v{KR+2*t+p}")
            a(f"v_and_b32 v{KF+2*t+1}, 0xffff0000, v{KR+2*t+p}")
        for t in range(8):
            a(f"v_lshlrev_b32 v{VF+2*t}, 16, v{VR+2*t+p}")
            a(f"v_and_b32 v{VF+2*t+1}, 0xffff0000, v{VR+2*t+p}")
        for r in range(8):
            a(f"v_pk_mul_f32 {pr(KF+2*r)}, {pr(KF+2*r)}, {pr(W+6)}")
            a(f"v_pk_fma_f32 {pr(KF+2*r)}, {pr(KF+2*(r+1))}, {pr(W+4)}, {pr(KF+2*r)}")
            a(f"v_pk_fma_f32 {pr(KF+2*r)}, {pr(KF+2*(r+2))}, {pr(W+2)}, {pr(KF+2*r)}")
            a(f"v_pk_fma_f32 {pr(KF+2*r)}, {pr(KF+2*(r+3))}, {pr(W+0)}, {pr(KF+2*r)}")
        for r in range(8):
            a(f"v_pk_mul_f32 {pr(VF+2*r)}, {pr(VF+2*r)}, {pr(KF+2*r)}")
        for e in range(2):
            Ob = O + 8 * p + 4 * e
            for q in range(4):
                a(f"v_cvt_pk_bf16_f32 v{Ob+q}, v{VF+2*(7-2*q)+e}, v{VF+2*(6-2*q)+e}")
            a(f"ds_write_b128 v10, {q4(Ob)}")
            a(f"ds_read_b128 {q4(Ob)}, v11")
        if p == FTP:
            a(f"s_waitcnt vmcnt({0 if SSMLATE else 9})")
            a(f"v_mov_b32 v5, {C_FT}")
            a("v_mov_b32 v6, 1")
            a("s_mov_b64 exec, 1")
            a("ds_add_u32 v5, v6")
            set_exec(a, 40)
    a("s_waitcnt lgkmcnt(0)")
    for c in range(4):
        a(f"buffer_store_dwordx4 {q4(O+4*c)}, v9, {WS}, s57 offen {SC}", tag='ks')
        a("s_add_u32 s57, s57, 4096")
    a("s_mov_b64 exec, -1")
    a.stamp(4)
    lds_arrive(a, C_KVD, 5, 6)
    a("s_lshl_b32 s59, s67, 5")
    a("s_add_u32 s59, s59, s66")
    a(f"s_mul_i32 s59, s59, {FS}")
    a(f"s_add_u32 s59, s59, {FK_OFF}")
    a(f"s_cmp_ge_u32 s41, {0 if XNOCONV else D}")
    a("s_cbranch_scc1 KF_NOCONV")
    a.wait(vm='ks')
    set_flag(a, 59, 12)
    lds_arrive(a, C_FLG, 5, 6)
    a.stamp(5)
    if SSMLATE:
        lds_wait(a, C_FLG, 5, 6, 4)
        ssm_loads()
    lds_wait(a, C_KVD, 5, 6, 4)
    lds_wait(a, C_LNR, 5, 6, 4)
    a("s_waitcnt vmcnt(0)")
    a("v_add_u32 v9, s42, v3")
    TA = 216
    for t in range(4):
        d = [HL + 4 * t + i for i in range(4)] + [HN + 2 * t, HN + 2 * t + 1]
        a(f"ds_write_b128 v9, {q4(d[0])} offset:{32+t*1024}")
        for i in range(4): a(f"v_alignbit_b32 v{TA+i}, v{d[i+1]}, v{d[i]}, 16")
        for i in range(4): a(f"v_mov_b32 v{TA+4+i}, v{d[i+1]}")
        for i in range(4): a(f"v_alignbit_b32 v{TA+8+i}, v{d[i+2]}, v{d[i+1]}, 16")
        for j in range(1, 4):
            a(f"ds_write_b128 v9, {q4(TA+4*(j-1))} offset:{j*HJ+32+t*1024}")
        TA = 216 + 12 * ((t + 1) & 1)
    a(f"v_readfirstlane_b32 s60, v{HL}")
    a(f"v_readfirstlane_b32 s61, v{HL+1}")
    a("v_mov_b32 v6, s60")
    a("v_mov_b32 v7, s61")
    a("v_lshlrev_b32 v9, 3, v2")
    a("v_add_u32 v9, s43, v9")
    a("v_mov_b32 v5, 0")
    a("ds_write_b64 v9, v[4:5]")
    a("v_and_b32 v11, 15, v2")
    a("v_lshrrev_b32 v12, 4, v2")
    a("v_add_u32 v13, 1, v11")
    a("v_and_b32 v14, 3, v13")
    a(f"s_movk_i32 s56, {HJ}")
    a("v_mul_u32_u24 v10, s56, v14")
    a("v_and_b32 v14, 0x1c, v13")
    a("v_lshl_add_u32 v10, v14, 1, v10")
    a("v_lshl_add_u32 v10, v12, 4, v10")
    a("v_add_u32 v10, s42, v10")
    a("v_lshlrev_b32 v15, 1, v11")
    a("v_sub_u32 v15, v15, v12")
    a("v_lshlrev_b32 v15, 4, v15")
    a(f"s_add_u32 s57, s43, {33*16-448}")
    a("v_add_u32 v15, s57, v15")
    a("v_lshrrev_b32 v16, 2, v2")
    a("v_and_b32 v17, 3, v2")
    a("v_mul_u32_u24 v18, s56, v16")
    a("v_lshl_add_u32 v18, v17, 3, v18")
    a("v_add_u32 v18, s42, v18")
    a("v_lshlrev_b32 v19, 4, v16")
    a("v_sub_u32 v19, 64, v19")
    a("v_lshlrev_b32 v20, 3, v12")
    a("v_add_u32 v20, v20, v11")
    a("v_sub_u32 v20, 15, v20")
    a("v_and_b32 v21, 1, v20")
    a("v_lshlrev_b32 v21, 4, v21")
    a("v_lshrrev_b32 v20, 1, v20")
    a("v_lshlrev_b32 v22, 5, v11")
    a("v_lshl_add_u32 v22, v12, 3, v22")
    a("s_mul_i32 s59, s41, 3277")
    a("s_lshr_b32 s59, s59, 16")
    a(f"s_mul_i32 s59, s59, {32*FS}")
    a(f"s_add_u32 s59, s59, {FK_OFF}")
    if FKGATE: lds_wait(a, C_PRO, 28, 29, FKT, sleep=2)
    poll(a, 3, 59, 28, 32, sleep=PSLEEP)
    a.stamp(6)
    a("s_add_u32 m0, s43, 512")
    a(f"s_add_u32 s57, s62, {KVR_OFF}")
    for t in range(4):
        a(f"buffer_load_dwordx4 v3, {WS}, s57 offen offset:{t*1024} {SC} lds")
    a("v_lshlrev_b64 v[6:7], v19, v[6:7]")
    a("s_mov_b32 s60, 0x8880")
    a("s_mov_b32 s61, 0")
    a("v_cndmask_b32 v6, 0, v6, s[60:61]")
    a("v_cndmask_b32 v7, 0, v7, s[60:61]")
    a("s_mov_b64 exec, 0xffff")
    a("ds_write_b64 v18, v[6:7]")
    a("s_mov_b64 exec, -1")
    a("v_lshlrev_b32 v8, v21, v8")
    DF = 24
    for j in range(4):
        a(f"v_cmp_eq_u32 vcc, {j}, v20")
        a(f"v_cndmask_b32 v{DF+j}, 0, v8, vcc")
    CACC, AB, BB = 32, 64, 128
    def rd(r, idx):
        buf = (r & 1) * 32
        if idx < 8:
            q = 8 * idx - r
            a(f"ds_read_b128 {q4(BB+buf+idx*4)}, v15 offset:{64*(q+7)}")
        else:
            kap = idx - 8
            k = 8 * kap + r
            a(f"ds_read_b64 {pr(AB+buf+kap*4)}, v10 offset:{64*k}")
            a(f"ds_read_b64 {pr(AB+buf+kap*4+2)}, v10 offset:{64*k+8}")
    for idx in range(8, 16): rd(0, idx)
    a(f"s_setprio {E('CVPRIO', 0)}")
    a("s_waitcnt vmcnt(0)")
    a.stamp(7)
    for idx in range(8): rd(0, idx)
    for r in range(8):
        buf = (r & 1) * 32
        a("s_waitcnt lgkmcnt(0)")
        if r == CVPAUSE:
            lds_wait(a, C_RED, 5, 6, 4, sleep=4)
        seq = []
        if r == 0:
            for n in range(8): seq.append(('d', n))
        for kap in range(8):
            for n in range(kap, 8): seq.append((kap, n))
        nxt = list(range(16)) if r < 7 else []
        for i, (kap, n) in enumerate(seq):
            c = q4(CACC + n * 4)
            if kap == 'd':
                a(f"v_mfma_f32_16x16x32_bf16 {c}, {q4(DF)}, {q4(BB+buf+n*4)}, 0")
            else:
                a(f"v_mfma_f32_16x16x32_bf16 {c}, {q4(AB+buf+kap*4)}, {q4(BB+buf+(n-kap)*4)}, {c}")
            if nxt and i % 2 == 0:
                rd(r + 1, nxt.pop(0))
        if r == 3: a.stamp(8)
    a.stamp(9)
    a("s_setprio 3")
    a(f"s_add_u32 s57, s62, {Z_OFF}")
    for n in range(8):
        a(f"v_cvt_pk_bf16_f32 v{AB+2*n}, v{CACC+4*n}, v{CACC+4*n+1}")
        a(f"v_cvt_pk_bf16_f32 v{AB+2*n+1}, v{CACC+4*n+2}, v{CACC+4*n+3}")
        a(f"buffer_store_dwordx2 {pr(AB+2*n)}, v22, {WS}, s57 offen offset:{512*n} {SC}")
    a(f"s_mul_i32 s59, s41, {FS}")
    a(f"s_add_u32 s59, s59, {FZ_OFF}")
    a("s_waitcnt vmcnt(0)")
    set_flag(a, 59, 12)
    a.stamp(10)
    a.flush_stamps(0, 11, vt=250, ws=P_WS)
    a("s_endpgm")
    a.label("KF_NOCONV")
    a("s_waitcnt vmcnt(0)")
    set_flag(a, 59, 12)
    lds_arrive(a, C_FLG, 5, 6)
    a.stamp(5)
    if PFSTEPS < 12 and not XNOW2:
        a("s_cmp_lg_u32 s64, 3")
        a("s_cbranch_scc1 KF_AUXEND")
        nrow = (12 - PFSTEPS) * (32 if P2 else 16)
        a("s_lshr_b32 s60, s2, 3")
        a("s_and_b32 s61, s2, 7")
        if not P2:
            a("s_lshr_b32 s57, s60, 2")
            a("s_and_b32 s56, s60, 3")
            a("s_lshl_b32 s58, s61, 2")
            a("s_add_u32 s56, s56, s58")
        else:
            a("s_lshr_b32 s57, s60, 3")
            a("s_and_b32 s58, s61, 4")
            a("s_add_u32 s57, s57, s58")
            a("s_and_b32 s56, s60, 7")
            a("s_and_b32 s58, s61, 3")
            a("s_lshl_b32 s58, s58, 3")
            a("s_add_u32 s56, s56, s58")
        if not P2:
            a("s_lshr_b32 s58, s57, 1")
            a("s_mul_i32 s58, s58, 384")
            a("s_and_b32 s57, s57, 1")
            a(f"s_mul_i32 s57, s57, {nrow}")
            a("s_add_u32 s57, s57, s58")
        else:
            a("s_and_b32 s57, s57, 3")
            a("s_mul_i32 s57, s57, 384")
        a(f"s_add_u32 s57, s57, {32*PFSTEPS}")
        a("s_lshl_b32 s57, s57, 12")
        a("s_lshl_b32 s56, s56, 7")
        a("s_add_u32 s57, s57, s56")
        a("v_lshrrev_b32 v59, 3, v2")
        a("v_and_b32 v60, 7, v2")
        a("v_lshlrev_b32 v60, 4, v60")
        a("v_lshl_add_u32 v62, v59, 12, v60")
        W2 = srd(a, 36, P_W2, S * F * 2)
        if STAG:
            a("s_lshr_b32 s58, s2, 3")
            a(f"s_and_b32 s58, s58, {STAG-1}")
            a(f"s_add_u32 s58, s58, {STAG0}")
            a("s_lshl_b32 s58, s58, 2")
            lds_wait(a, C_HIS, 5, 6, "s58", sleep=4)
        else:
            lds_wait(a, C_HIS, 5, 6, 48, sleep=4)
        for k in range(nrow // 8):
            a(f"buffer_load_dwordx4 {q4(64+4*(k%40))}, v62, {W2}, s57 offen {NTW}")
            a(f"s_add_u32 s57, s57, {8*4096}")
    a.label("KF_AUXEND")
    a.flush_stamps(0, 6, vt=250, ws=P_WS)

NAME = "parallel_sum__ssm_conv_h3__mixer_token_mlp__prompt"
def build(path, as_list=True):
    ref = open(f"cdna_kernels/{NAME}.s.ref").read().split("\n")
    hdr = [l for l in ref if l.startswith(";") and "@launch" not in l and "Override launch" not in l and "grid=ceil" not in l]
    kn = NAME + "_kernel"
    t, d = gen(kn)
    s = "\n".join(hdr) + "\n"
    if as_list: s += f"; @launch kernel={kn} grid=(256,1,1) block=({THREADS},1,1) lds={LDS_TOTAL}\n"
    else: s += f"; @launch grid=(256,1,1) block=({THREADS},1,1) lds={LDS_TOTAL}\n"
    s += '.amdgcn_target "amdgcn-amd-amdhsa--gfx950"\n' + t + d
    open(path, "w").write(s)
if __name__ == "__main__":
    import sys
    build(sys.argv[1], as_list=(len(sys.argv) <= 2))
```

```python
from asmlib import *
import os, struct, math
E = lambda k, d: type(d)(os.environ.get(k, d))

S, D, F = 2048, 640, 1536
XBYTES = S * D * 2
EP_OFF = 0
FA_OFF = 0x1000
FK_OFF = 0xB000
FG_OFF = 0xF000
FZ_OFF = 0x13000
ST_OFF = 0x16000
HF_OFF = 0x20000
KVR_OFF = 0x2A0000
Z_OFF = 0x520000
GF_OFF = 0x7A0000
WS_TOTAL = 0x980000
FS = 16

NS = 6
RING = NS * 4096
HCOPY = 4160
HB_CH = 4 * HCOPY
KB_CH = 512 + 4096
L_H = 4 * RING
L_K = L_H + 3 * HB_CH
L_MISC = L_K + 3 * KB_CH
L_CNT = L_MISC
L_ST = L_MISC + 64
LDS_TOTAL = L_MISC + 128
HJ = 3 * HCOPY
L_KS = L_H + HJ
L_VS = L_KS + 12 * 1024
L_KVT = L_VS + 10 * 1024
assert L_KVT + 4 * 768 <= L_K
C_RED, C_RD, C_KVL, C_KVD, C_LNW, C_LNR, C_HIS, C_FLG, C_FT = [L_CNT + 4 * i for i in range(9)]
assert LDS_TOTAL <= 163840
THREADS = 512
NT = os.environ.get('NT', '')
CODEPF = E('CODEPF', 1)
XNOCONV = E('XNOCONV', 0)
XNOW2 = E('XNOW2', 0)
XNOMFMA = E('XNOMFMA', 0)
FTA = E('FTA', 1)
SSMLATE = E('SSMLATE', 0)
P1 = E('P1', 0)
P2 = E('P2', 0)
STAG = E('STAG', 8)
STAG0 = E('STAG0', 1)
PROG = E('PROG', 1)
OUTMOD = os.environ.get('OUTMOD', '')
NTW = os.environ.get('NTW', NT)
SC = "sc1"
SCL = os.environ.get("SCL", "sc1")
NTB = os.environ.get("NTB", "")
FT0 = E("FT0", 0)
PRE1 = E("PRE1", 12)
LEADD = E("LEADD", 12)
LEADR = E("LEADR", 6)
PFSTEPS = E("PFSTEPS", 4)
FTGATE = E("FTGATE", 1)
FKGATE = E("FKGATE", 1)
CVPAUSE = E("CVPAUSE", 8)
SPIN_MAX = 1 << 16
FT1 = E('FT1', 2)
NR1, NH = 6, 4
NR2, NS2, NG = 5, 5, 3
ROT = E('ROT', 0)
PSLEEP = E('PSLEEP', 6)
FTWAIT = E('FTWAIT', 1)
PFMOD = os.environ.get('PFMOD', '')
W2EARLY = E('W2EARLY', 0)
EXACT = E('EXACT', 1)
W2SIG = E('W2SIG', 0)

def f2u(x): return struct.unpack('<I', struct.pack('<f', x))[0]
GELU_K0 = -2.0 * math.sqrt(2.0 / math.pi) * math.log2(math.e)
GELU_K1 = GELU_K0 * 0.044715
def pr(r): return f"v[{r}:{r+1}]"
def q4(r): return f"v[{r}:{r+3}]"

P_Q, P_K, P_V, P_SK, P_SSMK, P_SSMD, P_BX, P_W1, P_B1, P_W2, P_B2, P_OUT, P_WS = 4, 6, 8, 10, 12, 14, 16, 18, 20, 22, 24, 26, 28
TAG = 30
WS = "s[32:35]"

def srd(a, d, base, nbytes):
    a(f"s_mov_b32 s{d}, s{base}")
    a(f"s_and_b32 s{d+1}, s{base+1}, 0xffff")
    a(f"s_mov_b32 s{d+2}, {nbytes}")
    a(f"s_mov_b32 s{d+3}, 0x00020000")
    return f"s[{d}:{d+3}]"

def reduce2(a, x, y, tx, ty):
    for m in ("quad_perm:[1,0,3,2]", "quad_perm:[2,3,0,1]", "row_half_mirror", "row_mirror"):
        a(f"v_add_f32_dpp v{x}, v{x}, v{x} {m} row_mask:0xf bank_mask:0xf")
        a(f"v_add_f32_dpp v{y}, v{y}, v{y} {m} row_mask:0xf bank_mask:0xf")
    for p in ("v_permlane16_swap_b32", "v_permlane32_swap_b32"):
        a(f"v_mov_b32 v{tx}, v{x}")
        a(f"v_mov_b32 v{ty}, v{y}")
        a(f"{p} v{x}, v{tx}")
        a(f"{p} v{y}, v{ty}")
        a(f"v_add_f32 v{x}, v{x}, v{tx}")
        a(f"v_add_f32 v{y}, v{y}, v{ty}")

def unpack(a, dst, src, n):
    for i in range(n):
        a(f"v_lshlrev_b32 v{dst+2*i}, 16, v{src+i}")
        a(f"v_and_b32 v{dst+2*i+1}, 0xffff0000, v{src+i}")

def pack(a, dst, src, n):
    for i in range(n):
        a(f"v_cvt_pk_bf16_f32 v{dst+i}, v{src+2*i}, v{src+2*i+1}")

def round_bf16(a, reg, n2, tmp):
    pack(a, tmp, reg, n2); unpack(a, reg, tmp, n2)

_uid = [0]
def lbl(p):
    _uid[0] += 1
    return f"{p}_{_uid[0]}"

def set_exec(a, n):
    m = (1 << n) - 1
    a(f"s_mov_b32 exec_lo, {hex(m & 0xffffffff)}")
    a(f"s_mov_b32 exec_hi, {hex(m >> 32)}")

def poll(a, vaddr, soff, vt, nlanes=64, sleep=0):
    L = lbl("POLL"); Lx = lbl("POLLX")
    a("s_mov_b32 s70, 0")
    if nlanes < 64: set_exec(a, nlanes)
    a.label(L)
    a(f"buffer_load_dwordx2 {pr(vt)}, v{vaddr}, {WS}, s{soff} offen {SC}")
    a("s_add_u32 s70, s70, 1")
    a("s_waitcnt vmcnt(0)")
    a(f"v_cmp_ne_u64 vcc, s[{TAG}:{TAG+1}], {pr(vt)}")
    a(f"s_cmp_gt_u32 s70, {SPIN_MAX}")
    a(f"s_cbranch_scc1 {Lx}")
    a(f"s_cbranch_vccz {Lx}")
    if sleep: a(f"s_sleep {sleep}")
    a(f"s_branch {L}")
    a.label(Lx)
    if nlanes < 64: a("s_mov_b64 exec, -1")

def set_flag(a, soff, vt):
    a(f"v_mov_b32 v{vt}, s{TAG}")
    a(f"v_mov_b32 v{vt+1}, s{TAG+1}")
    a(f"v_mov_b32 v{vt+2}, 0")
    a("s_mov_b64 exec, 1")
    a(f"buffer_store_dwordx2 {pr(vt)}, v{vt+2}, {WS}, s{soff} offen {SC}")
    a("s_mov_b64 exec, -1")

def lds_sync(a, cnt_off, va, vb, target):
    L = lbl("LSYNC"); Lx = lbl("LSYNCX")
    a(f"v_mov_b32 v{va}, {cnt_off}")
    a(f"v_mov_b32 v{vb}, 1")
    a("s_waitcnt lgkmcnt(0)")
    a("s_mov_b64 exec, 1")
    a(f"ds_add_u32 v{va}, v{vb}")
    a("s_mov_b64 exec, -1")
    a("s_mov_b32 s70, 0")
    a.label(L)
    a(f"ds_read_b32 v{vb}, v{va}")
    a("s_add_u32 s70, s70, 1")
    a("s_waitcnt lgkmcnt(0)")
    a(f"v_readfirstlane_b32 s71, v{vb}")
    a(f"s_cmp_gt_u32 s70, {SPIN_MAX*4}")
    a(f"s_cbranch_scc1 {Lx}")
    a(f"s_cmp_lt_u32 s71, {target}")
    a(f"s_cbranch_scc1 {L}")
    a.label(Lx)

class Coll:
    def __init__(self): self.l = []
    def __call__(self, t, tag=None): self.l.append(t)

def reduce2c(a, x, y, tx, ty): reduce2(a, x, y, tx, ty)

def ln_row(RAW, X, T, Q, sh):
    a = Coll()
    S1, S1h, S2, S2h, M, R = Q, Q + 1, Q + 2, Q + 3, Q + 4, Q + 5
    unpack(a, X, RAW, 5)
    a(f"v_readfirstlane_b32 s{sh}, v{X}")
    for i in range(10): a(f"v_subrev_f32 v{T+i}, s{sh}, v{X+i}")
    def sums(src):
        a(f"v_pk_add_f32 {pr(S1)}, {pr(src)}, {pr(src+2)}")
        a(f"v_pk_mul_f32 {pr(S2)}, {pr(src)}, {pr(src)}")
        for i in range(1, 5):
            if i >= 2: a(f"v_pk_add_f32 {pr(S1)}, {pr(S1)}, {pr(src+2*i)}")
            a(f"v_pk_fma_f32 {pr(S2)}, {pr(src+2*i)}, {pr(src+2*i)}, {pr(S2)}")
        a(f"v_add_f32 v{S1}, v{S1}, v{S1h}")
        a(f"v_add_f32 v{S2}, v{S2}, v{S2h}")
        reduce2(a, S1, S2, S1h, S2h)
    def stats(shift):
        a(f"v_mul_f32 v{S1}, s60, v{S1}")
        a(f"v_mul_f32 v{S2}, s60, v{S2}")
        a(f"v_fma_f32 v{S2}, -v{S1}, v{S1}, v{S2}")
        a(f"v_max_f32 v{S2}, 0, v{S2}")
        if shift: a(f"v_add_f32 v{S1}, s{sh}, v{S1}")
        a(f"v_cvt_pk_bf16_f32 v{S1h}, v{S1}, v{S2}")
        a(f"v_lshlrev_b32 v{M}, 16, v{S1h}")
        a(f"v_and_b32 v{S2}, 0xffff0000, v{S1h}")
        a(f"v_add_f32 v{S2}, 0x3727c5ac, v{S2}")
        a(f"v_cvt_pk_bf16_f32 v{S2}, v{S2}, v{S2}")
        a(f"v_lshlrev_b32 v{S2}, 16, v{S2}")
        a(f"v_sqrt_f32 v{S2}, v{S2}")
        a(f"v_cvt_pk_bf16_f32 v{S2}, v{S2}, v{S2}")
        a(f"v_lshlrev_b32 v{S2}, 16, v{S2}")
        a(f"v_rcp_f32 v{R}, v{S2}")
    def normalize():
        for i in range(5):
            a(f"v_pk_add_f32 {pr(T+2*i)}, {pr(X+2*i)}, {pr(M)} op_sel_hi:[1,0] neg_lo:[0,1] neg_hi:[0,1]")
        round_bf16(a, T, 5, RAW)
        for i in range(5):
            a(f"v_pk_mul_f32 {pr(T+2*i)}, {pr(T+2*i)}, {pr(M)} op_sel:[0,1] op_sel_hi:[1,1]")
        pack(a, RAW, T, 5)
    sums(T); stats(True)
    p1 = a.l; a.l = []
    normalize()
    unpack(a, X, RAW, 5)
    sums(X); stats(False)
    normalize()
    return p1, a.l

def common_entry(a):
    a("s_waitcnt lgkmcnt(0)")
    a(f"s_load_dwordx2 s[{TAG}:{TAG+1}], s[{P_WS}:{P_WS+1}], {EP_OFF}")

def tag_ready(a):
    a("s_waitcnt lgkmcnt(0)")
    a(f"s_add_u32 s{TAG}, s{TAG}, 0x9E3779B9")
    a(f"s_add_u32 s{TAG+1}, s{TAG+1}, 0x7F4A7C15")

RA, RB_ = 8, 72
def ln_addr_and_load(a):
    a("s_lshr_b32 s41, s2, 2")
    a("s_and_b32 s42, s2, 3")
    a("s_lshl_b32 s43, s41, 5")
    a("s_lshl_b32 s56, s42, 2")
    a("s_add_u32 s43, s43, s56")
    a("s_and_b32 s56, s40, 1")
    a("s_lshl_b32 s56, s56, 1")
    a("s_add_u32 s43, s43, s56")
    a("s_lshr_b32 s56, s40, 1")
    a("s_lshl_b32 s56, s56, 4")
    a("s_add_u32 s43, s43, s56")
    a("s_mul_i32 s43, s43, 1280")
    a("v_lshlrev_b32 v3, 3, v2")
    a("v_lshlrev_b32 v4, 2, v2")
    a(f"v_add_u32 v5, {L_CNT}, v4")
    a("v_mov_b32 v6, 0")
    a("s_mov_b64 exec, 0xffff")
    a("ds_write_b32 v5, v6")
    a("s_mov_b64 exec, -1")
    common_entry(a)
    X = srd(a, 36, P_Q, XBYTES)
    for r, o in ((RA, 0), (RB_, 1280)):
        a(f"buffer_load_dwordx2 {pr(r)}, v3, {X}, s43 offen offset:{o} {NT}", tag='x')
        a(f"buffer_load_dwordx2 {pr(r+2)}, v3, {X}, s43 offen offset:{o+512} {NT}", tag='x')
        a(f"buffer_load_dword v{r+4}, v4, {X}, s43 offen offset:{o+1024} {NT}", tag='x')
    a("s_barrier")
    srd(a, 32, P_WS, WS_TOTAL)

def ln_compute_publish(a, hook=None):
    a("s_mul_i32 s56, s40, 2688")
    a(f"s_add_u32 s56, s56, {L_K}")
    a("v_add_u32 v5, s56, v3")
    a("v_add_u32 v6, s56, v4")
    a("v_bfe_u32 v40, v2, 2, 2")
    a("s_movk_i32 s57, 1344")
    a("v_mul_u32_u24 v40, s57, v40")
    a("v_lshrrev_b32 v41, 4, v2")
    a("v_lshl_add_u32 v40, v41, 5, v40")
    a("v_and_b32 v42, 3, v2")
    a("v_lshl_add_u32 v40, v42, 3, v40")
    a("s_lshl_b32 s57, s40, 7")
    a(f"s_add_u32 s57, s57, {L_K}")
    a("v_add_u32 v40, s57, v40")
    a("v_and_b32 v42, 15, v2")
    a("v_lshlrev_b32 v42, 4, v42")
    a("v_lshl_add_u32 v42, v41, 10, v42")
    a("s_lshl_b32 s57, s40, 6")
    a("s_add_u32 s57, s57, s41")
    a("s_lshl_b32 s57, s57, 12")
    a("s_lshl_b32 s58, s42, 8")
    a("s_add_u32 s57, s57, s58")
    a(f"s_add_u32 s57, s57, {HF_OFF}")
    a("s_lshl_b32 s59, s40, 8")
    a("s_add_u32 s59, s59, s2")
    a(f"s_mul_i32 s59, s59, {FS}")
    a(f"s_add_u32 s59, s59, {FA_OFF}")
    a("s_mov_b32 s60, 0x3acccccd")
    a("s_lshl_b32 s61, s40, 4")
    a(f"s_add_u32 s61, s61, {L_ST}")
    a("v_mov_b32 v43, s61")
    a(f"v_lshlrev_b32 v54, {(4*256*FS).bit_length()-1}, v2")
    tag_ready(a)
    a.stamp(1)
    a.wait(vm='x')
    a.stamp(2)
    A1, A2 = ln_row(RA, 16, 44, 26, 62)
    B1, B2 = ln_row(RB_, 80, 92, 104, 63)
    for x, y in zip(A1, B1): a(x); a(y)
    a("s_mov_b64 exec, 1")
    a("ds_write_b64 v43, v[30:31]")
    a("ds_write_b64 v43, v[108:109] offset:8")
    a("s_mov_b64 exec, -1")
    for x, y in zip(A2, B2): a(x); a(y)
    for r, o in ((RA, 0), (RB_, 1344)):
        a(f"ds_write_b64 v5, {pr(r)} offset:{o}")
        a(f"ds_write_b64 v5, {pr(r+2)} offset:{o+512}")
        a(f"ds_write_b32 v6, v{r+4} offset:{o+1024}")
    lds_arrive(a, C_LNW, 44, 45)
    a.stamp(3)
    lds_wait(a, C_LNW, 44, 45, 8)
    for k in range(2):
        a(f"ds_read_b64_tr_b16 {pr(16+4*k)}, v40 offset:{512*k}", tag=('t', k))
        a(f"ds_read_b64_tr_b16 {pr(18+4*k)}, v40 offset:{4*1344+512*k}", tag=('t', k))
    a(f"s_add_u32 s58, s57, {4*64*4096}")
    a.wait(lg=[('t', 0)])
    a(f"buffer_store_dwordx4 v[16:19], v42, {WS}, s57 offen {SC}")
    L1 = lbl("LN1")
    a("s_mov_b32 s56, 3")
    a("s_cmp_ge_u32 s40, 2")
    a(f"s_cbranch_scc1 {L1}")
    a("ds_read_b64_tr_b16 v[24:25], v40 offset:1024")
    a(f"ds_read_b64_tr_b16 v[26:27], v40 offset:{4*1344+1024}")
    a(f"v_add_u32 v44, {L_ST}, v3")
    a("ds_read_b64 v[28:29], v44")
    a(f"s_add_u32 s57, s57, {8*64*4096}")
    a("s_lshl_b32 s61, s2, 6")
    a(f"s_add_u32 s61, s61, {ST_OFF}")
    a("s_mov_b32 s56, 7")
    a("s_waitcnt lgkmcnt(0)")
    a(f"buffer_store_dwordx4 v[24:27], v42, {WS}, s57 offen {SC}")
    a("s_mov_b64 exec, 0xff")
    a(f"buffer_store_dwordx2 v[28:29], v3, {WS}, s61 offen {SC}")
    a("s_mov_b64 exec, -1")
    a.label(L1)
    a("s_waitcnt lgkmcnt(0)")
    a(f"buffer_store_dwordx4 v[20:23], v42, {WS}, s58 offen {SC}", tag='hs')
    lds_arrive(a, C_LNR, 44, 45)
    a(f"v_mov_b32 v44, s{TAG}")
    a(f"v_mov_b32 v45, s{TAG+1}")
    a("s_mov_b32 s61, s56")
    if hook: hook()
    a.wait(vm='hs')
    a("s_mov_b32 exec_lo, s61")
    a("s_mov_b32 exec_hi, 0")
    a(f"buffer_store_dwordx2 v[44:45], v54, {WS}, s59 offen {SC}")
    a("s_mov_b64 exec, -1")
    a.stamp(4)

def gen(name):
    a = Asm()
    a.raw(kernel_header(name))
    a("s_cmp_ge_u32 s2, 256")
    a("s_cbranch_scc1 KF_DONE")
    a("s_load_dwordx16 s[4:19], s[0:1], 0")
    a("s_load_dwordx8 s[20:27], s[0:1], 64")
    a("s_load_dwordx2 s[28:29], s[0:1], 104")
    if CODEPF:
        a("s_getpc_b64 s[44:45]")
        a("s_and_b32 s44, s44, 0xffffff00")
        a("s_and_b32 s45, s45, 0xffff")
        a(f"s_mov_b32 s46, CODE_END-{name}")
        a("s_mov_b32 s47, 0x00020000")
        a("s_lshr_b32 s48, s2, 3")
        a("s_lshl_b32 s48, s48, 10")
        a("v_lshrrev_b32 v1, 6, v0")
        a("v_and_b32 v2, 7, v0")
        a("v_lshlrev_b32 v2, 4, v2")
        a("v_lshl_add_u32 v1, v1, 7, v2")
        a("buffer_load_dwordx4 v[252:255], v1, s[44:47], s48 offen")
    a.stamp(0)
    a("v_lshrrev_b32 v1, 6, v0")
    a("v_and_b32 v2, 63, v0")
    a("v_readfirstlane_b32 s40, v1")
    a("s_cmp_ge_u32 s40, 4")
    a("s_cbranch_scc1 KF_AUX")
    gen_gemm(a)
    a.label("KF_AUX")
    a.reset_counts()
    gen_aux(a)
    a.label("KF_DONE")
    a("s_endpgm")
    a.raw("CODE_END:")
    return a.render(), kernel_desc(name, 256, 72)

def lds_arrive(a, cnt_off, va, vb):
    a(f"v_mov_b32 v{va}, {cnt_off}")
    a(f"v_mov_b32 v{vb}, 1")
    a("s_waitcnt lgkmcnt(0)")
    a("s_mov_b64 exec, 1")
    a(f"ds_add_u32 v{va}, v{vb}")
    a("s_mov_b64 exec, -1")

def lds_wait(a, cnt_off, va, vb, target, sleep=0):
    L = lbl("LW"); Lx = lbl("LWX")
    a(f"v_mov_b32 v{va}, {cnt_off}")
    a("s_mov_b32 s70, 0")
    a.label(L)
    a(f"ds_read_b32 v{vb}, v{va}")
    a("s_add_u32 s70, s70, 1")
    a("s_waitcnt lgkmcnt(0)")
    a(f"v_readfirstlane_b32 s71, v{vb}")
    a(f"s_cmp_gt_u32 s70, {SPIN_MAX*4}")
    a(f"s_cbranch_scc1 {Lx}")
    a(f"s_cmp_ge_u32 s71, {target}")
    a(f"s_cbranch_scc1 {Lx}")
    if sleep: a(f"s_sleep {sleep}")
    a(f"s_branch {L}")
    a.label(Lx)

def gen_gemm(a):
    a("s_setprio 2")
    VD, VT, VH, VL = 56, 60, 64, 68
    VT2 = VT
    ACC = 72
    WR = 152
    HS = [8, 24, 40, 136]
    WR2 = 176
    GS = [8, 28, 152]
    a("s_and_b32 s64, s2, 7")
    a("s_lshr_b32 s65, s2, 3")
    ln_addr_and_load(a)
    if not P1:
        a("s_mul_i32 s66, s65, 171")
        a("s_lshr_b32 s66, s66, 9")
        a("s_mul_i32 s67, s66, 3")
        a("s_sub_u32 s67, s65, s67")
        a("s_mul_i32 s68, s66, 1639")
        a("s_lshr_b32 s68, s68, 10")
        a("s_and_b32 s68, s68, 15")
        a("s_mul_i32 s69, s64, 3")
        a("s_add_u32 s67, s67, s69")
    else:
        a("s_mul_i32 s66, s65, 43")
        a("s_lshr_b32 s66, s66, 8")
        a("s_mul_i32 s67, s66, 6")
        a("s_sub_u32 s67, s65, s67")
        a("s_mul_i32 s68, s66, 3277")
        a("s_lshr_b32 s68, s68, 10")
        a("s_and_b32 s68, s68, 15")
        a("s_lshr_b32 s69, s64, 2")
        a("s_mul_i32 s69, s69, 5")
        a("s_add_u32 s66, s66, s69")
        a("s_and_b32 s69, s64, 3")
        a("s_mul_i32 s69, s69, 6")
        a("s_add_u32 s67, s67, s69")
    a(f"v_lshlrev_b32 v{VL}, 4, v2")
    a("v_bfe_u32 v69, v2, 1, 2")
    a("v_lshrrev_b32 v70, 4, v2")
    a("v_xor_b32 v69, v69, v70")
    a("v_lshlrev_b32 v69, 5, v69")
    a("v_and_b32 v70, 1, v2")
    a("v_lshl_add_u32 v69, v70, 4, v69")
    a("v_lshrrev_b32 v70, 3, v2")
    a("s_movk_i32 s56, 3072")
    a(f"v_mad_u32_u24 v{VD}, v70, s56, v69")
    for t in range(1, 4):
        a(f"v_add_u32 v{VD+t}, {t*(24576-1024)}, v{VD}")
    a(f"s_mul_i32 s44, s40, {512*3072}")
    a("s_lshl_b32 s56, s67, 7")
    a("s_add_u32 s44, s44, s56")
    a(f"s_mul_i32 s45, s40, {RING}")
    a("s_mov_b32 s46, s68")
    W1 = srd(a, 48, P_W1, S * F * 2)
    a("v_lshrrev_b32 v71, 2, v2")
    a("v_lshlrev_b32 v71, 7, v71")
    a("v_and_b32 v70, 3, v2")
    a("v_lshl_add_u32 v71, v70, 3, v71")
    a("v_add_u32 v71, s45, v71")
    a("v_bfe_u32 v70, v2, 3, 2")
    for phi in range(4):
        a(f"v_xor_b32 v13, {phi}, v70")
        a(f"v_lshl_add_u32 v{VT+phi}, v13, 5, v71")
    for i in range(4):
        a(f"s_add_u32 s56, s40, {i}")
        a("s_and_b32 s56, s56, 3")
        a("s_lshl_b32 s56, s56, 10")
        a(f"v_add_u32 v{VH+i}, s56, v{VL}")
    def dma1_parts(t):
        mod = NTW if t < FT1 else NTB
        def p0():
            if t >= NS: a.wait(lg=[('r', t - NS)])
            a(f"s_mul_i32 s47, s46, {32*3072}")
            a("s_add_u32 s47, s47, s44")
            a(f"s_add_u32 m0, s45, {(t % NS)*4096}")
            a("s_add_u32 s46, s46, 1")
            a("s_and_b32 s46, s46, 15")
        ps = [p0]
        for i in range(4):
            ps.append(lambda i=i: a(f"buffer_load_dwordx4 v{VD+i}, {W1}, s47 offen offset:{i*1024} {mod} lds", tag=('w', t)))
        return ps
    def dma1(t):
        for p in dma1_parts(t): p()
    def hook():
        for t in range(FT0): dma1(t)
    ln_compute_publish(a, hook)
    a("s_cmp_ge_u32 s2, 240")
    a("s_cbranch_scc1 KF_G2")
    def trread_parts(t):
        wb = WR + (t % NR1) * 16
        ps = []
        for phi in range(4):
            def p(phi=phi):
                if phi == 0: a.wait(vm=[('w', t)])
                a(f"ds_read_b64_tr_b16 {pr(wb+phi*4)}, v{VT+phi} offset:{(t % NS)*4096}", tag=('r', t))
                a(f"ds_read_b64_tr_b16 {pr(wb+phi*4+2)}, v{VT+phi} offset:{(t % NS)*4096+2048}", tag=('r', t))
            ps.append(p)
        return ps
    NK = 16
    st = {'dma': FT0, 'rd': 0}
    def next_dma(defer=None):
        t = st['dma']; st['dma'] += 1
        if defer is None: dma1(t)
        else: defer.extend(dma1_parts(t))
    def next_rd(defer=None):
        t = st['rd']; st['rd'] += 1
        ps = trread_parts(t)
        if defer is None:
            for p in ps: p()
        else: defer.extend(ps)
    while st['dma'] < FTA: next_dma()
    if FTGATE: lds_wait(a, C_FLG, 4, 5, 4, sleep=1)
    while st['dma'] < FT1: next_dma()
    a("s_lshl_b32 s57, s66, 6")
    a("s_lshl_b32 s56, s40, 4")
    a("s_add_u32 s57, s57, s56")
    a("s_lshl_b32 s57, s57, 12")
    a(f"s_add_u32 s57, s57, {HF_OFF}")
    a("s_lshl_b32 s58, s68, 12")
    a("s_lshl_b32 s59, s66, 8")
    a("s_lshl_b32 s56, s40, 6")
    a("s_add_u32 s59, s59, s56")
    a(f"s_mul_i32 s59, s59, {FS}")
    a(f"s_add_u32 s59, s59, {FA_OFF}")
    B1 = srd(a, 52, P_B1, F * 2)
    a("v_lshrrev_b32 v3, 4, v2")
    a("v_lshlrev_b32 v3, 3, v3")
    a("s_lshl_b32 s56, s67, 7")
    BI = 248
    for phi in range(4):
        a(f"buffer_load_dwordx2 {pr(BI+2*phi)}, v3, {B1}, s56 offen offset:{phi*32}", tag='b')
    if FT1 and FTWAIT: a.wait(vm=[('w', FT1 - 1)])
    lds_arrive(a, C_FT, 4, 5)
    a.stamp(5)
    while st['dma'] < PRE1 - 2:
        while st['rd'] <= st['dma'] - NS + 1 and st['rd'] < NR1: next_rd()
        next_dma()
    a(f"buffer_load_dwordx2 v[4:5], v{VL}, {WS}, s59 offen {SC}", tag='fa')
    while st['dma'] < PRE1:
        while st['rd'] <= st['dma'] - NS + 1 and st['rd'] < NR1: next_rd()
        next_dma()
    while st['rd'] < min(LEADR, FT1): next_rd()
    a.wait(vm='fa')
    def fa_mask():
        a(f"v_cmp_ne_u64 vcc, s[{TAG}:{TAG+1}], v[4:5]")
        a("s_lshl_b32 s56, s68, 2")
        a("s_lshr_b64 s[62:63], vcc, s56")
        a("s_sub_u32 s56, 64, s56")
        a("s_lshl_b64 vcc, vcc, s56")
        a("s_or_b64 s[62:63], s[62:63], vcc")
    def fa_need(lo, hi):
        m = ((1 << (4 * hi)) - 1) & ~((1 << (4 * lo)) - 1)
        Lok = lbl("FAOK"); Lp = lbl("FAP")
        keep = list(a.vm)
        a("s_mov_b32 s70, 0")
        a.label(Lp)
        a(f"s_and_b32 s56, s62, {hex(m & 0xffffffff)}")
        a(f"s_and_b32 s71, s63, {hex(m >> 32)}")
        a("s_or_b32 s56, s56, s71")
        a(f"s_cbranch_scc0 {Lok}")
        a("s_add_u32 s70, s70, 1")
        a(f"s_cmp_gt_u32 s70, {SPIN_MAX}")
        a(f"s_cbranch_scc1 {Lok}")
        a("s_sleep 2")
        a(f"buffer_load_dwordx2 v[4:5], v{VL}, {WS}, s59 offen {SC}")
        a("s_waitcnt vmcnt(0)")
        fa_mask()
        a(f"s_branch {Lp}")
        a.label(Lok)
        a.vm = keep
    fa_mask()
    fa_need(0, 4 if PROG else 16)
    a.stamp(6)
    def hload(t, i):
        if i == 0: a("s_add_u32 s61, s57, s58")
        a(f"buffer_load_dwordx4 {q4(HS[t % NH]+i*4)}, v{VH+i}, {WS}, s61 offen {SCL}", tag=('h', t))
        if i == 3:
            a("s_add_u32 s58, s58, 4096")
            a("s_and_b32 s58, s58, 0xffff")
    for t in range(NH):
        for i in range(4): hload(t, i)
        if st['dma'] < min(NK, LEADD, st['rd'] + NS): next_dma()
    while st['rd'] < min(LEADR, st['dma']): next_rd()
    def w2_setup():
        if not P2:
            a("s_lshr_b32 s62, s65, 2")
            a("s_and_b32 s63, s65, 3")
            a("s_lshl_b32 s56, s64, 2")
            a("s_add_u32 s63, s63, s56")
        else:
            a("s_lshr_b32 s62, s65, 3")
            a("s_and_b32 s56, s64, 4")
            a("s_add_u32 s62, s62, s56")
            a("s_and_b32 s63, s65, 7")
            a("s_and_b32 s56, s64, 3")
            a("s_lshl_b32 s56, s56, 3")
            a("s_add_u32 s63, s63, s56")
        a("v_lshrrev_b32 v7, 3, v2")
        a(f"v_lshl_add_u32 v{VD}, v7, 12, v69")
        for t in range(1, 4):
            a(f"v_add_u32 v{VD+t}, {t*(32768-1024)}, v{VD}")
        a(f"s_mul_i32 s44, s40, {384*4096}")
        a("s_lshl_b32 s56, s63, 7")
        a("s_add_u32 s44, s44, s56")
        if ROT:
            a("s_and_b32 s46, s65, 3")
            a("s_mul_i32 s46, s46, 3")
            a("s_mul_i32 s56, s62, 3")
            a("s_lshr_b32 s56, s56, 1")
            a("s_add_u32 s46, s46, s56")
            a("s_cmp_ge_u32 s46, 12")
            a("s_cselect_b32 s56, 12, 0")
            a("s_sub_u32 s46, s46, s56")
        else:
            a("s_mov_b32 s46, 0")
        a("s_mov_b32 s68, s46")
        srd(a, 48, P_W2, S * F * 2)
        for si in range(4):
            a(f"s_add_u32 s56, s40, {si}")
            a("s_and_b32 s56, s56, 3")
            a("v_xor_b32 v7, s56, v70")
            a(f"v_lshl_add_u32 v{VT+si}, v7, 5, v71")
    W2 = "s[48:51]"
    SL2 = [3, 4, 5, 3, 4, 5, 3, 4, 0, 1, 5, 3]
    def trread2_parts(t):
        wb = WR2 + (t % NR2) * 16
        so = SL2[t] * 4096
        ps = []
        for si in range(4):
            def p(si=si):
                if si == 0: a.wait(vm=[('w2', t)])
                a(f"ds_read_b64_tr_b16 {pr(wb+si*4)}, v{VT2+si} offset:{so}", tag=('r2', t))
                a(f"ds_read_b64_tr_b16 {pr(wb+si*4+2)}, v{VT2+si} offset:{so+2048}", tag=('r2', t))
            ps.append(p)
        return ps
    def trread2(t):
        for p in trread2_parts(t): p()
    def dma2_parts(t, pre=None):
        def p0():
            if pre: pre()
            a(f"s_lshl_b32 s47, s46, 17")
            a("s_add_u32 s47, s47, s44")
            a(f"s_add_u32 m0, s45, {SL2[t]*4096}")
            a("s_add_u32 s46, s46, 1")
        ps = [p0]
        for i in range(4):
            ps.append(lambda i=i: a(f"buffer_load_dwordx4 v{VD+i}, {W2}, s47 offen offset:{i*1024} {NTB} lds", tag=('w2', t)))
        return ps
    def dma2(t):
        for p in dma2_parts(t): p()
    W2T0 = E('W2T0', 11)
    a(f"v_mov_b32 v3, {C_HIS}")
    a("v_mov_b32 v6, 1")
    def prog():
        a("s_mov_b64 exec, 1")
        a("ds_add_u32 v3, v6")
        a("s_mov_b64 exec, -1")
    for t in range(NK):
        wb = WR + (t % NR1) * 16
        hb = HS[t % NH]
        fill = []
        if st['dma'] < min(NK, st['rd'] + NS): next_dma(fill)
        if st['rd'] < NK and st['rd'] <= t - 1 + NR1: next_rd(fill)
        if t < NK - NH: fill.append(prog)
        if t == W2T0:
            assert st['rd'] == NK and st['dma'] == NK, st
            fill.append(lambda: (a.wait(lg=[('r', NK - 1)]), w2_setup()))
        if W2T0 < t <= W2T0 + 3: fill.extend(dma2_parts(t - W2T0 - 1))
        if PROG and t % 4 == 0 and t + NH < NK: fa_need(t + NH, t + NH + 4)
        a.wait(vm=[('h', t)], lg=[('r', t)])
        for di in range(4):
            for phi in range(4):
                c = ACC + (phi * 4 + di) * 4
                src = "0" if t == 0 else q4(c)
                if not XNOMFMA or phi == 0: a(f"v_mfma_f32_16x16x32_bf16 {q4(c)}, {q4(wb+phi*4)}, {q4(hb+di*4)}, {src}")
                if phi < 3 and fill: fill.pop(0)()
            if t + NH < NK: hload(t + NH, di)
        while fill: fill.pop(0)()
        if t == 5: a.stamp(7)
    a.stamp(8)
    a(f"v_add_u32 v4, s45, v{VL}")
    for di in range(1, 4):
        for phi in range(4):
            a(f"ds_write_b128 v4, {q4(ACC+(phi*4+di)*4)} offset:{(di-1)*4096+phi*1024}")
    for di in range(1, 4):
        a(f"s_sub_u32 s56, s40, {di}")
        a("s_and_b32 s56, s56, 3")
        a(f"s_mul_i32 s56, s56, {RING}")
        a(f"v_add_u32 v{4+di}, s56, v{VL}")
    a("s_lshl_b32 s56, s66, 2")
    a("s_add_u32 s56, s56, s40")
    a("s_mul_i32 s57, s56, 205")
    a("s_lshr_b32 s57, s57, 10")
    a("s_mul_i32 s58, s57, 5")
    a("s_sub_u32 s58, s56, s58")
    a("s_mul_i32 s57, s57, 48")
    a("s_lshl_b32 s59, s67, 1")
    a("s_add_u32 s57, s57, s59")
    a("s_mul_i32 s57, s57, 5")
    a("s_add_u32 s57, s57, s58")
    a("s_lshl_b32 s57, s57, 10")
    a(f"s_add_u32 s57, s57, {GF_OFF}")
    a("s_add_u32 s58, s57, 5120")
    a("s_mul_i32 s59, s56, 24")
    a("s_add_u32 s59, s59, s67")
    a(f"s_mul_i32 s59, s59, {FS}")
    a(f"s_add_u32 s59, s59, {FG_OFF}")
    a(f"s_mov_b32 s60, {f2u(GELU_K1):#x}")
    BF, RB, SUM, OUT, TM, K0, ONE = 136, 8, 152, 168, ACC + 4, ACC + 12, ACC + 13
    a.wait(vm='b')
    unpack(a, BF, BI, 8)
    if not EXACT:
        for phi in range(4):
            for h in range(2):
                c = ACC + (phi * 4) * 4 + 2 * h
                a(f"v_pk_add_f32 {pr(c)}, {pr(c)}, {pr(BF+phi*4+2*h)}")
    lds_arrive(a, C_RED, 3, 4)
    for u in range(3): trread2(u)
    lds_wait(a, C_RED, 3, 4, 4)
    for di in range(1, 4):
        for phi in range(4):
            a(f"ds_read_b128 {q4(RB+((di-1)*4+phi)*4)}, v{4+di} offset:{(di-1)*4096+phi*1024}", tag=('p', di))
    for u in range(3, 6): dma2(u)
    a(f"v_mov_b32 v{K0}, {f2u(GELU_K0):#x}")
    for di in range(1, 4):
        a.wait(lg=[('p', di)])
        for phi in range(4):
            for h in range(2):
                s0 = ACC + (phi * 4) * 4 + 2 * h if di == 1 else SUM + phi * 4 + 2 * h
                a(f"v_pk_add_f32 {pr(SUM+phi*4+2*h)}, {pr(s0)}, {pr(RB+((di-1)*4+phi)*4+2*h)}")
    lds_arrive(a, C_RD, 3, ONE)
    n = 16
    if EXACT:
        round_bf16(a, SUM, 8, TM)
        for i in range(0, n, 2): a(f"v_pk_add_f32 {pr(SUM+i)}, {pr(SUM+i)}, {pr(BF+i)}")
        round_bf16(a, SUM, 8, TM)
    for half in range(2):
        R8 = range(8 * half, 8 * half + 8)
        for i in R8[::2]: a(f"v_pk_mul_f32 {pr(BF+i)}, {pr(SUM+i)}, {pr(SUM+i)}")
        for i in R8: a(f"v_fma_f32 v{BF+i}, v{BF+i}, s60, v{K0}")
        for i in R8[::2]: a(f"v_pk_mul_f32 {pr(BF+i)}, {pr(BF+i)}, {pr(SUM+i)}")
        for i in R8: a(f"v_exp_f32 v{BF+i}, v{BF+i}")
        for i in R8: a(f"v_add_f32 v{BF+i}, 1.0, v{BF+i}")
        for i in R8: a(f"v_rcp_f32 v{BF+i}, v{BF+i}")
        for i in R8[::2]: a(f"v_pk_mul_f32 {pr(SUM+i)}, {pr(SUM+i)}, {pr(BF+i)}")
        pack(a, OUT + 4 * half, SUM + 8 * half, 4)
        a(f"buffer_store_dwordx4 {q4(OUT+4*half)}, v{VL}, {WS}, s{57+half} offen {SC}", tag='gs')
    for u in (3, 4): trread2(u)
    a.wait(vm='gs')
    set_flag(a, 59, 4)
    a.stamp(9)
    keep = []
    a("s_or_b32 s56, s2, s40")
    a("s_cmp_lg_u32 s56, 0")
    a("s_cbranch_scc1 KF_NOEP")
    a(f"s_mov_b32 s56, {EP_OFF}")
    set_flag(a, 56, 4)
    a.label("KF_NOEP")
    lds_wait(a, C_RD, 3, 4, 4)
    a("s_branch KF_G2B")
    a.label("KF_G2")
    w2_setup()
    lds_arrive(a, C_RED, 3, 4)
    a(f"v_mov_b32 v3, {C_HIS}")
    a("v_mov_b32 v4, 12")
    a("s_mov_b64 exec, 1")
    a("ds_add_u32 v3, v4")
    a("s_mov_b64 exec, -1")
    lds_arrive(a, C_FT, 3, 4)
    if FTGATE: lds_wait(a, C_FLG, 4, 5, 4, sleep=1)
    if not P2:
        a("v_lshrrev_b32 v3, 5, v2")
        a("v_lshlrev_b32 v3, 12, v3")
        a("v_and_b32 v4, 31, v2")
        a("v_lshl_add_u32 v3, v4, 4, v3")
    else:
        a(f"v_mov_b32 v3, v{VL}")
    a(f"s_mul_i32 s57, s40, {384*4096}")
    a("s_and_b32 s56, s65, 1")
    a(f"s_lshl_b32 s56, s56, {16 if P2 else 17}")
    a("s_add_u32 s57, s57, s56")
    if P2:
        a("s_and_b32 s56, s64, 3")
        a("s_lshl_b32 s56, s56, 10")
    else: a("s_lshl_b32 s56, s64, 9")
    a("s_add_u32 s57, s57, s56")
    a("s_mov_b32 s58, 0")
    a.label("KF_PF")
    for k in range(16):
        a(f"buffer_load_dwordx4 {q4(ACC+4*k)}, v3, {W2}, s57 offen {PFMOD}")
        a(f"s_add_u32 s57, s57, {(1 if P2 else 2)*4096}")
        a("s_waitcnt vmcnt(8)")
    a(f"s_add_u32 s57, s57, {(16 if P2 else 32)*4096}")
    a("s_add_u32 s58, s58, 1")
    a(f"s_cmp_lt_u32 s58, {PFSTEPS if P2 else PFSTEPS//2}")
    a("s_cbranch_scc1 KF_PF")
    for i in range(5, 10): a.stamp(i)
    a.reset_counts()
    for u in range(3): dma2(u)
    for u in range(3): trread2(u)
    a("s_waitcnt lgkmcnt(0)")
    for u in range(3, 6): dma2(u)
    for u in (3, 4): trread2(u)
    a("s_waitcnt vmcnt(0) lgkmcnt(0)")
    a.label("KF_G2B")
    NK = 12
    for u in (6, 7, 8, 9): dma2(u)
    a("s_mul_i32 s57, s62, 48")
    a("s_mul_i32 s56, s40, 12")
    a("s_add_u32 s57, s57, s56")
    a("s_mul_i32 s57, s57, 5120")
    a(f"s_add_u32 s57, s57, {GF_OFF}")
    a("s_mov_b32 s58, s68")
    a(f"v_add_u32 v{VH}, 4096, v{VL}")
    a("v_mul_u32_u24 v3, 43, v2")
    a("v_lshrrev_b32 v3, 8, v3")
    a("v_mul_u32_u24 v3, 18, v3")
    a("v_add_u32 v3, v3, v2")
    a(f"v_mul_u32_u24 v3, {FS}, v3")
    a("s_mul_i32 s59, s62, 120")
    a("s_mul_i32 s56, s40, 6")
    a("s_add_u32 s59, s59, s56")
    a(f"s_mul_i32 s59, s59, {FS}")
    a(f"s_add_u32 s59, s59, {FG_OFF}")
    XS = srd(a, 36, P_Q, XBYTES)
    B2 = srd(a, 52, P_B2, S * 2)
    a(f"v_and_b32 v6, 15, v2")
    a(f"v_lshrrev_b32 v7, 4, v2")
    a("s_movk_i32 s56, 1280")
    a(f"v_mul_u32_u24 v{VH+1}, s56, v6")
    a(f"v_lshl_add_u32 v{VH+1}, v7, 3, v{VH+1}")
    a(f"v_lshlrev_b32 v{VH+2}, 1, v6")
    a("v_lshrrev_b32 v7, 2, v6")
    a("v_lshlrev_b32 v7, 6, v7")
    a("v_and_b32 v6, 3, v6")
    a(f"v_lshl_add_u32 v{VH+3}, v6, 3, v7")
    a("s_lshl_b32 s60, s63, 6")
    a("s_lshl_b32 s56, s40, 4")
    a("s_add_u32 s60, s60, s56")
    a("s_mul_i32 s61, s60, 1280")
    a("s_mul_i32 s56, s62, 160")
    a("s_add_u32 s61, s61, s56")
    STT, B2V = 172, 174
    XRL = [48, 50, 52, 54, 6]
    for i5 in range(5):
        a(f"buffer_load_dwordx2 {pr(XRL[i5])}, v{VH+1}, {XS}, s61 offen offset:{32*i5} {NT}", tag='x')
    a("s_lshl_b32 s56, s60, 1")
    a(f"buffer_load_ushort v{B2V}, v{VH+2}, {B2}, s56 offen", tag='x')
    a.stamp(10)
    a("v_mov_b32 v175, v3")
    a("s_mov_b32 s41, s59")
    a("s_mov_b32 s42, -1")
    def fg_need(ps, first=False):
        m = 0
        for p in ps:
            for i5 in range(5): m |= 1 << (6 * i5 + p)
        Lok = lbl("FGOK"); Lp = lbl("FGP")
        keep = list(a.vm)
        a("s_mov_b32 s70, 0")
        a.label(Lp)
        a(f"s_and_b32 s56, s42, {hex(m)}")
        a(f"s_cbranch_scc0 {Lok}")
        a("s_add_u32 s70, s70, 1")
        a(f"s_cmp_gt_u32 s70, {SPIN_MAX}")
        a(f"s_cbranch_scc1 {Lok}")
        set_exec(a, 30)
        a(f"buffer_load_dwordx2 v[4:5], v175, {WS}, s41 offen {SC}")
        a("s_waitcnt vmcnt(0)")
        a(f"v_cmp_ne_u64 vcc, s[{TAG}:{TAG+1}], v[4:5]")
        a("s_mov_b64 exec, -1")
        a("s_mov_b32 s42, vcc_lo")
        a(f"s_branch {Lp}")
        a.label(Lok)
        a.vm = [] if first else keep
    assert not ROT
    fg_need([0, 1] if PROG else range(6), first=True)
    a.lg = []
    a.stamp(11)
    def gload(t, i):
        gb = GS[t % NG]
        if i == 0:
            a("s_mul_i32 s69, s58, 5120")
            a("s_add_u32 s69, s69, s57")
        if i < 4: a(f"buffer_load_dwordx4 {q4(gb+i*4)}, v{VL}, {WS}, s69 offen offset:{i*1024} {SCL}", tag=('g', t))
        else:
            a(f"buffer_load_dwordx4 {q4(gb+16)}, v{VH}, {WS}, s69 offen {SCL}", tag=('g', t))
            a("s_add_u32 s58, s58, 1")
            a("s_cmp_eq_u32 s58, 12")
            a("s_cselect_b32 s58, 0, s58")
    for t in range(NG):
        for i in range(5): gload(t, i)
    a("s_mul_i32 s59, s62, 80")
    a(f"s_mul_i32 s59, s59, {FS}")
    a(f"s_add_u32 s59, s59, {FZ_OFF}")
    a(f"s_add_u32 s56, s59, {64*FS}")
    a(f"v_add_u32 v3, s56, v{VL}")
    a("s_lshr_b32 s56, s60, 5")
    a(f"s_mul_i32 s56, s56, {4*FS}")
    a(f"s_add_u32 s56, s56, {FA_OFF}")
    a("v_and_b32 v69, 3, v2")
    a("v_lshlrev_b32 v69, 4, v69")
    a("v_add_u32 v69, s56, v69")
    a("v_cmp_gt_u32 vcc, 16, v2")
    a("v_cndmask_b32 v69, v69, v3, vcc")
    a("v_lshrrev_b32 v3, 1, v2")
    a("v_lshlrev_b32 v3, 12, v3")
    a("v_and_b32 v70, 1, v2")
    a("v_lshl_add_u32 v3, v70, 4, v3")
    TZ1, TZ2 = E('TZ1', 5), E('TZ2', 8)
    for t in range(NK):
        wb = WR2 + (t % NR2) * 16
        gb = GS[t % NG]
        if PROG and (t + NG) % 2 == 0 and t + NG < NK and t + NG >= 4: fg_need([(t + NG) // 2])
        fill = []
        if t >= 2 and t - 2 + NR2 + NS2 < NK:
            u = t - 2 + NR2 + NS2
            assert SL2[u] == SL2[u - NS2]
            fill.extend(dma2_parts(u, pre=lambda u=u: a.wait(lg=[('r2', u - NS2)])))
        if t >= 1 and t - 1 + NR2 < NK: fill.extend(trread2_parts(t - 1 + NR2))
        a.wait(vm=[('g', t)], lg=[('r2', t)])
        for i5 in range(5):
            for si in range(4):
                c = ACC + (i5 * 4 + si) * 4
                src = "0" if t == 0 else q4(c)
                if not XNOMFMA or si == 0: a(f"v_mfma_f32_16x16x32_bf16 {q4(c)}, {q4(gb+i5*4)}, {q4(wb+si*4)}, {src}")
                if si < 3 and fill: fill.pop(0)()
            if t + NG < NK: gload(t + NG, i5)
        while fill: fill.pop(0)()
        if t == TZ1:
            a(f"buffer_load_dwordx2 {pr(STT)}, v{VL}, {WS}, s59 offen {SC}", tag='zf')
            a(f"buffer_load_dwordx2 v[70:71], v69, {WS}, 0 offen {SC}", tag='zf')
        if t == TZ2:
            Lok = lbl("ZOK"); Lp = lbl("ZP")
            a.wait(vm='zf')
            keep = list(a.vm)
            a("s_mov_b32 s70, 0")
            a.label(Lp)
            a(f"v_cmp_ne_u64 vcc, s[{TAG}:{TAG+1}], {pr(STT)}")
            a(f"v_cmp_ne_u64 s[66:67], s[{TAG}:{TAG+1}], v[70:71]")
            a("s_or_b64 vcc, vcc, s[66:67]")
            a(f"s_branch {Lok}" if XNOCONV else f"s_cbranch_scc0 {Lok}")
            a("s_add_u32 s70, s70, 1")
            a(f"s_cmp_gt_u32 s70, {SPIN_MAX}")
            a(f"s_cbranch_scc1 {Lok}")
            a(f"buffer_load_dwordx2 {pr(STT)}, v{VL}, {WS}, s59 offen {SC}")
            a(f"buffer_load_dwordx2 v[70:71], v69, {WS}, 0 offen {SC}")
            a("s_waitcnt vmcnt(0)")
            a(f"s_branch {Lp}")
            a.label(Lok)
            a.vm = keep
            a(f"s_mul_i32 s59, s62, {80*4096}")
            a("s_lshl_b32 s56, s60, 1")
            a("s_add_u32 s59, s59, s56")
            a(f"s_add_u32 s59, s59, {Z_OFF}")
            for k in range(3):
                a(f"s_add_u32 m0, s45, {2*4096 + k*1024}")
                if k == 2: set_exec(a, 32)
                a(f"buffer_load_dwordx4 v3, {WS}, s59 offen {SC} lds", tag='z')
                if k == 2: a("s_mov_b64 exec, -1")
                a(f"s_add_u32 s59, s59, {32*4096}")
            a("s_lshr_b32 s59, s60, 5")
            a("s_lshl_b32 s59, s59, 8")
            a("s_and_b32 s56, s60, 16")
            a("s_lshl_b32 s56, s56, 1")
            a("s_add_u32 s59, s59, s56")
            a(f"s_add_u32 s59, s59, {ST_OFF}")
            a(f"buffer_load_dwordx2 {pr(STT)}, v{VH+3}, {WS}, s59 offen {SC}", tag='z')
        if t == 3: a.stamp(12)
    a.stamp(13)
    a(f"v_add_u32 v4, s45, v{VL}")
    def red_off(si, i5):
        k = (si - 1) * 5 + i5
        return (k if k < 8 else k + 4) * 1024
    for si in range(1, 4):
        for i5 in range(5):
            a(f"ds_write_b128 v4, {q4(ACC+(i5*4+si)*4)} offset:{red_off(si, i5)}")
    XF, XN, TP, ZR, ZF = 176, 196, 216, 226, 8
    for i5 in range(5):
        unpack(a, XF + 4 * i5, XRL[i5], 2)
    for si in range(1, 4):
        a(f"s_sub_u32 s56, s40, {si}")
        a("s_and_b32 s56, s56, 3")
        a(f"s_mul_i32 s56, s56, {RING}")
        a(f"v_add_u32 v{4+si}, s56, v{VL}")
    a("v_lshlrev_b32 v48, 3, v2")
    a("v_add_u32 v48, s45, v48")
    a(f"v_lshlrev_b32 v{B2V}, 16, v{B2V}")
    OUTS = srd(a, 52, P_OUT, XBYTES)
    a.wait(vm='z')
    for i5 in range(5):
        a(f"ds_read_b64_tr_b16 {pr(ZR+2*i5)}, v48 offset:{8192+i5*512}", tag='zr')
    for i in range(10):
        a(f"v_pk_add_f32 {pr(XN+2*i)}, {pr(XF+2*i)}, {pr(STT)} op_sel_hi:[1,0] neg_lo:[0,1] neg_hi:[0,1]")
    lds_arrive(a, C_RED, 3, 49)
    round_bf16(a, XN, 10, TP)
    for i in range(10):
        a(f"v_pk_mul_f32 {pr(XN+2*i)}, {pr(XN+2*i)}, {pr(STT)} op_sel:[0,1] op_sel_hi:[1,1]")
    round_bf16(a, XN, 10, TP)
    unpack(a, ZF, ZR, 10)
    if EXACT:
        for i in range(10): a(f"v_pk_mul_f32 {pr(ZF+2*i)}, {pr(ZF+2*i)}, {pr(XN+2*i)}")
        round_bf16(a, ZF, 10, TP)
        for i in range(10): a(f"v_pk_add_f32 {pr(ZF+2*i)}, {pr(ZF+2*i)}, {pr(XF+2*i)}")
        round_bf16(a, ZF, 10, TP)
    else:
        for i in range(10): a(f"v_pk_fma_f32 {pr(ZF+2*i)}, {pr(ZF+2*i)}, {pr(XN+2*i)}, {pr(XF+2*i)}")
        for i in range(10): a(f"v_pk_add_f32 {pr(ZF+2*i)}, {pr(ZF+2*i)}, {pr(B2V)} op_sel_hi:[1,0]")
        for i5 in range(5):
            for h in range(2):
                c = ACC + (i5 * 4) * 4 + 2 * h
                a(f"v_pk_add_f32 {pr(c)}, {pr(c)}, {pr(ZF+4*i5+2*h)}")
    lds_wait(a, C_RED, 3, 49, 8)
    for si in range(1, 4):
        for i5 in range(5):
            a(f"ds_read_b128 {q4(ACC+(i5*4+si)*4)}, v{4+si} offset:{red_off(si, i5)}", tag=('p', si))
    for si in range(1, 4):
        a.wait(lg=[('p', si)])
        for i5 in range(5):
            for h in range(2):
                c = ACC + (i5 * 4) * 4 + 2 * h
                a(f"v_pk_add_f32 {pr(c)}, {pr(c)}, {pr(c+4*si)}")
    for i5 in range(5):
        for h in range(2):
            c = ACC + (i5 * 4) * 4 + 2 * h
            a(f"v_cvt_pk_bf16_f32 v{TP+2*i5+h}, v{c}, v{c+1}")
    if EXACT:
        YF = XN
        unpack(a, YF, TP, 10)
        for i in range(10): a(f"v_pk_add_f32 {pr(YF+2*i)}, {pr(YF+2*i)}, {pr(B2V)} op_sel_hi:[1,0]")
        round_bf16(a, YF, 10, TP)
        for i in range(10): a(f"v_pk_add_f32 {pr(YF+2*i)}, {pr(YF+2*i)}, {pr(ZF+2*i)}")
        pack(a, TP, YF, 10)
    for i5 in range(5):
        a(f"buffer_store_dwordx2 {pr(TP+2*i5)}, v{VH+1}, {OUTS}, s61 offen offset:{32*i5} {OUTMOD}")
    a.flush_stamps(0, 14, vt=250, ws=P_WS)
    a("s_endpgm")

def gen_aux(a):
    a("s_setprio 3")
    a("s_sub_u32 s64, s40, 4")
    a("s_and_b32 s66, s2, 7")
    a("s_lshl_b32 s66, s66, 2")
    a("s_lshr_b32 s67, s2, 3")
    a("s_and_b32 s56, s67, 3")
    a("s_add_u32 s66, s66, s56")
    a("s_lshr_b32 s67, s67, 2")
    a("s_mul_i32 s68, s66, 81920")
    a("s_mul_i32 s56, s67, 160")
    a("s_add_u32 s68, s68, s56")
    a("s_lshl_b32 s56, s64, 6")
    a("v_add_u32 v56, s56, v2")
    a("s_lshl_b32 s57, s64, 10")
    a("s_sub_u32 s58, s68, 3840")
    a("s_movk_i32 s59, 1280")
    a("v_mov_b32 v63, -1")
    for i in range(3):
        if i: a("v_add_u32 v56, 256, v56")
        a("v_mul_u32_u24 v57, 729, v56")
        a("v_lshrrev_b32 v57, 16, v57")
        a("v_mul_u32_u24 v58, 90, v57")
        a("v_sub_u32 v58, v56, v58")
        a("v_mul_u32_u24 v59, 205, v58")
        a("v_lshrrev_b32 v59, 11, v59")
        a("v_mul_u32_u24 v60, 10, v59")
        a("v_sub_u32 v60, v58, v60")
        a("v_lshl_add_u32 v61, v59, 3, v57")
        a("v_lshlrev_b32 v60, 4, v60")
        a("v_mad_u32_u24 v60, v61, s59, v60")
        a("v_add_u32 v60, s58, v60")
        a("v_cmp_gt_u32 vcc, 67, v61")
        a("v_cndmask_b32 v60, v63, v60, vcc")
        a("v_cmp_gt_u32 vcc, 8, v57")
        a(f"v_cndmask_b32 v{40+i}, v63, v60, vcc")
    a("v_add_u32 v56, s56, v2")
    for i in range(3):
        if i: a("v_add_u32 v56, 256, v56")
        a("v_mul_u32_u24 v57, 820, v56")
        a("v_lshrrev_b32 v57, 16, v57")
        a("v_mul_u32_u24 v58, 80, v57")
        a("v_sub_u32 v58, v56, v58")
        a("v_mul_u32_u24 v59, 205, v58")
        a("v_lshrrev_b32 v59, 11, v59")
        a("v_mul_u32_u24 v60, 10, v59")
        a("v_sub_u32 v60, v58, v60")
        a("v_lshl_add_u32 v61, v59, 3, v57")
        a("v_lshlrev_b32 v60, 4, v60")
        a(f"v_mad_u32_u24 v{43+i}, v61, s59, v60")
    a("s_lshl_b32 s67, s67, 2")
    a("s_add_u32 s67, s67, s64")
    a("v_mul_u32_u24 v56, 52, v2")
    a("v_lshrrev_b32 v56, 8, v56")
    a("v_mul_u32_u24 v57, 5, v56")
    a("v_sub_u32 v57, v2, v57")
    a("v_lshlrev_b32 v61, 5, v57")
    a("s_mul_i32 s69, s67, 160")
    KR, VR, SK = 64, 86, 102
    a("s_movk_i32 s56, 160")
    a("v_mul_u32_u24 v58, s56, v56")
    a("v_lshl_add_u32 v58, v57, 3, v58")
    a("s_mul_i32 s56, s64, 40")
    a(f"s_add_u32 s56, s56, {L_KS}")
    a("v_add_u32 v58, s56, v58")
    a("s_lshl_b32 s41, s64, 8")
    a("s_sub_u32 s42, 255, s2")
    a("s_add_u32 s41, s41, s42")
    a(f"s_mul_i32 s42, s64, {HCOPY}")
    a(f"s_add_u32 s42, s42, {L_H}")
    a(f"s_mul_i32 s43, s64, {KB_CH}")
    a(f"s_add_u32 s43, s43, {L_K}")
    a("v_lshlrev_b32 v3, 4, v2")
    a("s_lshl_b32 s62, s41, 12")
    a("v_mov_b32 v4, 0")
    common_entry(a)
    KS = srd(a, 44, P_K, XBYTES)
    VS = srd(a, 48, P_V, XBYTES)
    SKS = srd(a, 52, P_SK, D * 8)
    SM = srd(a, 36, P_SSMK, D * S * 2)
    a("s_barrier")
    a.stamp(1)
    for i in range(3):
        a(f"s_add_u32 m0, s57, {L_KS + i*4096}")
        a(f"buffer_load_dwordx4 v{40+i}, {KS}, 0 offen {NT} lds")
    for i in range(2):
        a(f"s_add_u32 m0, s57, {L_VS + i*4096}")
        a(f"buffer_load_dwordx4 v{43+i}, {VS}, s68 offen {NT} lds")
    Ls = lbl("NOV")
    a("s_cmp_ge_u32 s64, 2")
    a(f"s_cbranch_scc1 {Ls}")
    a(f"s_add_u32 m0, s57, {L_VS + 2*4096}")
    a(f"buffer_load_dwordx4 v45, {VS}, s68 offen {NT} lds")
    a.label(Ls)
    tag_ready(a)
    lds_arrive(a, C_LNW, 5, 6)
    a(f"buffer_load_dwordx4 {q4(SK)}, v61, {SKS}, s69 offen")
    a(f"buffer_load_dwordx4 {q4(SK+4)}, v61, {SKS}, s69 offen offset:16")
    HL, HN = 192, 208
    def ssm_loads():
        for t in range(4):
            a(f"buffer_load_dwordx4 {q4(HL+4*t)}, v3, {SM}, s62 offen offset:{t*1024} {NT}")
        for t in range(4):
            a(f"buffer_load_dwordx2 {pr(HN+2*t)}, v3, {SM}, s62 offen offset:{t*1024+16}")
        SD = srd(a, 44, P_SSMD, D * 2)
        a("s_lshl_b32 s56, s41, 1")
        a(f"buffer_load_ushort v8, v4, {SD}, s56 offen")
    if not SSMLATE: ssm_loads()
    a.stamp(2)
    srd(a, 32, P_WS, WS_TOTAL)
    a(f"s_waitcnt vmcnt({0 if SSMLATE else 9})")
    a.vm = []
    a.stamp(3)
    lds_arrive(a, C_KVL, 5, 6)
    a("v_lshrrev_b32 v12, 3, v2")
    a("v_and_b32 v13, 7, v2")
    a("v_lshlrev_b32 v9, 14, v12")
    a("v_lshl_add_u32 v9, v13, 4, v9")
    a(f"s_mul_i32 s57, s67, {20*4096}")
    a("s_lshl_b32 s56, s66, 7")
    a("s_add_u32 s57, s57, s56")
    a(f"s_add_u32 s57, s57, {KVR_OFF}")
    a("s_mul_i32 s58, s64, 768")
    a(f"s_add_u32 s58, s58, {L_KVT}")
    a("s_movk_i32 s56, 144")
    a("v_mul_u32_u24 v10, s56, v57")
    a("v_lshl_add_u32 v10, v56, 4, v10")
    a("v_add_u32 v10, s58, v10")
    a("v_mul_u32_u24 v11, s56, v12")
    a("v_lshl_add_u32 v11, v13, 4, v11")
    a("v_add_u32 v11, s58, v11")
    lds_wait(a, C_KVL, 5, 6, 4)
    set_exec(a, 40)
    for t in range(11):
        a(f"ds_read_b64 {pr(KR+2*t)}, v58 offset:{(t % 8)*1440 + (t // 8)*160}")
    for t in range(8):
        a(f"ds_read_b64 {pr(VR+2*t)}, v58 offset:{12*1024 + t*1280}")
    a("s_waitcnt lgkmcnt(0)")
    W, KF, VF, O = 112, 120, 142, 160
    for p in range(2):
        for e in range(2):
            c = 2 * p + e
            a(f"v_lshlrev_b32 v{W+0+e}, 16, v{SK+2*c}")
            a(f"v_and_b32 v{W+2+e}, 0xffff0000, v{SK+2*c}")
            a(f"v_lshlrev_b32 v{W+4+e}, 16, v{SK+2*c+1}")
            a(f"v_and_b32 v{W+6+e}, 0xffff0000, v{SK+2*c+1}")
        for t in range(11):
            a(f"v_lshlrev_b32 v{KF+2*t}, 16, v{KR+2*t+p}")
            a(f"v_and_b32 v{KF+2*t+1}, 0xffff0000, v{KR+2*t+p}")
        for t in range(8):
            a(f"v_lshlrev_b32 v{VF+2*t}, 16, v{VR+2*t+p}")
            a(f"v_and_b32 v{VF+2*t+1}, 0xffff0000, v{VR+2*t+p}")
        for r in range(8):
            a(f"v_pk_mul_f32 {pr(KF+2*r)}, {pr(KF+2*r)}, {pr(W+6)}")
            a(f"v_pk_fma_f32 {pr(KF+2*r)}, {pr(KF+2*(r+1))}, {pr(W+4)}, {pr(KF+2*r)}")
            a(f"v_pk_fma_f32 {pr(KF+2*r)}, {pr(KF+2*(r+2))}, {pr(W+2)}, {pr(KF+2*r)}")
            a(f"v_pk_fma_f32 {pr(KF+2*r)}, {pr(KF+2*(r+3))}, {pr(W+0)}, {pr(KF+2*r)}")
        for r in range(8):
            a(f"v_pk_mul_f32 {pr(VF+2*r)}, {pr(VF+2*r)}, {pr(KF+2*r)}")
        for e in range(2):
            Ob = O + 8 * p + 4 * e
            for q in range(4):
                a(f"v_cvt_pk_bf16_f32 v{Ob+q}, v{VF+2*(7-2*q)+e}, v{VF+2*(6-2*q)+e}")
            a(f"ds_write_b128 v10, {q4(Ob)}")
            a(f"ds_read_b128 {q4(Ob)}, v11")
    a("s_waitcnt lgkmcnt(0)")
    for c in range(4):
        a(f"buffer_store_dwordx4 {q4(O+4*c)}, v9, {WS}, s57 offen {SC}", tag='ks')
        a("s_add_u32 s57, s57, 4096")
    a("s_mov_b64 exec, -1")
    a.stamp(4)
    lds_arrive(a, C_KVD, 5, 6)
    a("s_lshl_b32 s59, s67, 5")
    a("s_add_u32 s59, s59, s66")
    a(f"s_mul_i32 s59, s59, {FS}")
    a(f"s_add_u32 s59, s59, {FK_OFF}")
    a(f"s_cmp_ge_u32 s41, {0 if XNOCONV else D}")
    a("s_cbranch_scc1 KF_NOCONV")
    a.wait(vm='ks')
    set_flag(a, 59, 12)
    lds_arrive(a, C_FLG, 5, 6)
    a.stamp(5)
    if SSMLATE:
        lds_wait(a, C_FLG, 5, 6, 4)
        ssm_loads()
    lds_wait(a, C_KVD, 5, 6, 4)
    lds_wait(a, C_LNR, 5, 6, 4)
    a("s_waitcnt vmcnt(0)")
    a("v_add_u32 v9, s42, v3")
    TA = 216
    for t in range(4):
        d = [HL + 4 * t + i for i in range(4)] + [HN + 2 * t, HN + 2 * t + 1]
        a(f"ds_write_b128 v9, {q4(d[0])} offset:{32+t*1024}")
        for i in range(4): a(f"v_alignbit_b32 v{TA+i}, v{d[i+1]}, v{d[i]}, 16")
        for i in range(4): a(f"v_mov_b32 v{TA+4+i}, v{d[i+1]}")
        for i in range(4): a(f"v_alignbit_b32 v{TA+8+i}, v{d[i+2]}, v{d[i+1]}, 16")
        for j in range(1, 4):
            a(f"ds_write_b128 v9, {q4(TA+4*(j-1))} offset:{j*HJ+32+t*1024}")
        TA = 216 + 12 * ((t + 1) & 1)
    a(f"v_readfirstlane_b32 s60, v{HL}")
    a(f"v_readfirstlane_b32 s61, v{HL+1}")
    a("v_mov_b32 v6, s60")
    a("v_mov_b32 v7, s61")
    a("v_lshlrev_b32 v9, 3, v2")
    a("v_add_u32 v9, s43, v9")
    a("v_mov_b32 v5, 0")
    a("ds_write_b64 v9, v[4:5]")
    a("v_and_b32 v11, 15, v2")
    a("v_lshrrev_b32 v12, 4, v2")
    a("v_add_u32 v13, 1, v11")
    a("v_and_b32 v14, 3, v13")
    a(f"s_movk_i32 s56, {HJ}")
    a("v_mul_u32_u24 v10, s56, v14")
    a("v_and_b32 v14, 0x1c, v13")
    a("v_lshl_add_u32 v10, v14, 1, v10")
    a("v_lshl_add_u32 v10, v12, 4, v10")
    a("v_add_u32 v10, s42, v10")
    a("v_lshlrev_b32 v15, 1, v11")
    a("v_sub_u32 v15, v15, v12")
    a("v_lshlrev_b32 v15, 4, v15")
    a(f"s_add_u32 s57, s43, {33*16-448}")
    a("v_add_u32 v15, s57, v15")
    a("v_lshrrev_b32 v16, 2, v2")
    a("v_and_b32 v17, 3, v2")
    a("v_mul_u32_u24 v18, s56, v16")
    a("v_lshl_add_u32 v18, v17, 3, v18")
    a("v_add_u32 v18, s42, v18")
    a("v_lshlrev_b32 v19, 4, v16")
    a("v_sub_u32 v19, 64, v19")
    a("v_lshlrev_b32 v20, 3, v12")
    a("v_add_u32 v20, v20, v11")
    a("v_sub_u32 v20, 15, v20")
    a("v_and_b32 v21, 1, v20")
    a("v_lshlrev_b32 v21, 4, v21")
    a("v_lshrrev_b32 v20, 1, v20")
    a("v_lshlrev_b32 v22, 5, v11")
    a("v_lshl_add_u32 v22, v12, 3, v22")
    a("s_mul_i32 s59, s41, 3277")
    a("s_lshr_b32 s59, s59, 16")
    a(f"s_mul_i32 s59, s59, {32*FS}")
    a(f"s_add_u32 s59, s59, {FK_OFF}")
    if FKGATE: lds_wait(a, C_FT, 28, 29, 4, sleep=2)
    poll(a, 3, 59, 28, 32, sleep=PSLEEP)
    a.stamp(6)
    a("s_add_u32 m0, s43, 512")
    a(f"s_add_u32 s57, s62, {KVR_OFF}")
    for t in range(4):
        a(f"buffer_load_dwordx4 v3, {WS}, s57 offen offset:{t*1024} {SC} lds")
    a("v_lshlrev_b64 v[6:7], v19, v[6:7]")
    a("s_mov_b32 s60, 0x8880")
    a("s_mov_b32 s61, 0")
    a("v_cndmask_b32 v6, 0, v6, s[60:61]")
    a("v_cndmask_b32 v7, 0, v7, s[60:61]")
    a("s_mov_b64 exec, 0xffff")
    a("ds_write_b64 v18, v[6:7]")
    a("s_mov_b64 exec, -1")
    a("v_lshlrev_b32 v8, v21, v8")
    DF = 24
    for j in range(4):
        a(f"v_cmp_eq_u32 vcc, {j}, v20")
        a(f"v_cndmask_b32 v{DF+j}, 0, v8, vcc")
    CACC, AB, BB = 32, 64, 128
    def rd(r, idx):
        buf = (r & 1) * 32
        if idx < 8:
            q = 8 * idx - r
            a(f"ds_read_b128 {q4(BB+buf+idx*4)}, v15 offset:{64*(q+7)}")
        else:
            kap = idx - 8
            k = 8 * kap + r
            a(f"ds_read_b64 {pr(AB+buf+kap*4)}, v10 offset:{64*k}")
            a(f"ds_read_b64 {pr(AB+buf+kap*4+2)}, v10 offset:{64*k+8}")
    for idx in range(8, 16): rd(0, idx)
    a(f"s_setprio {E('CVPRIO', 0)}")
    a("s_waitcnt vmcnt(0)")
    a.stamp(7)
    for idx in range(8): rd(0, idx)
    for r in range(8):
        buf = (r & 1) * 32
        a("s_waitcnt lgkmcnt(0)")
        if r == CVPAUSE:
            lds_wait(a, C_RED, 5, 6, 4, sleep=4)
        seq = []
        if r == 0:
            for n in range(8): seq.append(('d', n))
        for kap in range(8):
            for n in range(kap, 8): seq.append((kap, n))
        nxt = list(range(16)) if r < 7 else []
        for i, (kap, n) in enumerate(seq):
            c = q4(CACC + n * 4)
            if kap == 'd':
                a(f"v_mfma_f32_16x16x32_bf16 {c}, {q4(DF)}, {q4(BB+buf+n*4)}, 0")
            else:
                a(f"v_mfma_f32_16x16x32_bf16 {c}, {q4(AB+buf+kap*4)}, {q4(BB+buf+(n-kap)*4)}, {c}")
            if nxt and i % 2 == 0:
                rd(r + 1, nxt.pop(0))
        if r == 3: a.stamp(8)
    a.stamp(9)
    a("s_setprio 3")
    a(f"s_add_u32 s57, s62, {Z_OFF}")
    for n in range(8):
        a(f"v_cvt_pk_bf16_f32 v{AB+2*n}, v{CACC+4*n}, v{CACC+4*n+1}")
        a(f"v_cvt_pk_bf16_f32 v{AB+2*n+1}, v{CACC+4*n+2}, v{CACC+4*n+3}")
        a(f"buffer_store_dwordx2 {pr(AB+2*n)}, v22, {WS}, s57 offen offset:{512*n} {SC}")
    a(f"s_mul_i32 s59, s41, {FS}")
    a(f"s_add_u32 s59, s59, {FZ_OFF}")
    a("s_waitcnt vmcnt(0)")
    set_flag(a, 59, 12)
    a.stamp(10)
    a.flush_stamps(0, 11, vt=250, ws=P_WS)
    a("s_endpgm")
    a.label("KF_NOCONV")
    a("s_waitcnt vmcnt(0)")
    set_flag(a, 59, 12)
    lds_arrive(a, C_FLG, 5, 6)
    a.stamp(5)
    if PFSTEPS < 12 and not XNOW2:
        a("s_cmp_lg_u32 s64, 3")
        a("s_cbranch_scc1 KF_AUXEND")
        nrow = (12 - PFSTEPS) * (32 if P2 else 16)
        a("s_lshr_b32 s60, s2, 3")
        a("s_and_b32 s61, s2, 7")
        if not P2:
            a("s_lshr_b32 s57, s60, 2")
            a("s_and_b32 s56, s60, 3")
            a("s_lshl_b32 s58, s61, 2")
            a("s_add_u32 s56, s56, s58")
        else:
            a("s_lshr_b32 s57, s60, 3")
            a("s_and_b32 s58, s61, 4")
            a("s_add_u32 s57, s57, s58")
            a("s_and_b32 s56, s60, 7")
            a("s_and_b32 s58, s61, 3")
            a("s_lshl_b32 s58, s58, 3")
            a("s_add_u32 s56, s56, s58")
        if not P2:
            a("s_lshr_b32 s58, s57, 1")
            a("s_mul_i32 s58, s58, 384")
            a("s_and_b32 s57, s57, 1")
            a(f"s_mul_i32 s57, s57, {nrow}")
            a("s_add_u32 s57, s57, s58")
        else:
            a("s_and_b32 s57, s57, 3")
            a("s_mul_i32 s57, s57, 384")
        a(f"s_add_u32 s57, s57, {32*PFSTEPS}")
        a("s_lshl_b32 s57, s57, 12")
        a("s_lshl_b32 s56, s56, 7")
        a("s_add_u32 s57, s57, s56")
        a("v_lshrrev_b32 v59, 3, v2")
        a("v_and_b32 v60, 7, v2")
        a("v_lshlrev_b32 v60, 4, v60")
        a("v_lshl_add_u32 v62, v59, 12, v60")
        W2 = srd(a, 36, P_W2, S * F * 2)
        if STAG:
            a("s_lshr_b32 s58, s2, 3")
            a(f"s_and_b32 s58, s58, {STAG-1}")
            a(f"s_add_u32 s58, s58, {STAG0}")
            a("s_lshl_b32 s58, s58, 2")
            lds_wait(a, C_HIS, 5, 6, "s58", sleep=4)
        else:
            lds_wait(a, C_HIS, 5, 6, 48, sleep=4)
        for k in range(nrow // 8):
            a(f"buffer_load_dwordx4 {q4(64+4*(k%40))}, v62, {W2}, s57 offen {NTW}")
            a(f"s_add_u32 s57, s57, {8*4096}")
    a.label("KF_AUXEND")
    a.flush_stamps(0, 6, vt=250, ws=P_WS)

NAME = "parallel_sum__ssm_conv_h3__mixer_token_mlp__prompt"
def build(path, as_list=True):
    ref = open(f"cdna_kernels/{NAME}.s.ref").read().split("\n")
    hdr = [l for l in ref if l.startswith(";") and "@launch" not in l and "Override launch" not in l and "grid=ceil" not in l]
    kn = NAME + "_kernel"
    t, d = gen(kn)
    s = "\n".join(hdr) + "\n"
    if as_list: s += f"; @launch kernel={kn} grid=(256,1,1) block=({THREADS},1,1) lds={LDS_TOTAL}\n"
    else: s += f"; @launch grid=(256,1,1) block=({THREADS},1,1) lds={LDS_TOTAL}\n"
    s += '.amdgcn_target "amdgcn-amd-amdhsa--gfx950"\n' + t + d
    open(path, "w").write(s)
if __name__ == "__main__":
    import sys
    build(sys.argv[1], as_list=(len(sys.argv) <= 2))
```

```python
from asmlib import *
import os, struct, math
E = lambda k, d: type(d)(os.environ.get(k, d))

S, D, F = 2048, 640, 1536
XBYTES = S * D * 2
EP_OFF = 0
FA_OFF = 0x1000
FK_OFF = 0xB000
FG_OFF = 0xF000
FZ_OFF = 0x13000
ST_OFF = 0x16000
HF_OFF = 0x20000
KVR_OFF = 0x2A0000
Z_OFF = 0x520000
GF_OFF = 0x7A0000
WS_TOTAL = 0x980000
FS = 16

NS = 6
RING = NS * 4096
HCOPY = 4160
HB_CH = 4 * HCOPY
KB_CH = 512 + 4096
L_H = 4 * RING
L_K = L_H + 3 * HB_CH
L_MISC = L_K + 3 * KB_CH
L_CNT = L_MISC
L_ST = L_MISC + 64
LDS_TOTAL = L_MISC + 128 + 1024
HJ = 3 * HCOPY
L_KS = L_H + HJ
L_VS = L_KS + 12 * 1024
L_KVT = L_VS + 10 * 1024
assert L_KVT + 4 * 768 <= L_K
C_RED, C_RD, C_KVL, C_KVD, C_LNW, C_LNR, C_HIS, C_FLG, C_FT, C_FGD, C_ZL, C_E, C_P2 = [L_CNT + 4 * i for i in range(13)]
ZT = E('ZT', 2)
W2PRE = E('W2PRE', 8)
assert LDS_TOTAL <= 163840
THREADS = 512
NT = os.environ.get('NT', '')
CODEPF = E('CODEPF', 1)
XNOCONV = E('XNOCONV', 0)
XNOW2 = E('XNOW2', 0)
XNOMFMA = E('XNOMFMA', 0)
FTA = E('FTA', 1)
SSMLATE = E('SSMLATE', 0)
P1 = E('P1', 0)
P2 = E('P2', 0)
STAG = E('STAG', 8)
STAG0 = E('STAG0', 1)
PROG = E('PROG', 1)
OUTMOD = os.environ.get('OUTMOD', '')
NTW = os.environ.get('NTW', NT)
SC = "sc1"
SCL = os.environ.get("SCL", "sc1")
NTB = os.environ.get("NTB", "")
FT0 = E("FT0", 0)
PRE1 = E("PRE1", 12)
LEADD = E("LEADD", 12)
LEADR = E("LEADR", 6)
PFSTEPS = E("PFSTEPS", 4)
FTGATE = E("FTGATE", 1)
FKGATE = E("FKGATE", 1)
CVPAUSE = E("CVPAUSE", 8)
SPIN_MAX = 1 << 16
FT1 = E('FT1', 2)
NR1, NH = 6, 4
NR2, NS2, NG = 5, 5, 3
ROT = E('ROT', 0)
PSLEEP = E('PSLEEP', 6)
FTWAIT = E('FTWAIT', 1)
PFMOD = os.environ.get('PFMOD', '')
W2EARLY = E('W2EARLY', 0)
EXACT = E('EXACT', 1)
W2SIG = E('W2SIG', 0)

def f2u(x): return struct.unpack('<I', struct.pack('<f', x))[0]
GELU_K0 = -2.0 * math.sqrt(2.0 / math.pi) * math.log2(math.e)
GELU_K1 = GELU_K0 * 0.044715
def pr(r): return f"v[{r}:{r+1}]"
def q4(r): return f"v[{r}:{r+3}]"

P_Q, P_K, P_V, P_SK, P_SSMK, P_SSMD, P_BX, P_W1, P_B1, P_W2, P_B2, P_OUT, P_WS = 4, 6, 8, 10, 12, 14, 16, 18, 20, 22, 24, 26, 28
TAG = 30
WS = "s[32:35]"

def srd(a, d, base, nbytes):
    a(f"s_mov_b32 s{d}, s{base}")
    a(f"s_and_b32 s{d+1}, s{base+1}, 0xffff")
    a(f"s_mov_b32 s{d+2}, {nbytes}")
    a(f"s_mov_b32 s{d+3}, 0x00020000")
    return f"s[{d}:{d+3}]"

def reduce2(a, x, y, tx, ty):
    for m in ("quad_perm:[1,0,3,2]", "quad_perm:[2,3,0,1]", "row_half_mirror", "row_mirror"):
        a(f"v_add_f32_dpp v{x}, v{x}, v{x} {m} row_mask:0xf bank_mask:0xf")
        a(f"v_add_f32_dpp v{y}, v{y}, v{y} {m} row_mask:0xf bank_mask:0xf")
    for p in ("v_permlane16_swap_b32", "v_permlane32_swap_b32"):
        a(f"v_mov_b32 v{tx}, v{x}")
        a(f"v_mov_b32 v{ty}, v{y}")
        a(f"{p} v{x}, v{tx}")
        a(f"{p} v{y}, v{ty}")
        a(f"v_add_f32 v{x}, v{x}, v{tx}")
        a(f"v_add_f32 v{y}, v{y}, v{ty}")

def unpack(a, dst, src, n):
    for i in range(n):
        a(f"v_lshlrev_b32 v{dst+2*i}, 16, v{src+i}")
        a(f"v_and_b32 v{dst+2*i+1}, 0xffff0000, v{src+i}")

def pack(a, dst, src, n):
    for i in range(n):
        a(f"v_cvt_pk_bf16_f32 v{dst+i}, v{src+2*i}, v{src+2*i+1}")

def round_bf16(a, reg, n2, tmp):
    pack(a, tmp, reg, n2); unpack(a, reg, tmp, n2)

_uid = [0]
def lbl(p):
    _uid[0] += 1
    return f"{p}_{_uid[0]}"

def set_exec(a, n):
    m = (1 << n) - 1
    a(f"s_mov_b32 exec_lo, {hex(m & 0xffffffff)}")
    a(f"s_mov_b32 exec_hi, {hex(m >> 32)}")

def poll(a, vaddr, soff, vt, nlanes=64, sleep=0):
    L = lbl("POLL"); Lx = lbl("POLLX")
    a("s_mov_b32 s70, 0")
    if nlanes < 64: set_exec(a, nlanes)
    a.label(L)
    a(f"buffer_load_dwordx2 {pr(vt)}, v{vaddr}, {WS}, s{soff} offen {SC}")
    a("s_add_u32 s70, s70, 1")
    a("s_waitcnt vmcnt(0)")
    a(f"v_cmp_ne_u64 vcc, s[{TAG}:{TAG+1}], {pr(vt)}")
    a(f"s_cmp_gt_u32 s70, {SPIN_MAX}")
    a(f"s_cbranch_scc1 {Lx}")
    a(f"s_cbranch_vccz {Lx}")
    if sleep: a(f"s_sleep {sleep}")
    a(f"s_branch {L}")
    a.label(Lx)
    if nlanes < 64: a("s_mov_b64 exec, -1")

def set_flag(a, soff, vt):
    a(f"v_mov_b32 v{vt}, s{TAG}")
    a(f"v_mov_b32 v{vt+1}, s{TAG+1}")
    a(f"v_mov_b32 v{vt+2}, 0")
    a("s_mov_b64 exec, 1")
    a(f"buffer_store_dwordx2 {pr(vt)}, v{vt+2}, {WS}, s{soff} offen {SC}")
    a("s_mov_b64 exec, -1")

def lds_sync(a, cnt_off, va, vb, target):
    L = lbl("LSYNC"); Lx = lbl("LSYNCX")
    a(f"v_mov_b32 v{va}, {cnt_off}")
    a(f"v_mov_b32 v{vb}, 1")
    a("s_waitcnt lgkmcnt(0)")
    a("s_mov_b64 exec, 1")
    a(f"ds_add_u32 v{va}, v{vb}")
    a("s_mov_b64 exec, -1")
    a("s_mov_b32 s70, 0")
    a.label(L)
    a(f"ds_read_b32 v{vb}, v{va}")
    a("s_add_u32 s70, s70, 1")
    a("s_waitcnt lgkmcnt(0)")
    a(f"v_readfirstlane_b32 s71, v{vb}")
    a(f"s_cmp_gt_u32 s70, {SPIN_MAX*4}")
    a(f"s_cbranch_scc1 {Lx}")
    a(f"s_cmp_lt_u32 s71, {target}")
    a(f"s_cbranch_scc1 {L}")
    a.label(Lx)

class Coll:
    def __init__(self): self.l = []
    def __call__(self, t, tag=None): self.l.append(t)

def reduce2c(a, x, y, tx, ty): reduce2(a, x, y, tx, ty)

def ln_row(RAW, X, T, Q, sh):
    a = Coll()
    S1, S1h, S2, S2h, M, R = Q, Q + 1, Q + 2, Q + 3, Q + 4, Q + 5
    unpack(a, X, RAW, 5)
    a(f"v_readfirstlane_b32 s{sh}, v{X}")
    for i in range(10): a(f"v_subrev_f32 v{T+i}, s{sh}, v{X+i}")
    def sums(src):
        a(f"v_pk_add_f32 {pr(S1)}, {pr(src)}, {pr(src+2)}")
        a(f"v_pk_mul_f32 {pr(S2)}, {pr(src)}, {pr(src)}")
        for i in range(1, 5):
            if i >= 2: a(f"v_pk_add_f32 {pr(S1)}, {pr(S1)}, {pr(src+2*i)}")
            a(f"v_pk_fma_f32 {pr(S2)}, {pr(src+2*i)}, {pr(src+2*i)}, {pr(S2)}")
        a(f"v_add_f32 v{S1}, v{S1}, v{S1h}")
        a(f"v_add_f32 v{S2}, v{S2}, v{S2h}")
        reduce2(a, S1, S2, S1h, S2h)
    def stats(shift):
        a(f"v_mul_f32 v{S1}, s60, v{S1}")
        a(f"v_mul_f32 v{S2}, s60, v{S2}")
        a(f"v_fma_f32 v{S2}, -v{S1}, v{S1}, v{S2}")
        a(f"v_max_f32 v{S2}, 0, v{S2}")
        if shift: a(f"v_add_f32 v{S1}, s{sh}, v{S1}")
        a(f"v_cvt_pk_bf16_f32 v{S1h}, v{S1}, v{S2}")
        a(f"v_lshlrev_b32 v{M}, 16, v{S1h}")
        a(f"v_and_b32 v{S2}, 0xffff0000, v{S1h}")
        a(f"v_add_f32 v{S2}, 0x3727c5ac, v{S2}")
        a(f"v_cvt_pk_bf16_f32 v{S2}, v{S2}, v{S2}")
        a(f"v_lshlrev_b32 v{S2}, 16, v{S2}")
        a(f"v_sqrt_f32 v{S2}, v{S2}")
        a(f"v_cvt_pk_bf16_f32 v{S2}, v{S2}, v{S2}")
        a(f"v_lshlrev_b32 v{S2}, 16, v{S2}")
        a(f"v_rcp_f32 v{R}, v{S2}")
    def normalize():
        for i in range(5):
            a(f"v_pk_add_f32 {pr(T+2*i)}, {pr(X+2*i)}, {pr(M)} op_sel_hi:[1,0] neg_lo:[0,1] neg_hi:[0,1]")
        round_bf16(a, T, 5, RAW)
        for i in range(5):
            a(f"v_pk_mul_f32 {pr(T+2*i)}, {pr(T+2*i)}, {pr(M)} op_sel:[0,1] op_sel_hi:[1,1]")
        pack(a, RAW, T, 5)
    sums(T); stats(True)
    p1 = a.l; a.l = []
    normalize()
    unpack(a, X, RAW, 5)
    sums(X); stats(False)
    normalize()
    return p1, a.l

def common_entry(a):
    a("s_waitcnt lgkmcnt(0)")
    a(f"s_load_dwordx2 s[{TAG}:{TAG+1}], s[{P_WS}:{P_WS+1}], {EP_OFF}")

def tag_ready(a):
    a("s_waitcnt lgkmcnt(0)")
    a(f"s_add_u32 s{TAG}, s{TAG}, 0x9E3779B9")
    a(f"s_add_u32 s{TAG+1}, s{TAG+1}, 0x7F4A7C15")

RA, RB_ = 8, 72
def ln_addr_and_load(a):
    a("s_lshr_b32 s41, s2, 2")
    a("s_and_b32 s42, s2, 3")
    a("s_lshl_b32 s43, s41, 5")
    a("s_lshl_b32 s56, s42, 2")
    a("s_add_u32 s43, s43, s56")
    a("s_and_b32 s56, s40, 1")
    a("s_lshl_b32 s56, s56, 1")
    a("s_add_u32 s43, s43, s56")
    a("s_lshr_b32 s56, s40, 1")
    a("s_lshl_b32 s56, s56, 4")
    a("s_add_u32 s43, s43, s56")
    a("s_mul_i32 s43, s43, 1280")
    a("v_lshlrev_b32 v3, 3, v2")
    a("v_lshlrev_b32 v4, 2, v2")
    a(f"v_add_u32 v5, {L_CNT}, v4")
    a("v_mov_b32 v6, 0")
    a("s_mov_b64 exec, 0xffff")
    a("ds_write_b32 v5, v6")
    a("s_mov_b64 exec, -1")
    common_entry(a)
    X = srd(a, 36, P_Q, XBYTES)
    for r, o in ((RA, 0), (RB_, 1280)):
        a(f"buffer_load_dwordx2 {pr(r)}, v3, {X}, s43 offen offset:{o} {NT}", tag='x')
        a(f"buffer_load_dwordx2 {pr(r+2)}, v3, {X}, s43 offen offset:{o+512} {NT}", tag='x')
        a(f"buffer_load_dword v{r+4}, v4, {X}, s43 offen offset:{o+1024} {NT}", tag='x')
    a("s_barrier")
    srd(a, 32, P_WS, WS_TOTAL)

def ln_compute_publish(a, hook=None):
    a("s_mul_i32 s56, s40, 2688")
    a(f"s_add_u32 s56, s56, {L_K}")
    a("v_add_u32 v5, s56, v3")
    a("v_add_u32 v6, s56, v4")
    a("v_bfe_u32 v40, v2, 2, 2")
    a("s_movk_i32 s57, 1344")
    a("v_mul_u32_u24 v40, s57, v40")
    a("v_lshrrev_b32 v41, 4, v2")
    a("v_lshl_add_u32 v40, v41, 5, v40")
    a("v_and_b32 v42, 3, v2")
    a("v_lshl_add_u32 v40, v42, 3, v40")
    a("s_lshl_b32 s57, s40, 7")
    a(f"s_add_u32 s57, s57, {L_K}")
    a("v_add_u32 v40, s57, v40")
    a("v_and_b32 v42, 15, v2")
    a("v_lshlrev_b32 v42, 4, v42")
    a("v_lshl_add_u32 v42, v41, 10, v42")
    a("s_lshl_b32 s57, s40, 6")
    a("s_add_u32 s57, s57, s41")
    a("s_lshl_b32 s57, s57, 12")
    a("s_lshl_b32 s58, s42, 8")
    a("s_add_u32 s57, s57, s58")
    a(f"s_add_u32 s57, s57, {HF_OFF}")
    a("s_lshl_b32 s59, s40, 8")
    a("s_add_u32 s59, s59, s2")
    a(f"s_mul_i32 s59, s59, {FS}")
    a(f"s_add_u32 s59, s59, {FA_OFF}")
    a("s_mov_b32 s60, 0x3acccccd")
    a("s_lshl_b32 s61, s40, 4")
    a(f"s_add_u32 s61, s61, {L_ST}")
    a("v_mov_b32 v43, s61")
    a(f"v_lshlrev_b32 v54, {(4*256*FS).bit_length()-1}, v2")
    tag_ready(a)
    a.stamp(1)
    a.wait(vm='x')
    a.stamp(2)
    A1, A2 = ln_row(RA, 16, 44, 26, 62)
    B1, B2 = ln_row(RB_, 80, 92, 104, 63)
    for x, y in zip(A1, B1): a(x); a(y)
    a("s_mov_b64 exec, 1")
    a("ds_write_b64 v43, v[30:31]")
    a("ds_write_b64 v43, v[108:109] offset:8")
    a("s_mov_b64 exec, -1")
    for x, y in zip(A2, B2): a(x); a(y)
    for r, o in ((RA, 0), (RB_, 1344)):
        a(f"ds_write_b64 v5, {pr(r)} offset:{o}")
        a(f"ds_write_b64 v5, {pr(r+2)} offset:{o+512}")
        a(f"ds_write_b32 v6, v{r+4} offset:{o+1024}")
    lds_arrive(a, C_LNW, 44, 45)
    a.stamp(3)
    lds_wait(a, C_LNW, 44, 45, 8)
    for k in range(2):
        a(f"ds_read_b64_tr_b16 {pr(16+4*k)}, v40 offset:{512*k}", tag=('t', k))
        a(f"ds_read_b64_tr_b16 {pr(18+4*k)}, v40 offset:{4*1344+512*k}", tag=('t', k))
    a(f"s_add_u32 s58, s57, {4*64*4096}")
    a.wait(lg=[('t', 0)])
    a(f"buffer_store_dwordx4 v[16:19], v42, {WS}, s57 offen {SC}")
    L1 = lbl("LN1")
    a("s_mov_b32 s56, 3")
    a("s_cmp_ge_u32 s40, 2")
    a(f"s_cbranch_scc1 {L1}")
    a("ds_read_b64_tr_b16 v[24:25], v40 offset:1024")
    a(f"ds_read_b64_tr_b16 v[26:27], v40 offset:{4*1344+1024}")
    a(f"v_add_u32 v44, {L_ST}, v3")
    a("ds_read_b64 v[28:29], v44")
    a(f"s_add_u32 s57, s57, {8*64*4096}")
    a("s_lshl_b32 s61, s2, 6")
    a(f"s_add_u32 s61, s61, {ST_OFF}")
    a("s_mov_b32 s56, 7")
    a("s_waitcnt lgkmcnt(0)")
    a(f"buffer_store_dwordx4 v[24:27], v42, {WS}, s57 offen {SC}")
    a("s_mov_b64 exec, 0xff")
    a(f"buffer_store_dwordx2 v[28:29], v3, {WS}, s61 offen {SC}")
    a("s_mov_b64 exec, -1")
    a.label(L1)
    a("s_waitcnt lgkmcnt(0)")
    a(f"buffer_store_dwordx4 v[20:23], v42, {WS}, s58 offen {SC}", tag='hs')
    lds_arrive(a, C_LNR, 44, 45)
    a(f"v_mov_b32 v44, s{TAG}")
    a(f"v_mov_b32 v45, s{TAG+1}")
    a("s_mov_b32 s61, s56")
    if hook: hook()
    a.wait(vm='hs')
    a("s_mov_b32 exec_lo, s61")
    a("s_mov_b32 exec_hi, 0")
    a(f"buffer_store_dwordx2 v[44:45], v54, {WS}, s59 offen {SC}")
    a("s_mov_b64 exec, -1")
    a.stamp(4)

def gen(name):
    a = Asm()
    a.raw(kernel_header(name))
    a("s_cmp_ge_u32 s2, 256")
    a("s_cbranch_scc1 KF_DONE")
    a("s_load_dwordx16 s[4:19], s[0:1], 0")
    a("s_load_dwordx8 s[20:27], s[0:1], 64")
    a("s_load_dwordx2 s[28:29], s[0:1], 104")
    if CODEPF:
        a("s_getpc_b64 s[44:45]")
        a("s_and_b32 s44, s44, 0xffffff00")
        a("s_and_b32 s45, s45, 0xffff")
        a(f"s_mov_b32 s46, CODE_END-{name}")
        a("s_mov_b32 s47, 0x00020000")
        a("s_lshr_b32 s48, s2, 3")
        a("s_lshl_b32 s48, s48, 10")
        a("v_lshrrev_b32 v1, 6, v0")
        a("v_and_b32 v2, 7, v0")
        a("v_lshlrev_b32 v2, 4, v2")
        a("v_lshl_add_u32 v1, v1, 7, v2")
        a("buffer_load_dwordx4 v[252:255], v1, s[44:47], s48 offen")
    a.stamp(0)
    a("v_lshrrev_b32 v1, 6, v0")
    a("v_and_b32 v2, 63, v0")
    a("v_readfirstlane_b32 s40, v1")
    a("s_cmp_ge_u32 s40, 4")
    a("s_cbranch_scc1 KF_AUX")
    gen_gemm(a)
    a.label("KF_AUX")
    a.reset_counts()
    gen_aux(a)
    a.label("KF_DONE")
    a("s_endpgm")
    a.raw("CODE_END:")
    return a.render(), kernel_desc(name, 256, 72)

def lds_arrive(a, cnt_off, va, vb):
    a(f"v_mov_b32 v{va}, {cnt_off}")
    a(f"v_mov_b32 v{vb}, 1")
    a("s_waitcnt lgkmcnt(0)")
    a("s_mov_b64 exec, 1")
    a(f"ds_add_u32 v{va}, v{vb}")
    a("s_mov_b64 exec, -1")

def lds_wait(a, cnt_off, va, vb, target, sleep=0):
    L = lbl("LW"); Lx = lbl("LWX")
    a(f"v_mov_b32 v{va}, {cnt_off}")
    a("s_mov_b32 s70, 0")
    a.label(L)
    a(f"ds_read_b32 v{vb}, v{va}")
    a("s_add_u32 s70, s70, 1")
    a("s_waitcnt lgkmcnt(0)")
    a(f"v_readfirstlane_b32 s71, v{vb}")
    a(f"s_cmp_gt_u32 s70, {SPIN_MAX*4}")
    a(f"s_cbranch_scc1 {Lx}")
    a(f"s_cmp_ge_u32 s71, {target}")
    a(f"s_cbranch_scc1 {Lx}")
    if sleep: a(f"s_sleep {sleep}")
    a(f"s_branch {L}")
    a.label(Lx)

def gen_gemm(a):
    a("s_setprio 2")
    VD, VT, VH, VL = 56, 60, 64, 68
    VT2 = VT
    ACC = 72
    WR = 152
    HS = [8, 24, 40, 136]
    WR2 = 176
    GS = [8, 28, 152]
    a("s_and_b32 s64, s2, 7")
    a("s_lshr_b32 s65, s2, 3")
    ln_addr_and_load(a)
    if not P1:
        a("s_mul_i32 s66, s65, 171")
        a("s_lshr_b32 s66, s66, 9")
        a("s_mul_i32 s67, s66, 3")
        a("s_sub_u32 s67, s65, s67")
        a("s_mul_i32 s68, s66, 1639")
        a("s_lshr_b32 s68, s68, 10")
        a("s_and_b32 s68, s68, 15")
        a("s_mul_i32 s69, s64, 3")
        a("s_add_u32 s67, s67, s69")
    else:
        a("s_mul_i32 s66, s65, 43")
        a("s_lshr_b32 s66, s66, 8")
        a("s_mul_i32 s67, s66, 6")
        a("s_sub_u32 s67, s65, s67")
        a("s_mul_i32 s68, s66, 3277")
        a("s_lshr_b32 s68, s68, 10")
        a("s_and_b32 s68, s68, 15")
        a("s_lshr_b32 s69, s64, 2")
        a("s_mul_i32 s69, s69, 5")
        a("s_add_u32 s66, s66, s69")
        a("s_and_b32 s69, s64, 3")
        a("s_mul_i32 s69, s69, 6")
        a("s_add_u32 s67, s67, s69")
    a(f"v_lshlrev_b32 v{VL}, 4, v2")
    a("v_bfe_u32 v69, v2, 1, 2")
    a("v_lshrrev_b32 v70, 4, v2")
    a("v_xor_b32 v69, v69, v70")
    a("v_lshlrev_b32 v69, 5, v69")
    a("v_and_b32 v70, 1, v2")
    a("v_lshl_add_u32 v69, v70, 4, v69")
    a("v_lshrrev_b32 v70, 3, v2")
    a("s_movk_i32 s56, 3072")
    a(f"v_mad_u32_u24 v{VD}, v70, s56, v69")
    for t in range(1, 4):
        a(f"v_add_u32 v{VD+t}, {t*(24576-1024)}, v{VD}")
    a(f"s_mul_i32 s44, s40, {512*3072}")
    a("s_lshl_b32 s56, s67, 7")
    a("s_add_u32 s44, s44, s56")
    a(f"s_mul_i32 s45, s40, {RING}")
    a("s_mov_b32 s46, s68")
    W1 = srd(a, 48, P_W1, S * F * 2)
    a("v_lshrrev_b32 v71, 2, v2")
    a("v_lshlrev_b32 v71, 7, v71")
    a("v_and_b32 v70, 3, v2")
    a("v_lshl_add_u32 v71, v70, 3, v71")
    a("v_add_u32 v71, s45, v71")
    a("v_bfe_u32 v70, v2, 3, 2")
    for phi in range(4):
        a(f"v_xor_b32 v13, {phi}, v70")
        a(f"v_lshl_add_u32 v{VT+phi}, v13, 5, v71")
    for i in range(4):
        a(f"s_add_u32 s56, s40, {i}")
        a("s_and_b32 s56, s56, 3")
        a("s_lshl_b32 s56, s56, 10")
        a(f"v_add_u32 v{VH+i}, s56, v{VL}")
    def dma1_parts(t):
        mod = NTW if t < FT1 else NTB
        def p0():
            if t >= NS: a.wait(lg=[('r', t - NS)])
            a(f"s_mul_i32 s47, s46, {32*3072}")
            a("s_add_u32 s47, s47, s44")
            a(f"s_add_u32 m0, s45, {(t % NS)*4096}")
            a("s_add_u32 s46, s46, 1")
            a("s_and_b32 s46, s46, 15")
        ps = [p0]
        for i in range(4):
            ps.append(lambda i=i: a(f"buffer_load_dwordx4 v{VD+i}, {W1}, s47 offen offset:{i*1024} {mod} lds", tag=('w', t)))
        return ps
    def dma1(t):
        for p in dma1_parts(t): p()
    def hook():
        for t in range(FT0): dma1(t)
    ln_compute_publish(a, hook)
    a("s_cmp_ge_u32 s2, 240")
    a("s_cbranch_scc1 KF_G2")
    def trread_parts(t):
        wb = WR + (t % NR1) * 16
        ps = []
        for phi in range(4):
            def p(phi=phi):
                if phi == 0: a.wait(vm=[('w', t)])
                a(f"ds_read_b64_tr_b16 {pr(wb+phi*4)}, v{VT+phi} offset:{(t % NS)*4096}", tag=('r', t))
                a(f"ds_read_b64_tr_b16 {pr(wb+phi*4+2)}, v{VT+phi} offset:{(t % NS)*4096+2048}", tag=('r', t))
            ps.append(p)
        return ps
    NK = 16
    st = {'dma': FT0, 'rd': 0}
    def next_dma(defer=None):
        t = st['dma']; st['dma'] += 1
        if defer is None: dma1(t)
        else: defer.extend(dma1_parts(t))
    def next_rd(defer=None):
        t = st['rd']; st['rd'] += 1
        ps = trread_parts(t)
        if defer is None:
            for p in ps: p()
        else: defer.extend(ps)
    while st['dma'] < FTA: next_dma()
    if FTGATE: lds_wait(a, C_FLG, 4, 5, 4, sleep=1)
    while st['dma'] < FT1: next_dma()
    a("s_lshl_b32 s57, s66, 6")
    a("s_lshl_b32 s56, s40, 4")
    a("s_add_u32 s57, s57, s56")
    a("s_lshl_b32 s57, s57, 12")
    a(f"s_add_u32 s57, s57, {HF_OFF}")
    a("s_lshl_b32 s58, s68, 12")
    a("s_lshl_b32 s59, s66, 8")
    a("s_lshl_b32 s56, s40, 6")
    a("s_add_u32 s59, s59, s56")
    a(f"s_mul_i32 s59, s59, {FS}")
    a(f"s_add_u32 s59, s59, {FA_OFF}")
    B1 = srd(a, 52, P_B1, F * 2)
    a("v_lshrrev_b32 v3, 4, v2")
    a("v_lshlrev_b32 v3, 3, v3")
    a("s_lshl_b32 s56, s67, 7")
    BI = 248
    for phi in range(4):
        a(f"buffer_load_dwordx2 {pr(BI+2*phi)}, v3, {B1}, s56 offen offset:{phi*32}", tag='b')
    if FT1 and FTWAIT: a.wait(vm=[('w', FT1 - 1)])
    lds_arrive(a, C_FT, 4, 5)
    a.stamp(5)
    while st['dma'] < PRE1 - 2:
        while st['rd'] <= st['dma'] - NS + 1 and st['rd'] < NR1: next_rd()
        next_dma()
    a(f"buffer_load_dwordx2 v[4:5], v{VL}, {WS}, s59 offen {SC}", tag='fa')
    while st['dma'] < PRE1:
        while st['rd'] <= st['dma'] - NS + 1 and st['rd'] < NR1: next_rd()
        next_dma()
    while st['rd'] < min(LEADR, FT1): next_rd()
    a.wait(vm='fa')
    def fa_mask():
        a(f"v_cmp_ne_u64 vcc, s[{TAG}:{TAG+1}], v[4:5]")
        a("s_lshl_b32 s56, s68, 2")
        a("s_lshr_b64 s[62:63], vcc, s56")
        a("s_sub_u32 s56, 64, s56")
        a("s_lshl_b64 vcc, vcc, s56")
        a("s_or_b64 s[62:63], s[62:63], vcc")
    def fa_need(lo, hi):
        m = ((1 << (4 * hi)) - 1) & ~((1 << (4 * lo)) - 1)
        Lok = lbl("FAOK"); Lp = lbl("FAP")
        keep = list(a.vm)
        a("s_mov_b32 s70, 0")
        a.label(Lp)
        a(f"s_and_b32 s56, s62, {hex(m & 0xffffffff)}")
        a(f"s_and_b32 s71, s63, {hex(m >> 32)}")
        a("s_or_b32 s56, s56, s71")
        a(f"s_cbranch_scc0 {Lok}")
        a("s_add_u32 s70, s70, 1")
        a(f"s_cmp_gt_u32 s70, {SPIN_MAX}")
        a(f"s_cbranch_scc1 {Lok}")
        a("s_sleep 2")
        a(f"buffer_load_dwordx2 v[4:5], v{VL}, {WS}, s59 offen {SC}")
        a("s_waitcnt vmcnt(0)")
        fa_mask()
        a(f"s_branch {Lp}")
        a.label(Lok)
        a.vm = keep
    fa_mask()
    fa_need(0, 4 if PROG else 16)
    a.stamp(6)
    def hload(t, i):
        if i == 0: a("s_add_u32 s61, s57, s58")
        a(f"buffer_load_dwordx4 {q4(HS[t % NH]+i*4)}, v{VH+i}, {WS}, s61 offen {SCL}", tag=('h', t))
        if i == 3:
            a("s_add_u32 s58, s58, 4096")
            a("s_and_b32 s58, s58, 0xffff")
    for t in range(NH):
        for i in range(4): hload(t, i)
        if st['dma'] < min(NK, LEADD, st['rd'] + NS): next_dma()
    while st['rd'] < min(LEADR, st['dma']): next_rd()
    def w2_setup():
        if not P2:
            a("s_lshr_b32 s62, s65, 2")
            a("s_and_b32 s63, s65, 3")
            a("s_lshl_b32 s56, s64, 2")
            a("s_add_u32 s63, s63, s56")
        else:
            a("s_lshr_b32 s62, s65, 3")
            a("s_and_b32 s56, s64, 4")
            a("s_add_u32 s62, s62, s56")
            a("s_and_b32 s63, s65, 7")
            a("s_and_b32 s56, s64, 3")
            a("s_lshl_b32 s56, s56, 3")
            a("s_add_u32 s63, s63, s56")
        a("v_lshrrev_b32 v7, 3, v2")
        a(f"v_lshl_add_u32 v{VD}, v7, 12, v69")
        for t in range(1, 4):
            a(f"v_add_u32 v{VD+t}, {t*(32768-1024)}, v{VD}")
        a(f"s_mul_i32 s44, s40, {384*4096}")
        a("s_lshl_b32 s56, s63, 7")
        a("s_add_u32 s44, s44, s56")
        if ROT:
            a("s_and_b32 s46, s65, 3")
            a("s_mul_i32 s46, s46, 3")
            a("s_mul_i32 s56, s62, 3")
            a("s_lshr_b32 s56, s56, 1")
            a("s_add_u32 s46, s46, s56")
            a("s_cmp_ge_u32 s46, 12")
            a("s_cselect_b32 s56, 12, 0")
            a("s_sub_u32 s46, s46, s56")
        else:
            a("s_mov_b32 s46, 0")
        a("s_mov_b32 s68, s46")
        srd(a, 48, P_W2, S * F * 2)
        for si in range(4):
            a(f"s_add_u32 s56, s40, {si}")
            a("s_and_b32 s56, s56, 3")
            a("v_xor_b32 v7, s56, v70")
            a(f"v_lshl_add_u32 v{VT+si}, v7, 5, v71")
    W2 = "s[48:51]"
    SL2 = [3, 4, 5, 3, 4, 5, 3, 4, 0, 1, 5, 3]
    def trread2_parts(t):
        wb = WR2 + (t % NR2) * 16
        so = SL2[t] * 4096
        ps = []
        for si in range(4):
            def p(si=si):
                if si == 0: a.wait(vm=[('w2', t)])
                a(f"ds_read_b64_tr_b16 {pr(wb+si*4)}, v{VT2+si} offset:{so}", tag=('r2', t))
                a(f"ds_read_b64_tr_b16 {pr(wb+si*4+2)}, v{VT2+si} offset:{so+2048}", tag=('r2', t))
            ps.append(p)
        return ps
    def trread2(t):
        for p in trread2_parts(t): p()
    def dma2_parts(t, pre=None):
        def p0():
            if pre: pre()
            a(f"s_lshl_b32 s47, s46, 17")
            a("s_add_u32 s47, s47, s44")
            a(f"s_add_u32 m0, s45, {SL2[t]*4096}")
            a("s_add_u32 s46, s46, 1")
        ps = [p0]
        for i in range(4):
            ps.append(lambda i=i: a(f"buffer_load_dwordx4 v{VD+i}, {W2}, s47 offen offset:{i*1024} {NTB} lds", tag=('w2', t)))
        return ps
    def dma2(t):
        for p in dma2_parts(t): p()
    W2T0 = E('W2T0', 11)
    a(f"v_mov_b32 v3, {C_HIS}")
    a("v_mov_b32 v6, 1")
    def prog():
        a("s_mov_b64 exec, 1")
        a("ds_add_u32 v3, v6")
        a("s_mov_b64 exec, -1")
    for t in range(NK):
        wb = WR + (t % NR1) * 16
        hb = HS[t % NH]
        fill = []
        if st['dma'] < min(NK, st['rd'] + NS): next_dma(fill)
        if st['rd'] < NK and st['rd'] <= t - 1 + NR1: next_rd(fill)
        if t < NK - NH: fill.append(prog)
        if t == W2T0:
            assert st['rd'] == NK and st['dma'] == NK, st
            fill.append(lambda: (a.wait(lg=[('r', NK - 1)]), w2_setup()))
        if W2T0 < t <= W2T0 + 3: fill.extend(dma2_parts(t - W2T0 - 1))
        if PROG and t % 4 == 0 and t + NH < NK: fa_need(t + NH, t + NH + 4)
        a.wait(vm=[('h', t)], lg=[('r', t)])
        for di in range(4):
            for phi in range(4):
                c = ACC + (phi * 4 + di) * 4
                src = "0" if t == 0 else q4(c)
                if not XNOMFMA or phi == 0: a(f"v_mfma_f32_16x16x32_bf16 {q4(c)}, {q4(wb+phi*4)}, {q4(hb+di*4)}, {src}")
                if phi < 3 and fill: fill.pop(0)()
            if t + NH < NK: hload(t + NH, di)
        while fill: fill.pop(0)()
        if t == 5: a.stamp(7)
    a.stamp(8)
    a(f"v_add_u32 v4, s45, v{VL}")
    for di in range(1, 4):
        for phi in range(4):
            a(f"ds_write_b128 v4, {q4(ACC+(phi*4+di)*4)} offset:{(di-1)*4096+phi*1024}")
    for di in range(1, 4):
        a(f"s_sub_u32 s56, s40, {di}")
        a("s_and_b32 s56, s56, 3")
        a(f"s_mul_i32 s56, s56, {RING}")
        a(f"v_add_u32 v{4+di}, s56, v{VL}")
    a("s_lshl_b32 s56, s66, 2")
    a("s_add_u32 s56, s56, s40")
    a("s_mul_i32 s57, s56, 205")
    a("s_lshr_b32 s57, s57, 10")
    a("s_mul_i32 s58, s57, 5")
    a("s_sub_u32 s58, s56, s58")
    a("s_mul_i32 s57, s57, 48")
    a("s_lshl_b32 s59, s67, 1")
    a("s_add_u32 s57, s57, s59")
    a("s_mul_i32 s57, s57, 5")
    a("s_add_u32 s57, s57, s58")
    a("s_lshl_b32 s57, s57, 10")
    a(f"s_add_u32 s57, s57, {GF_OFF}")
    a("s_add_u32 s58, s57, 5120")
    a("s_mul_i32 s59, s56, 24")
    a("s_add_u32 s59, s59, s67")
    a(f"s_mul_i32 s59, s59, {FS}")
    a(f"s_add_u32 s59, s59, {FG_OFF}")
    a(f"s_mov_b32 s60, {f2u(GELU_K1):#x}")
    BF, RB, SUM, OUT, TM, K0, ONE = 136, 8, 152, 168, ACC + 4, ACC + 12, ACC + 13
    a.wait(vm='b')
    unpack(a, BF, BI, 8)
    if not EXACT:
        for phi in range(4):
            for h in range(2):
                c = ACC + (phi * 4) * 4 + 2 * h
                a(f"v_pk_add_f32 {pr(c)}, {pr(c)}, {pr(BF+phi*4+2*h)}")
    lds_arrive(a, C_RED, 3, 4)
    for u in range(3): trread2(u)
    lds_wait(a, C_RED, 3, 4, 4)
    for di in range(1, 4):
        for phi in range(4):
            a(f"ds_read_b128 {q4(RB+((di-1)*4+phi)*4)}, v{4+di} offset:{(di-1)*4096+phi*1024}", tag=('p', di))
    for u in range(3, 6): dma2(u)
    a(f"v_mov_b32 v{K0}, {f2u(GELU_K0):#x}")
    for di in range(1, 4):
        a.wait(lg=[('p', di)])
        for phi in range(4):
            for h in range(2):
                s0 = ACC + (phi * 4) * 4 + 2 * h if di == 1 else SUM + phi * 4 + 2 * h
                a(f"v_pk_add_f32 {pr(SUM+phi*4+2*h)}, {pr(s0)}, {pr(RB+((di-1)*4+phi)*4+2*h)}")
    lds_arrive(a, C_RD, 3, ONE)
    n = 16
    if EXACT:
        round_bf16(a, SUM, 8, TM)
        for i in range(0, n, 2): a(f"v_pk_add_f32 {pr(SUM+i)}, {pr(SUM+i)}, {pr(BF+i)}")
        round_bf16(a, SUM, 8, TM)
    for half in range(2):
        R8 = range(8 * half, 8 * half + 8)
        for i in R8[::2]: a(f"v_pk_mul_f32 {pr(BF+i)}, {pr(SUM+i)}, {pr(SUM+i)}")
        for i in R8: a(f"v_fma_f32 v{BF+i}, v{BF+i}, s60, v{K0}")
        for i in R8[::2]: a(f"v_pk_mul_f32 {pr(BF+i)}, {pr(BF+i)}, {pr(SUM+i)}")
        for i in R8: a(f"v_exp_f32 v{BF+i}, v{BF+i}")
        for i in R8: a(f"v_add_f32 v{BF+i}, 1.0, v{BF+i}")
        for i in R8: a(f"v_rcp_f32 v{BF+i}, v{BF+i}")
        for i in R8[::2]: a(f"v_pk_mul_f32 {pr(SUM+i)}, {pr(SUM+i)}, {pr(BF+i)}")
        pack(a, OUT + 4 * half, SUM + 8 * half, 4)
        a(f"buffer_store_dwordx4 {q4(OUT+4*half)}, v{VL}, {WS}, s{57+half} offen {SC}", tag='gs')
    a(f"v_mov_b32 v3, {C_FGD}")
    a("v_mov_b32 v4, 1")
    a("s_mov_b64 exec, 1")
    a("ds_add_u32 v3, v4")
    a("s_mov_b64 exec, -1")
    for u in (3, 4): trread2(u)
    a.wait(vm='gs')
    set_flag(a, 59, 4)
    a.stamp(9)
    keep = []
    a("s_or_b32 s56, s2, s40")
    a("s_cmp_lg_u32 s56, 0")
    a("s_cbranch_scc1 KF_NOEP")
    a(f"s_mov_b32 s56, {EP_OFF}")
    set_flag(a, 56, 4)
    a.label("KF_NOEP")
    lds_wait(a, C_RD, 3, 4, 4)
    a("s_branch KF_G2B")
    a.label("KF_G2")
    w2_setup()
    lds_arrive(a, C_RED, 3, 4)
    a(f"v_mov_b32 v3, {C_HIS}")
    a("v_mov_b32 v4, 12")
    a("s_mov_b64 exec, 1")
    a("ds_add_u32 v3, v4")
    a("s_mov_b64 exec, -1")
    lds_arrive(a, C_FT, 3, 4)
    lds_arrive(a, C_FGD, 3, 4)
    a("s_waitcnt vmcnt(0)")
    lds_arrive(a, C_RD, 3, 4)
    if FTGATE: lds_wait(a, C_FLG, 4, 5, 4, sleep=1)
    if not P2:
        a("v_lshrrev_b32 v3, 5, v2")
        a("v_lshlrev_b32 v3, 12, v3")
        a("v_and_b32 v4, 31, v2")
        a("v_lshl_add_u32 v3, v4, 4, v3")
    else:
        a(f"v_mov_b32 v3, v{VL}")
    a(f"s_mul_i32 s57, s40, {384*4096}")
    a("s_and_b32 s56, s65, 1")
    a(f"s_lshl_b32 s56, s56, {16 if P2 else 17}")
    a("s_add_u32 s57, s57, s56")
    if P2:
        a("s_and_b32 s56, s64, 3")
        a("s_lshl_b32 s56, s56, 10")
    else: a("s_lshl_b32 s56, s64, 9")
    a("s_add_u32 s57, s57, s56")
    a("s_mov_b32 s58, 0")
    a.label("KF_PF")
    for k in range(16):
        a(f"buffer_load_dwordx4 {q4(ACC+4*k)}, v3, {W2}, s57 offen {PFMOD}")
        a(f"s_add_u32 s57, s57, {(1 if P2 else 2)*4096}")
        a("s_waitcnt vmcnt(8)")
    a(f"s_add_u32 s57, s57, {(16 if P2 else 32)*4096}")
    a("s_add_u32 s58, s58, 1")
    a(f"s_cmp_lt_u32 s58, {PFSTEPS if P2 else PFSTEPS//2}")
    a("s_cbranch_scc1 KF_PF")
    for i in range(5, 10): a.stamp(i)
    a.reset_counts()
    for u in range(3): dma2(u)
    for u in range(3): trread2(u)
    a("s_waitcnt lgkmcnt(0)")
    for u in range(3, 6): dma2(u)
    for u in (3, 4): trread2(u)
    a("s_waitcnt vmcnt(0) lgkmcnt(0)")
    a.label("KF_G2B")
    NK = 12
    for u in range(6, W2PRE): dma2(u)
    a("s_mul_i32 s57, s62, 48")
    a("s_mul_i32 s56, s40, 12")
    a("s_add_u32 s57, s57, s56")
    a("s_mul_i32 s57, s57, 5120")
    a(f"s_add_u32 s57, s57, {GF_OFF}")
    a(f"v_add_u32 v{VH}, 4096, v{VL}")
    a("v_mul_u32_u24 v3, 43, v2")
    a("v_lshrrev_b32 v3, 8, v3")
    a("v_mul_u32_u24 v3, 18, v3")
    a("v_add_u32 v3, v3, v2")
    a(f"v_mul_u32_u24 v3, {FS}, v3")
    a("s_mul_i32 s41, s62, 120")
    a("s_mul_i32 s56, s40, 6")
    a("s_add_u32 s41, s41, s56")
    a(f"s_mul_i32 s41, s41, {FS}")
    a(f"s_add_u32 s41, s41, {FG_OFF}")
    a("s_mov_b32 s42, -1")
    a.stamp(10)
    def fg_need(ps, first=False):
        m = 0
        for p in ps:
            for i5 in range(5): m |= 1 << (6 * i5 + p)
        Lok = lbl("FGOK"); Lp = lbl("FGP")
        keep = list(a.vm)
        a("s_mov_b32 s70, 0")
        a.label(Lp)
        a(f"s_and_b32 s56, s42, {hex(m)}")
        a(f"s_cbranch_scc0 {Lok}")
        a("s_add_u32 s70, s70, 1")
        a(f"s_cmp_gt_u32 s70, {SPIN_MAX}")
        a(f"s_cbranch_scc1 {Lok}")
        set_exec(a, 30)
        a(f"buffer_load_dwordx2 v[4:5], v3, {WS}, s41 offen {SC}")
        a("s_waitcnt vmcnt(0)")
        a(f"v_cmp_ne_u64 vcc, s[{TAG}:{TAG+1}], v[4:5]")
        a("s_mov_b64 exec, -1")
        a("s_mov_b32 s42, vcc_lo")
        a(f"s_branch {Lp}")
        a.label(Lok)
        a.vm = [] if first else keep
    fg_need([0, 1] if PROG else range(6), first=True)
    a.lg = []
    a.stamp(11)
    def gload(t, i):
        gb = GS[t % NG]
        if i < 4: a(f"buffer_load_dwordx4 {q4(gb+i*4)}, v{VL}, {WS}, s57 offen offset:{i*1024} {SCL}", tag=('g', t))
        else:
            a(f"buffer_load_dwordx4 {q4(gb+16)}, v{VH}, {WS}, s57 offen {SCL}", tag=('g', t))
            a("s_add_u32 s57, s57, 5120")
    for t in range(NG):
        for i in range(5): gload(t, i)
    B2 = srd(a, 52, P_B2, S * 2)
    a(f"v_and_b32 v6, 15, v2")
    a(f"v_lshrrev_b32 v7, 4, v2")
    a("s_movk_i32 s56, 1280")
    a(f"v_mul_u32_u24 v{VH+1}, s56, v6")
    a(f"v_lshl_add_u32 v{VH+1}, v7, 3, v{VH+1}")
    a(f"v_lshlrev_b32 v{VH+2}, 1, v6")
    a("s_lshl_b32 s60, s63, 6")
    a("s_lshl_b32 s56, s40, 4")
    a("s_add_u32 s60, s60, s56")
    a("s_mul_i32 s61, s60, 1280")
    a("s_mul_i32 s56, s62, 160")
    a("s_add_u32 s61, s61, s56")
    B2V = 174
    a("s_lshl_b32 s56, s60, 1")
    a(f"buffer_load_ushort v{B2V}, v{VH+2}, {B2}, s56 offen", tag='x')
    a(f"v_mov_b32 v6, {C_P2}")
    a("v_mov_b32 v7, 1")
    def prog2():
        a("s_mov_b64 exec, 1")
        a("ds_add_u32 v6, v7")
        a("s_mov_b64 exec, -1")
    nd = [W2PRE]
    for t in range(NK):
        wb = WR2 + (t % NR2) * 16
        gb = GS[t % NG]
        if PROG and (t + NG) % 2 == 0 and t + NG < NK and t + NG >= 4: fg_need([(t + NG) // 2])
        fill = []
        u = nd[0]
        if u < NK and (u < 10 or t >= u - 8):
            if u >= 10:
                assert SL2[u] == SL2[u - NS2]
                fill.extend(dma2_parts(u, pre=lambda u=u: a.wait(lg=[('r2', u - NS2)])))
            else: fill.extend(dma2_parts(u))
            nd[0] += 1
        if t >= 1 and t - 1 + NR2 < NK:
            assert t - 1 + NR2 < nd[0]
            fill.extend(trread2_parts(t - 1 + NR2))
        if t == ZT: fill.append(prog2)
        a.wait(vm=[('g', t)], lg=[('r2', t)])
        for i5 in range(5):
            for si in range(4):
                c = ACC + (i5 * 4 + si) * 4
                src = "0" if t == 0 else q4(c)
                if not XNOMFMA or si == 0: a(f"v_mfma_f32_16x16x32_bf16 {q4(c)}, {q4(gb+i5*4)}, {q4(wb+si*4)}, {src}")
                if si < 3 and fill: fill.pop(0)()
            if t + NG < NK: gload(t + NG, i5)
        while fill: fill.pop(0)()
        if t == 3: a.stamp(12)
    a.stamp(13)
    a(f"v_add_u32 v4, s45, v{VL}")
    def red_off(si, i5):
        k = (si - 1) * 5 + i5
        return (k if k < 8 else k + 4) * 1024
    for i5 in range(5):
        for si in range(1, 4):
            a(f"ds_write_b128 v4, {q4(ACC+(i5*4+si)*4)} offset:{red_off(si, i5)}")
    YF, TP, ER, EF = 176, 216, 226, 8
    for si in range(1, 4):
        a(f"s_sub_u32 s56, s40, {si}")
        a("s_and_b32 s56, s56, 3")
        a(f"s_mul_i32 s56, s56, {RING}")
        a(f"v_add_u32 v{48+si}, s56, v{VL}")
    a("v_lshlrev_b32 v48, 3, v2")
    a("v_add_u32 v48, s45, v48")
    a(f"v_lshlrev_b32 v{B2V}, 16, v{B2V}")
    OUTS = srd(a, 52, P_OUT, XBYTES)
    lds_arrive(a, C_RED, 3, 5)
    lds_wait(a, C_E, 3, 5, 4)
    for i5 in range(5):
        a(f"ds_read_b64 {pr(ER+2*i5)}, v48 offset:{8192+i5*512}", tag='e')
    lds_wait(a, C_RED, 3, 5, 8)
    for si in range(1, 4):
        for i5 in range(5):
            a(f"ds_read_b128 {q4(ACC+(i5*4+si)*4)}, v{48+si} offset:{red_off(si, i5)}", tag=('p', si))
    unpack(a, EF, ER, 10)
    if not EXACT:
        for i in range(10): a(f"v_pk_add_f32 {pr(EF+2*i)}, {pr(EF+2*i)}, {pr(B2V)} op_sel_hi:[1,0]")
        for i5 in range(5):
            for h in range(2):
                c = ACC + (i5 * 4) * 4 + 2 * h
                a(f"v_pk_add_f32 {pr(c)}, {pr(c)}, {pr(EF+4*i5+2*h)}")
    for si in range(1, 4):
        a.wait(lg=[('p', si)])
        for i5 in range(5):
            for h in range(2):
                c = ACC + (i5 * 4) * 4 + 2 * h
                a(f"v_pk_add_f32 {pr(c)}, {pr(c)}, {pr(c+4*si)}")
    for i5 in range(5):
        for h in range(2):
            c = ACC + (i5 * 4) * 4 + 2 * h
            a(f"v_cvt_pk_bf16_f32 v{TP+2*i5+h}, v{c}, v{c+1}")
        if EXACT:
            unpack(a, YF + 4 * i5, TP + 2 * i5, 2)
            for h in range(2): a(f"v_pk_add_f32 {pr(YF+4*i5+2*h)}, {pr(YF+4*i5+2*h)}, {pr(B2V)} op_sel_hi:[1,0]")
            round_bf16(a, YF + 4 * i5, 2, TP + 2 * i5)
            for h in range(2): a(f"v_pk_add_f32 {pr(YF+4*i5+2*h)}, {pr(YF+4*i5+2*h)}, {pr(EF+4*i5+2*h)}")
            pack(a, TP + 2 * i5, YF + 4 * i5, 2)
        a(f"buffer_store_dwordx2 {pr(TP+2*i5)}, v{VH+1}, {OUTS}, s61 offen offset:{32*i5} {OUTMOD}")
    a.flush_stamps(0, 14, vt=250, ws=P_WS)
    a("s_endpgm")

XG = C_FGD
XFA, XNA = 192, 212
XRAW = 242
def aux_ids(a):
    a("s_lshr_b32 s56, s2, 3")
    a("s_lshr_b32 s65, s56, 2")
    a("s_and_b32 s66, s56, 3")
    a("s_and_b32 s56, s2, 7")
    a("s_lshl_b32 s56, s56, 2")
    a("s_add_u32 s66, s66, s56")
    a("s_lshl_b32 s68, s66, 6")
    a("s_lshl_b32 s56, s64, 4")
    a("s_add_u32 s68, s68, s56")
    a(f"s_mul_i32 s67, s64, {RING}")

def aux_p0(a):
    aux_ids(a)
    a("s_mul_i32 s69, s68, 1280")
    a("s_mul_i32 s56, s65, 160")
    a("s_add_u32 s69, s69, s56")
    XS = srd(a, 48, P_Q, XBYTES)
    a("s_movk_i32 s56, 1280")
    for k in range(3):
        a(f"v_add_u32 v232, {64*k}, v2")
        a("v_mul_u32_u24 v233, 205, v232")
        a("v_lshrrev_b32 v233, 11, v233")
        a("v_mul_u32_u24 v234, 10, v233")
        a("v_sub_u32 v234, v232, v234")
        a("v_lshlrev_b32 v234, 4, v234")
        a(f"v_mad_u32_u24 v236, v233, s56, v234")
        a(f"s_add_u32 m0, s67, {2*4096 + k*1024}")
        if k == 2: set_exec(a, 32)
        a(f"buffer_load_dwordx4 v236, {XS}, s69 offen {NT} lds")
        if k == 2: a("s_mov_b64 exec, -1")
    a("v_and_b32 v232, 15, v2")
    a("s_movk_i32 s56, 160")
    a("v_mul_u32_u24 v240, s56, v232")
    a("v_lshrrev_b32 v233, 4, v2")
    a("v_lshl_add_u32 v240, v233, 3, v240")
    a("v_add_u32 v240, s67, v240")

def aux_p0b(a):
    for i5 in range(5):
        a(f"ds_read_b64 {pr(XRAW+2*i5)}, v240 offset:{2*4096+32*i5}")

def aux_p1(a):
    aux_ids(a)
    a("v_and_b32 v232, 15, v2")
    a("v_lshrrev_b32 v233, 2, v232")
    a("v_lshlrev_b32 v233, 6, v233")
    a("v_and_b32 v234, 3, v232")
    a("v_lshl_add_u32 v239, v234, 3, v233")
    a("s_lshr_b32 s59, s68, 5")
    a(f"s_mul_i32 s59, s59, {4*FS}")
    a(f"s_add_u32 s59, s59, {FA_OFF}")
    poll(a, 3, 59, 232, 4, sleep=4)
    a("s_lshr_b32 s59, s68, 5")
    a("s_lshl_b32 s59, s59, 8")
    a("s_and_b32 s56, s68, 16")
    a("s_lshl_b32 s56, s56, 1")
    a("s_add_u32 s59, s59, s56")
    a(f"s_add_u32 s59, s59, {ST_OFF}")
    a(f"buffer_load_dwordx2 v[232:233], v239, {WS}, s59 offen {SC}")
    unpack(a, XFA, XRAW, 10)
    a("s_waitcnt vmcnt(0)")
    for i in range(20): a(f"v_sub_f32 v{XNA+i}, v{XFA+i}, v232")
    round_bf16(a, XNA, 10, XRAW)
    for i in range(20): a(f"v_mul_f32 v{XNA+i}, v{XNA+i}, v233")
    round_bf16(a, XNA, 10, XRAW)

def aux_p2(a):
    a("v_bfe_u32 v32, v2, 1, 2")
    a("v_lshrrev_b32 v33, 4, v2")
    a("v_xor_b32 v32, v32, v33")
    a("v_lshlrev_b32 v32, 5, v32")
    a("v_and_b32 v33, 1, v2")
    a("v_lshl_add_u32 v32, v33, 4, v32")
    a("v_lshrrev_b32 v33, 3, v2")
    a("v_lshl_add_u32 v32, v33, 12, v32")
    a("s_mul_i32 s57, s65, 80")
    a("s_mul_i32 s56, s64, 24")
    a("s_add_u32 s57, s57, s56")
    a(f"s_mul_i32 s59, s57, {FS}")
    a(f"s_add_u32 s59, s59, {FZ_OFF}")
    a("s_lshl_b32 s57, s57, 12")
    a("s_lshl_b32 s56, s66, 7")
    a("s_add_u32 s57, s57, s56")
    a(f"s_add_u32 s57, s57, {Z_OFF}")
    a(f"s_mul_i32 s58, s64, {KB_CH}")
    a(f"s_add_u32 s58, s58, {L_K+128}")
    a("v_bfe_u32 v34, v2, 3, 2")
    a("v_xor_b32 v34, s64, v34")
    a("v_lshlrev_b32 v34, 5, v34")
    a("v_and_b32 v35, 3, v2")
    a("v_lshl_add_u32 v34, v35, 3, v34")
    a(f"v_add_u32 v34, {L_K+128}, v34")
    a("v_lshrrev_b32 v35, 2, v2")
    a(f"s_movk_i32 s56, {KB_CH - 24*128}")
    for i5 in range(5):
        a(f"v_add_u32 v36, {16*i5}, v35")
        a("v_mul_u32_u24 v37, 43, v36")
        a("v_lshrrev_b32 v37, 10, v37")
        a("v_lshl_add_u32 v36, v36, 7, v34")
        a(f"v_mad_u32_u24 v{40+i5}, v37, s56, v36")
    a("v_lshlrev_b32 v38, 3, v2")
    a("v_add_u32 v38, s67, v38")
    lds_wait(a, C_RD, 5, 6, 4, sleep=8)
    lds_wait(a, C_P2, 5, 6, 1, sleep=8)
    L8 = lbl("Z8"); Lj = lbl("ZJ")
    a("s_cmp_eq_u32 s64, 3")
    a(f"s_cbranch_scc1 {L8}")
    poll(a, 3, 59, 46, 24, sleep=4)
    for k in range(3):
        a(f"s_add_u32 m0, s58, {k*1024}")
        a(f"buffer_load_dwordx4 v32, {WS}, s57 offen {SC} lds")
        a(f"s_add_u32 s57, s57, {8*4096}")
    a(f"s_branch {Lj}")
    a.label(L8)
    poll(a, 3, 59, 46, 8, sleep=4)
    a("s_mov_b32 m0, s58")
    a(f"buffer_load_dwordx4 v32, {WS}, s57 offen {SC} lds")
    a.label(Lj)
    a("s_waitcnt vmcnt(0)")
    lds_arrive(a, C_ZL, 5, 6)
    lds_wait(a, C_ZL, 5, 6, 4, sleep=1)
    for i5 in range(5):
        a(f"ds_read_b64_tr_b16 {pr(48+2*i5)}, v{40+i5}")
    a("s_waitcnt lgkmcnt(0)")
    unpack(a, 64, 48, 10)
    if EXACT:
        for i in range(20): a(f"v_mul_f32 v{64+i}, v{64+i}, v{XNA+i}")
        round_bf16(a, 64, 10, 48)
        for i in range(20): a(f"v_add_f32 v{64+i}, v{64+i}, v{XFA+i}")
    else:
        for i in range(20): a(f"v_fma_f32 v{64+i}, v{64+i}, v{XNA+i}, v{XFA+i}")
    pack(a, 48, 64, 10)
    for i5 in range(5):
        a(f"ds_write_b64 v38, {pr(48+2*i5)} offset:{8192+i5*512}")
    lds_arrive(a, C_E, 5, 6)

def gen_aux(a):
    a("s_setprio 3")
    a("s_sub_u32 s64, s40, 4")
    a("s_and_b32 s66, s2, 7")
    a("s_lshl_b32 s66, s66, 2")
    a("s_lshr_b32 s67, s2, 3")
    a("s_and_b32 s56, s67, 3")
    a("s_add_u32 s66, s66, s56")
    a("s_lshr_b32 s67, s67, 2")
    a("s_mul_i32 s68, s66, 81920")
    a("s_mul_i32 s56, s67, 160")
    a("s_add_u32 s68, s68, s56")
    a("s_lshl_b32 s56, s64, 6")
    a("v_add_u32 v56, s56, v2")
    a("s_lshl_b32 s57, s64, 10")
    a("s_sub_u32 s58, s68, 3840")
    a("s_movk_i32 s59, 1280")
    a("v_mov_b32 v63, -1")
    for i in range(3):
        if i: a("v_add_u32 v56, 256, v56")
        a("v_mul_u32_u24 v57, 729, v56")
        a("v_lshrrev_b32 v57, 16, v57")
        a("v_mul_u32_u24 v58, 90, v57")
        a("v_sub_u32 v58, v56, v58")
        a("v_mul_u32_u24 v59, 205, v58")
        a("v_lshrrev_b32 v59, 11, v59")
        a("v_mul_u32_u24 v60, 10, v59")
        a("v_sub_u32 v60, v58, v60")
        a("v_lshl_add_u32 v61, v59, 3, v57")
        a("v_lshlrev_b32 v60, 4, v60")
        a("v_mad_u32_u24 v60, v61, s59, v60")
        a("v_add_u32 v60, s58, v60")
        a("v_cmp_gt_u32 vcc, 67, v61")
        a("v_cndmask_b32 v60, v63, v60, vcc")
        a("v_cmp_gt_u32 vcc, 8, v57")
        a(f"v_cndmask_b32 v{40+i}, v63, v60, vcc")
    a("v_add_u32 v56, s56, v2")
    for i in range(3):
        if i: a("v_add_u32 v56, 256, v56")
        a("v_mul_u32_u24 v57, 820, v56")
        a("v_lshrrev_b32 v57, 16, v57")
        a("v_mul_u32_u24 v58, 80, v57")
        a("v_sub_u32 v58, v56, v58")
        a("v_mul_u32_u24 v59, 205, v58")
        a("v_lshrrev_b32 v59, 11, v59")
        a("v_mul_u32_u24 v60, 10, v59")
        a("v_sub_u32 v60, v58, v60")
        a("v_lshl_add_u32 v61, v59, 3, v57")
        a("v_lshlrev_b32 v60, 4, v60")
        a(f"v_mad_u32_u24 v{43+i}, v61, s59, v60")
    a("s_lshl_b32 s67, s67, 2")
    a("s_add_u32 s67, s67, s64")
    a("v_mul_u32_u24 v56, 52, v2")
    a("v_lshrrev_b32 v56, 8, v56")
    a("v_mul_u32_u24 v57, 5, v56")
    a("v_sub_u32 v57, v2, v57")
    a("v_lshlrev_b32 v61, 5, v57")
    a("s_mul_i32 s69, s67, 160")
    KR, VR, SK = 64, 86, 102
    a("s_movk_i32 s56, 160")
    a("v_mul_u32_u24 v58, s56, v56")
    a("v_lshl_add_u32 v58, v57, 3, v58")
    a("s_mul_i32 s56, s64, 40")
    a(f"s_add_u32 s56, s56, {L_KS}")
    a("v_add_u32 v58, s56, v58")
    a("s_lshl_b32 s41, s64, 8")
    a("s_sub_u32 s42, 255, s2")
    a("s_add_u32 s41, s41, s42")
    a(f"s_mul_i32 s42, s64, {HCOPY}")
    a(f"s_add_u32 s42, s42, {L_H}")
    a(f"s_mul_i32 s43, s64, {KB_CH}")
    a(f"s_add_u32 s43, s43, {L_K}")
    a("v_lshlrev_b32 v3, 4, v2")
    a("s_lshl_b32 s62, s41, 12")
    a("v_mov_b32 v4, 0")
    common_entry(a)
    KS = srd(a, 44, P_K, XBYTES)
    VS = srd(a, 48, P_V, XBYTES)
    SKS = srd(a, 52, P_SK, D * 8)
    SM = srd(a, 36, P_SSMK, D * S * 2)
    a("s_barrier")
    a.stamp(1)
    for i in range(3):
        a(f"s_add_u32 m0, s57, {L_KS + i*4096}")
        a(f"buffer_load_dwordx4 v{40+i}, {KS}, 0 offen {NT} lds")
    for i in range(2):
        a(f"s_add_u32 m0, s57, {L_VS + i*4096}")
        a(f"buffer_load_dwordx4 v{43+i}, {VS}, s68 offen {NT} lds")
    Ls = lbl("NOV")
    a("s_cmp_ge_u32 s64, 2")
    a(f"s_cbranch_scc1 {Ls}")
    a(f"s_add_u32 m0, s57, {L_VS + 2*4096}")
    a(f"buffer_load_dwordx4 v45, {VS}, s68 offen {NT} lds")
    a.label(Ls)
    tag_ready(a)
    lds_arrive(a, C_LNW, 5, 6)
    a(f"buffer_load_dwordx4 {q4(SK)}, v61, {SKS}, s69 offen")
    a(f"buffer_load_dwordx4 {q4(SK+4)}, v61, {SKS}, s69 offen offset:16")
    HL, HN = 192, 208
    def ssm_loads():
        for t in range(4):
            a(f"buffer_load_dwordx4 {q4(HL+4*t)}, v3, {SM}, s62 offen offset:{t*1024} {NT}")
        for t in range(4):
            a(f"buffer_load_dwordx2 {pr(HN+2*t)}, v3, {SM}, s62 offen offset:{t*1024+16}")
        SD = srd(a, 44, P_SSMD, D * 2)
        a("s_lshl_b32 s56, s41, 1")
        a(f"buffer_load_ushort v8, v4, {SD}, s56 offen")
    if not SSMLATE: ssm_loads()
    a.stamp(2)
    srd(a, 32, P_WS, WS_TOTAL)
    a(f"s_waitcnt vmcnt({0 if SSMLATE else 9})")
    a.vm = []
    a.stamp(3)
    lds_arrive(a, C_KVL, 5, 6)
    a("v_lshrrev_b32 v12, 3, v2")
    a("v_and_b32 v13, 7, v2")
    a("v_lshlrev_b32 v9, 14, v12")
    a("v_lshl_add_u32 v9, v13, 4, v9")
    a(f"s_mul_i32 s57, s67, {20*4096}")
    a("s_lshl_b32 s56, s66, 7")
    a("s_add_u32 s57, s57, s56")
    a(f"s_add_u32 s57, s57, {KVR_OFF}")
    a("s_mul_i32 s58, s64, 768")
    a(f"s_add_u32 s58, s58, {L_KVT}")
    a("s_movk_i32 s56, 144")
    a("v_mul_u32_u24 v10, s56, v57")
    a("v_lshl_add_u32 v10, v56, 4, v10")
    a("v_add_u32 v10, s58, v10")
    a("v_mul_u32_u24 v11, s56, v12")
    a("v_lshl_add_u32 v11, v13, 4, v11")
    a("v_add_u32 v11, s58, v11")
    lds_wait(a, C_KVL, 5, 6, 4)
    set_exec(a, 40)
    for t in range(11):
        a(f"ds_read_b64 {pr(KR+2*t)}, v58 offset:{(t % 8)*1440 + (t // 8)*160}")
    for t in range(8):
        a(f"ds_read_b64 {pr(VR+2*t)}, v58 offset:{12*1024 + t*1280}")
    a("s_waitcnt lgkmcnt(0)")
    W, KF, VF, O = 112, 120, 142, 160
    for p in range(2):
        for e in range(2):
            c = 2 * p + e
            a(f"v_lshlrev_b32 v{W+0+e}, 16, v{SK+2*c}")
            a(f"v_and_b32 v{W+2+e}, 0xffff0000, v{SK+2*c}")
            a(f"v_lshlrev_b32 v{W+4+e}, 16, v{SK+2*c+1}")
            a(f"v_and_b32 v{W+6+e}, 0xffff0000, v{SK+2*c+1}")
        for t in range(11):
            a(f"v_lshlrev_b32 v{KF+2*t}, 16, v{KR+2*t+p}")
            a(f"v_and_b32 v{KF+2*t+1}, 0xffff0000, v{KR+2*t+p}")
        for t in range(8):
            a(f"v_lshlrev_b32 v{VF+2*t}, 16, v{VR+2*t+p}")
            a(f"v_and_b32 v{VF+2*t+1}, 0xffff0000, v{VR+2*t+p}")
        for r in range(8):
            a(f"v_pk_mul_f32 {pr(KF+2*r)}, {pr(KF+2*r)}, {pr(W+6)}")
            a(f"v_pk_fma_f32 {pr(KF+2*r)}, {pr(KF+2*(r+1))}, {pr(W+4)}, {pr(KF+2*r)}")
            a(f"v_pk_fma_f32 {pr(KF+2*r)}, {pr(KF+2*(r+2))}, {pr(W+2)}, {pr(KF+2*r)}")
            a(f"v_pk_fma_f32 {pr(KF+2*r)}, {pr(KF+2*(r+3))}, {pr(W+0)}, {pr(KF+2*r)}")
        for r in range(8):
            a(f"v_pk_mul_f32 {pr(VF+2*r)}, {pr(VF+2*r)}, {pr(KF+2*r)}")
        for e in range(2):
            Ob = O + 8 * p + 4 * e
            for q in range(4):
                a(f"v_cvt_pk_bf16_f32 v{Ob+q}, v{VF+2*(7-2*q)+e}, v{VF+2*(6-2*q)+e}")
            a(f"ds_write_b128 v10, {q4(Ob)}")
            a(f"ds_read_b128 {q4(Ob)}, v11")
    a("s_waitcnt lgkmcnt(0)")
    for c in range(4):
        a(f"buffer_store_dwordx4 {q4(O+4*c)}, v9, {WS}, s57 offen {SC}", tag='ks')
        a("s_add_u32 s57, s57, 4096")
    a("s_mov_b64 exec, -1")
    a.stamp(4)
    lds_arrive(a, C_KVD, 5, 6)
    a("s_lshl_b32 s59, s67, 5")
    a("s_add_u32 s59, s59, s66")
    a(f"s_mul_i32 s59, s59, {FS}")
    a(f"s_add_u32 s59, s59, {FK_OFF}")
    a(f"s_cmp_ge_u32 s41, {0 if XNOCONV else D}")
    a("s_cbranch_scc1 KF_NOCONV")
    a.wait(vm='ks')
    set_flag(a, 59, 12)
    lds_arrive(a, C_FLG, 5, 6)
    a.stamp(5)
    if SSMLATE:
        lds_wait(a, C_FLG, 5, 6, 4)
        ssm_loads()
    lds_wait(a, C_KVD, 5, 6, 4)
    lds_wait(a, C_LNR, 5, 6, 4)
    a("s_waitcnt vmcnt(0)")
    a("v_add_u32 v9, s42, v3")
    TA = 216
    for t in range(4):
        d = [HL + 4 * t + i for i in range(4)] + [HN + 2 * t, HN + 2 * t + 1]
        a(f"ds_write_b128 v9, {q4(d[0])} offset:{32+t*1024}")
        for i in range(4): a(f"v_alignbit_b32 v{TA+i}, v{d[i+1]}, v{d[i]}, 16")
        for i in range(4): a(f"v_mov_b32 v{TA+4+i}, v{d[i+1]}")
        for i in range(4): a(f"v_alignbit_b32 v{TA+8+i}, v{d[i+2]}, v{d[i+1]}, 16")
        for j in range(1, 4):
            a(f"ds_write_b128 v9, {q4(TA+4*(j-1))} offset:{j*HJ+32+t*1024}")
        TA = 216 + 12 * ((t + 1) & 1)
    a(f"v_readfirstlane_b32 s60, v{HL}")
    a(f"v_readfirstlane_b32 s61, v{HL+1}")
    a("v_mov_b32 v6, s60")
    a("v_mov_b32 v7, s61")
    a("v_lshlrev_b32 v9, 3, v2")
    a("v_add_u32 v9, s43, v9")
    a("v_mov_b32 v5, 0")
    a("ds_write_b64 v9, v[4:5]")
    a("v_and_b32 v11, 15, v2")
    a("v_lshrrev_b32 v12, 4, v2")
    a("v_add_u32 v13, 1, v11")
    a("v_and_b32 v14, 3, v13")
    a(f"s_movk_i32 s56, {HJ}")
    a("v_mul_u32_u24 v10, s56, v14")
    a("v_and_b32 v14, 0x1c, v13")
    a("v_lshl_add_u32 v10, v14, 1, v10")
    a("v_lshl_add_u32 v10, v12, 4, v10")
    a("v_add_u32 v10, s42, v10")
    a("v_lshlrev_b32 v15, 1, v11")
    a("v_sub_u32 v15, v15, v12")
    a("v_lshlrev_b32 v15, 4, v15")
    a(f"s_add_u32 s57, s43, {33*16-448}")
    a("v_add_u32 v15, s57, v15")
    a("v_lshrrev_b32 v16, 2, v2")
    a("v_and_b32 v17, 3, v2")
    a("v_mul_u32_u24 v18, s56, v16")
    a("v_lshl_add_u32 v18, v17, 3, v18")
    a("v_add_u32 v18, s42, v18")
    a("v_lshlrev_b32 v19, 4, v16")
    a("v_sub_u32 v19, 64, v19")
    a("v_lshlrev_b32 v20, 3, v12")
    a("v_add_u32 v20, v20, v11")
    a("v_sub_u32 v20, 15, v20")
    a("v_and_b32 v21, 1, v20")
    a("v_lshlrev_b32 v21, 4, v21")
    a("v_lshrrev_b32 v20, 1, v20")
    a("v_lshlrev_b32 v22, 5, v11")
    a("v_lshl_add_u32 v22, v12, 3, v22")
    a("s_mul_i32 s59, s41, 3277")
    a("s_lshr_b32 s59, s59, 16")
    a(f"s_mul_i32 s59, s59, {32*FS}")
    a(f"s_add_u32 s59, s59, {FK_OFF}")
    if FKGATE: lds_wait(a, C_FT, 28, 29, 4, sleep=2)
    poll(a, 3, 59, 28, 32, sleep=PSLEEP)
    a.stamp(6)
    a("s_add_u32 m0, s43, 512")
    a(f"s_add_u32 s57, s62, {KVR_OFF}")
    for t in range(4):
        a(f"buffer_load_dwordx4 v3, {WS}, s57 offen offset:{t*1024} {SC} lds")
    a("v_lshlrev_b64 v[6:7], v19, v[6:7]")
    a("s_mov_b32 s60, 0x8880")
    a("s_mov_b32 s61, 0")
    a("v_cndmask_b32 v6, 0, v6, s[60:61]")
    a("v_cndmask_b32 v7, 0, v7, s[60:61]")
    a("s_mov_b64 exec, 0xffff")
    a("ds_write_b64 v18, v[6:7]")
    a("s_mov_b64 exec, -1")
    a("v_lshlrev_b32 v8, v21, v8")
    DF = 24
    for j in range(4):
        a(f"v_cmp_eq_u32 vcc, {j}, v20")
        a(f"v_cndmask_b32 v{DF+j}, 0, v8, vcc")
    CACC, AB, BB = 32, 64, 128
    def rd(r, idx):
        buf = (r & 1) * 32
        if idx < 8:
            q = 8 * idx - r
            a(f"ds_read_b128 {q4(BB+buf+idx*4)}, v15 offset:{64*(q+7)}")
        else:
            kap = idx - 8
            k = 8 * kap + r
            a(f"ds_read_b64 {pr(AB+buf+kap*4)}, v10 offset:{64*k}")
            a(f"ds_read_b64 {pr(AB+buf+kap*4+2)}, v10 offset:{64*k+8}")
    for idx in range(8, 16): rd(0, idx)
    a(f"s_setprio {E('CVPRIO', 0)}")
    a("s_waitcnt vmcnt(0)")
    a.stamp(7)
    for idx in range(8): rd(0, idx)
    for r in range(8):
        buf = (r & 1) * 32
        a("s_waitcnt lgkmcnt(0)")
        if r == CVPAUSE:
            lds_wait(a, C_FGD, 5, 6, 4, sleep=8)
        seq = []
        if r == 0:
            for n in range(8): seq.append(('d', n))
        for kap in range(8):
            for n in range(kap, 8): seq.append((kap, n))
        nxt = list(range(16)) if r < 7 else []
        for i, (kap, n) in enumerate(seq):
            c = q4(CACC + n * 4)
            if kap == 'd':
                a(f"v_mfma_f32_16x16x32_bf16 {c}, {q4(DF)}, {q4(BB+buf+n*4)}, 0")
            else:
                a(f"v_mfma_f32_16x16x32_bf16 {c}, {q4(AB+buf+kap*4)}, {q4(BB+buf+(n-kap)*4)}, {c}")
            if nxt and i % 2 == 0:
                rd(r + 1, nxt.pop(0))
        if r == 3: a.stamp(8)
    a.stamp(9)
    a("s_setprio 3")
    a(f"s_add_u32 s57, s62, {Z_OFF}")
    for n in range(8):
        a(f"v_cvt_pk_bf16_f32 v{AB+2*n}, v{CACC+4*n}, v{CACC+4*n+1}")
        a(f"v_cvt_pk_bf16_f32 v{AB+2*n+1}, v{CACC+4*n+2}, v{CACC+4*n+3}")
        a(f"buffer_store_dwordx2 {pr(AB+2*n)}, v22, {WS}, s57 offen offset:{512*n} {SC}")
    a(f"s_mul_i32 s59, s41, {FS}")
    a(f"s_add_u32 s59, s59, {FZ_OFF}")
    a("s_waitcnt vmcnt(0)")
    set_flag(a, 59, 12)
    a.stamp(10)
    a("s_branch KF_AUXEND")
    a.label("KF_NOCONV")
    a("s_waitcnt vmcnt(0)")
    set_flag(a, 59, 12)
    lds_arrive(a, C_FLG, 5, 6)
    a.stamp(5)
    if PFSTEPS < 12 and not XNOW2:
        a("s_cmp_lg_u32 s64, 3")
        a("s_cbranch_scc1 KF_AUXEND")
        nrow = (12 - PFSTEPS) * (32 if P2 else 16)
        a("s_lshr_b32 s60, s2, 3")
        a("s_and_b32 s61, s2, 7")
        if not P2:
            a("s_lshr_b32 s57, s60, 2")
            a("s_and_b32 s56, s60, 3")
            a("s_lshl_b32 s58, s61, 2")
            a("s_add_u32 s56, s56, s58")
        else:
            a("s_lshr_b32 s57, s60, 3")
            a("s_and_b32 s58, s61, 4")
            a("s_add_u32 s57, s57, s58")
            a("s_and_b32 s56, s60, 7")
            a("s_and_b32 s58, s61, 3")
            a("s_lshl_b32 s58, s58, 3")
            a("s_add_u32 s56, s56, s58")
        if not P2:
            a("s_lshr_b32 s58, s57, 1")
            a("s_mul_i32 s58, s58, 384")
            a("s_and_b32 s57, s57, 1")
            a(f"s_mul_i32 s57, s57, {nrow}")
            a("s_add_u32 s57, s57, s58")
        else:
            a("s_and_b32 s57, s57, 3")
            a("s_mul_i32 s57, s57, 384")
        a(f"s_add_u32 s57, s57, {32*PFSTEPS}")
        a("s_lshl_b32 s57, s57, 12")
        a("s_lshl_b32 s56, s56, 7")
        a("s_add_u32 s57, s57, s56")
        a("v_lshrrev_b32 v59, 3, v2")
        a("v_and_b32 v60, 7, v2")
        a("v_lshlrev_b32 v60, 4, v60")
        a("v_lshl_add_u32 v62, v59, 12, v60")
        W2 = srd(a, 36, P_W2, S * F * 2)
        if STAG:
            a("s_lshr_b32 s58, s2, 3")
            a(f"s_and_b32 s58, s58, {STAG-1}")
            a(f"s_add_u32 s58, s58, {STAG0}")
            a("s_lshl_b32 s58, s58, 2")
            lds_wait(a, C_HIS, 5, 6, "s58", sleep=4)
        else:
            lds_wait(a, C_HIS, 5, 6, 48, sleep=4)
        for k in range(nrow // 8):
            a(f"buffer_load_dwordx4 {q4(64+4*(k%30))}, v62, {W2}, s57 offen {NTW}")
            a(f"s_add_u32 s57, s57, {8*4096}")
    a.label("KF_AUXEND")
    lds_wait(a, XG, 5, 6, 4, sleep=8)
    lds_wait(a, C_RD, 5, 6, 4, sleep=8)
    aux_p0(a)
    a("s_waitcnt vmcnt(0)")
    aux_p0b(a)
    a("s_waitcnt lgkmcnt(0)")
    aux_p1(a)
    a.stamp(11)
    aux_p2(a)
    a.flush_stamps(0, 12, vt=250, ws=P_WS)

NAME = "parallel_sum__ssm_conv_h3__mixer_token_mlp__prompt"
def build(path, as_list=True):
    ref = open(f"cdna_kernels/{NAME}.s.ref").read().split("\n")
    hdr = [l for l in ref if l.startswith(";") and "@launch" not in l and "Override launch" not in l and "grid=ceil" not in l]
    kn = NAME + "_kernel"
    t, d = gen(kn)
    s = "\n".join(hdr) + "\n"
    if as_list: s += f"; @launch kernel={kn} grid=(256,1,1) block=({THREADS},1,1) lds={LDS_TOTAL}\n"
    else: s += f"; @launch grid=(256,1,1) block=({THREADS},1,1) lds={LDS_TOTAL}\n"
    s += '.amdgcn_target "amdgcn-amd-amdhsa--gfx950"\n' + t + d
    open(path, "w").write(s)
if __name__ == "__main__":
    import sys
    build(sys.argv[1], as_list=(len(sys.argv) <= 2))
```

```python
from asmlib import *
import os, struct, math
E = lambda k, d: type(d)(os.environ.get(k, d))

S, D, F = 2048, 640, 1536
XBYTES = S * D * 2
EP_OFF = 0
FA_OFF = 0x1000
FK_OFF = 0xB000
FG_OFF = 0xF000
FZ_OFF = 0x13000
ST_OFF = 0x16000
HF_OFF = 0x20000
KVR_OFF = 0x2A0000
Z_OFF = 0x520000
GF_OFF = 0x7A0000
WS_TOTAL = 0x980000
FS = 16

NS = 6
RING = NS * 4096
HCOPY = 4160
HB_CH = 4 * HCOPY
KB_CH = 512 + 4096
L_H = 4 * RING
L_K = L_H + 3 * HB_CH
L_MISC = L_K + 3 * KB_CH
L_CNT = L_MISC
L_ST = L_MISC + 64
LDS_TOTAL = L_MISC + 128 + 1024
HJ = 3 * HCOPY
L_KS = L_H + HJ
L_VS = L_KS + 12 * 1024
L_KVT = L_VS + 10 * 1024
assert L_KVT + 4 * 768 <= L_K
C_RED, C_RD, C_KVL, C_KVD, C_LNW, C_LNR, C_HIS, C_FLG, C_FT, C_FGD, C_ZL, C_E, C_P2, C_FGF = [L_CNT + 4 * i for i in range(14)]
ZT = E('ZT', 2)
W2PRE = E('W2PRE', 10)
assert LDS_TOTAL <= 163840
THREADS = 512
NT = os.environ.get('NT', '')
CODEPF = E('CODEPF', 1)
ZWIDE = E('ZWIDE', 1)
OWIDE = E('OWIDE', 1)
YIELD = E('YIELD', 56)
XNOCONV = E('XNOCONV', 0)
XNOW2 = E('XNOW2', 0)
XNOMFMA = E('XNOMFMA', 0)
FTA = E('FTA', 1)
SSMLATE = E('SSMLATE', 0)
P1 = E('P1', 0)
P2 = E('P2', 0)
STAG = E('STAG', 8)
STAG0 = E('STAG0', 1)
PROG = E('PROG', 1)
OUTMOD = os.environ.get('OUTMOD', '')
NTW = os.environ.get('NTW', NT)
SC = "sc1"
SCL = os.environ.get("SCL", "sc1")
NTB = os.environ.get("NTB", "")
FT0 = E("FT0", 0)
PRE1 = E("PRE1", 12)
LEADD = E("LEADD", 12)
LEADR = E("LEADR", 6)
PFSTEPS = E("PFSTEPS", 4)
FTGATE = E("FTGATE", 1)
FKGATE = E("FKGATE", 1)
CVPAUSE = E("CVPAUSE", 8)
SPIN_MAX = 1 << 16
FT1 = E('FT1', 2)
NR1, NH = 6, 4
NR2, NS2, NG = 5, 5, 3
ROT = E('ROT', 0)
PSLEEP = E('PSLEEP', 6)
FTWAIT = E('FTWAIT', 1)
PFMOD = os.environ.get('PFMOD', '')
W2EARLY = E('W2EARLY', 0)
EXACT = E('EXACT', 1)
W2SIG = E('W2SIG', 0)

def f2u(x): return struct.unpack('<I', struct.pack('<f', x))[0]
GELU_K0 = -2.0 * math.sqrt(2.0 / math.pi) * math.log2(math.e)
GELU_K1 = GELU_K0 * 0.044715
def pr(r): return f"v[{r}:{r+1}]"
def q4(r): return f"v[{r}:{r+3}]"

P_Q, P_K, P_V, P_SK, P_SSMK, P_SSMD, P_BX, P_W1, P_B1, P_W2, P_B2, P_OUT, P_WS = 4, 6, 8, 10, 12, 14, 16, 18, 20, 22, 24, 26, 28
TAG = 30
WS = "s[32:35]"

def srd(a, d, base, nbytes):
    a(f"s_mov_b32 s{d}, s{base}")
    a(f"s_and_b32 s{d+1}, s{base+1}, 0xffff")
    a(f"s_mov_b32 s{d+2}, {nbytes}")
    a(f"s_mov_b32 s{d+3}, 0x00020000")
    return f"s[{d}:{d+3}]"

def reduce2(a, x, y, tx, ty):
    for m in ("quad_perm:[1,0,3,2]", "quad_perm:[2,3,0,1]", "row_half_mirror", "row_mirror"):
        a(f"v_add_f32_dpp v{x}, v{x}, v{x} {m} row_mask:0xf bank_mask:0xf")
        a(f"v_add_f32_dpp v{y}, v{y}, v{y} {m} row_mask:0xf bank_mask:0xf")
    for p in ("v_permlane16_swap_b32", "v_permlane32_swap_b32"):
        a(f"v_mov_b32 v{tx}, v{x}")
        a(f"v_mov_b32 v{ty}, v{y}")
        a(f"{p} v{x}, v{tx}")
        a(f"{p} v{y}, v{ty}")
        a(f"v_add_f32 v{x}, v{x}, v{tx}")
        a(f"v_add_f32 v{y}, v{y}, v{ty}")

def unpack(a, dst, src, n):
    for i in range(n):
        a(f"v_lshlrev_b32 v{dst+2*i}, 16, v{src+i}")
        a(f"v_and_b32 v{dst+2*i+1}, 0xffff0000, v{src+i}")

def pack(a, dst, src, n):
    for i in range(n):
        a(f"v_cvt_pk_bf16_f32 v{dst+i}, v{src+2*i}, v{src+2*i+1}")

def round_bf16(a, reg, n2, tmp):
    pack(a, tmp, reg, n2); unpack(a, reg, tmp, n2)

_uid = [0]
def lbl(p):
    _uid[0] += 1
    return f"{p}_{_uid[0]}"

def set_exec(a, n):
    m = (1 << n) - 1
    a(f"s_mov_b32 exec_lo, {hex(m & 0xffffffff)}")
    a(f"s_mov_b32 exec_hi, {hex(m >> 32)}")

def poll(a, vaddr, soff, vt, nlanes=64, sleep=0):
    L = lbl("POLL"); Lx = lbl("POLLX")
    a("s_mov_b32 s70, 0")
    if nlanes < 64: set_exec(a, nlanes)
    a.label(L)
    a(f"buffer_load_dwordx2 {pr(vt)}, v{vaddr}, {WS}, s{soff} offen {SC}")
    a("s_add_u32 s70, s70, 1")
    a("s_waitcnt vmcnt(0)")
    a(f"v_cmp_ne_u64 vcc, s[{TAG}:{TAG+1}], {pr(vt)}")
    a(f"s_cmp_gt_u32 s70, {SPIN_MAX}")
    a(f"s_cbranch_scc1 {Lx}")
    a(f"s_cbranch_vccz {Lx}")
    if sleep: a(f"s_sleep {sleep}")
    a(f"s_branch {L}")
    a.label(Lx)
    if nlanes < 64: a("s_mov_b64 exec, -1")

def set_flag(a, soff, vt):
    a(f"v_mov_b32 v{vt}, s{TAG}")
    a(f"v_mov_b32 v{vt+1}, s{TAG+1}")
    a(f"v_mov_b32 v{vt+2}, 0")
    a("s_mov_b64 exec, 1")
    a(f"buffer_store_dwordx2 {pr(vt)}, v{vt+2}, {WS}, s{soff} offen {SC}")
    a("s_mov_b64 exec, -1")

def lds_sync(a, cnt_off, va, vb, target):
    L = lbl("LSYNC"); Lx = lbl("LSYNCX")
    a(f"v_mov_b32 v{va}, {cnt_off}")
    a(f"v_mov_b32 v{vb}, 1")
    a("s_waitcnt lgkmcnt(0)")
    a("s_mov_b64 exec, 1")
    a(f"ds_add_u32 v{va}, v{vb}")
    a("s_mov_b64 exec, -1")
    a("s_mov_b32 s70, 0")
    a.label(L)
    a(f"ds_read_b32 v{vb}, v{va}")
    a("s_add_u32 s70, s70, 1")
    a("s_waitcnt lgkmcnt(0)")
    a(f"v_readfirstlane_b32 s71, v{vb}")
    a(f"s_cmp_gt_u32 s70, {SPIN_MAX*4}")
    a(f"s_cbranch_scc1 {Lx}")
    a(f"s_cmp_lt_u32 s71, {target}")
    a(f"s_cbranch_scc1 {L}")
    a.label(Lx)

class Coll:
    def __init__(self): self.l = []
    def __call__(self, t, tag=None): self.l.append(t)

def reduce2c(a, x, y, tx, ty): reduce2(a, x, y, tx, ty)

def ln_row(RAW, X, T, Q, sh):
    a = Coll()
    S1, S1h, S2, S2h, M, R = Q, Q + 1, Q + 2, Q + 3, Q + 4, Q + 5
    unpack(a, X, RAW, 5)
    a(f"v_readfirstlane_b32 s{sh}, v{X}")
    for i in range(10): a(f"v_subrev_f32 v{T+i}, s{sh}, v{X+i}")
    def sums(src):
        a(f"v_pk_add_f32 {pr(S1)}, {pr(src)}, {pr(src+2)}")
        a(f"v_pk_mul_f32 {pr(S2)}, {pr(src)}, {pr(src)}")
        for i in range(1, 5):
            if i >= 2: a(f"v_pk_add_f32 {pr(S1)}, {pr(S1)}, {pr(src+2*i)}")
            a(f"v_pk_fma_f32 {pr(S2)}, {pr(src+2*i)}, {pr(src+2*i)}, {pr(S2)}")
        a(f"v_add_f32 v{S1}, v{S1}, v{S1h}")
        a(f"v_add_f32 v{S2}, v{S2}, v{S2h}")
        reduce2(a, S1, S2, S1h, S2h)
    def stats(shift):
        a(f"v_mul_f32 v{S1}, s60, v{S1}")
        a(f"v_mul_f32 v{S2}, s60, v{S2}")
        a(f"v_fma_f32 v{S2}, -v{S1}, v{S1}, v{S2}")
        a(f"v_max_f32 v{S2}, 0, v{S2}")
        if shift: a(f"v_add_f32 v{S1}, s{sh}, v{S1}")
        a(f"v_cvt_pk_bf16_f32 v{S1h}, v{S1}, v{S2}")
        a(f"v_lshlrev_b32 v{M}, 16, v{S1h}")
        a(f"v_and_b32 v{S2}, 0xffff0000, v{S1h}")
        a(f"v_add_f32 v{S2}, 0x3727c5ac, v{S2}")
        a(f"v_cvt_pk_bf16_f32 v{S2}, v{S2}, v{S2}")
        a(f"v_lshlrev_b32 v{S2}, 16, v{S2}")
        a(f"v_sqrt_f32 v{S2}, v{S2}")
        a(f"v_cvt_pk_bf16_f32 v{S2}, v{S2}, v{S2}")
        a(f"v_lshlrev_b32 v{S2}, 16, v{S2}")
        a(f"v_rcp_f32 v{R}, v{S2}")
    def normalize():
        for i in range(5):
            a(f"v_pk_add_f32 {pr(T+2*i)}, {pr(X+2*i)}, {pr(M)} op_sel_hi:[1,0] neg_lo:[0,1] neg_hi:[0,1]")
        round_bf16(a, T, 5, RAW)
        for i in range(5):
            a(f"v_pk_mul_f32 {pr(T+2*i)}, {pr(T+2*i)}, {pr(M)} op_sel:[0,1] op_sel_hi:[1,1]")
        pack(a, RAW, T, 5)
    sums(T); stats(True)
    p1 = a.l; a.l = []
    normalize()
    unpack(a, X, RAW, 5)
    sums(X); stats(False)
    normalize()
    return p1, a.l

def common_entry(a):
    a("s_waitcnt lgkmcnt(0)")
    a(f"s_load_dwordx2 s[{TAG}:{TAG+1}], s[{P_WS}:{P_WS+1}], {EP_OFF}")

def tag_ready(a):
    a("s_waitcnt lgkmcnt(0)")
    a(f"s_add_u32 s{TAG}, s{TAG}, 0x9E3779B9")
    a(f"s_add_u32 s{TAG+1}, s{TAG+1}, 0x7F4A7C15")

RA, RB_ = 8, 72
def ln_addr_and_load(a):
    a("s_lshr_b32 s41, s2, 2")
    a("s_and_b32 s42, s2, 3")
    a("s_lshl_b32 s43, s41, 5")
    a("s_lshl_b32 s56, s42, 2")
    a("s_add_u32 s43, s43, s56")
    a("s_and_b32 s56, s40, 1")
    a("s_lshl_b32 s56, s56, 1")
    a("s_add_u32 s43, s43, s56")
    a("s_lshr_b32 s56, s40, 1")
    a("s_lshl_b32 s56, s56, 4")
    a("s_add_u32 s43, s43, s56")
    a("s_mul_i32 s43, s43, 1280")
    a("v_lshlrev_b32 v3, 3, v2")
    a("v_lshlrev_b32 v4, 2, v2")
    a(f"v_add_u32 v5, {L_CNT}, v4")
    a("v_mov_b32 v6, 0")
    a("s_mov_b64 exec, 0xffff")
    a("ds_write_b32 v5, v6")
    a("s_mov_b64 exec, -1")
    common_entry(a)
    X = srd(a, 36, P_Q, XBYTES)
    for r, o in ((RA, 0), (RB_, 1280)):
        a(f"buffer_load_dwordx2 {pr(r)}, v3, {X}, s43 offen offset:{o} {NT}", tag='x')
        a(f"buffer_load_dwordx2 {pr(r+2)}, v3, {X}, s43 offen offset:{o+512} {NT}", tag='x')
        a(f"buffer_load_dword v{r+4}, v4, {X}, s43 offen offset:{o+1024} {NT}", tag='x')
    a("s_barrier")
    srd(a, 32, P_WS, WS_TOTAL)

def ln_compute_publish(a, hook=None):
    a("s_mul_i32 s56, s40, 2688")
    a(f"s_add_u32 s56, s56, {L_K}")
    a("v_add_u32 v5, s56, v3")
    a("v_add_u32 v6, s56, v4")
    a("v_bfe_u32 v40, v2, 2, 2")
    a("s_movk_i32 s57, 1344")
    a("v_mul_u32_u24 v40, s57, v40")
    a("v_lshrrev_b32 v41, 4, v2")
    a("v_lshl_add_u32 v40, v41, 5, v40")
    a("v_and_b32 v42, 3, v2")
    a("v_lshl_add_u32 v40, v42, 3, v40")
    a("s_lshl_b32 s57, s40, 7")
    a(f"s_add_u32 s57, s57, {L_K}")
    a("v_add_u32 v40, s57, v40")
    a("v_and_b32 v42, 15, v2")
    a("v_lshlrev_b32 v42, 4, v42")
    a("v_lshl_add_u32 v42, v41, 10, v42")
    a("s_lshl_b32 s57, s40, 6")
    a("s_add_u32 s57, s57, s41")
    a("s_lshl_b32 s57, s57, 12")
    a("s_lshl_b32 s58, s42, 8")
    a("s_add_u32 s57, s57, s58")
    a(f"s_add_u32 s57, s57, {HF_OFF}")
    a("s_lshl_b32 s59, s40, 8")
    a("s_add_u32 s59, s59, s2")
    a(f"s_mul_i32 s59, s59, {FS}")
    a(f"s_add_u32 s59, s59, {FA_OFF}")
    a("s_mov_b32 s60, 0x3acccccd")
    a("s_lshl_b32 s61, s40, 4")
    a(f"s_add_u32 s61, s61, {L_ST}")
    a("v_mov_b32 v43, s61")
    a(f"v_lshlrev_b32 v54, {(4*256*FS).bit_length()-1}, v2")
    tag_ready(a)
    a.stamp(1)
    a.wait(vm='x')
    a.stamp(2)
    A1, A2 = ln_row(RA, 16, 44, 26, 62)
    B1, B2 = ln_row(RB_, 80, 92, 104, 63)
    for x, y in zip(A1, B1): a(x); a(y)
    a("s_mov_b64 exec, 1")
    a("ds_write_b64 v43, v[30:31]")
    a("ds_write_b64 v43, v[108:109] offset:8")
    a("s_mov_b64 exec, -1")
    for x, y in zip(A2, B2): a(x); a(y)
    for r, o in ((RA, 0), (RB_, 1344)):
        a(f"ds_write_b64 v5, {pr(r)} offset:{o}")
        a(f"ds_write_b64 v5, {pr(r+2)} offset:{o+512}")
        a(f"ds_write_b32 v6, v{r+4} offset:{o+1024}")
    lds_arrive(a, C_LNW, 44, 45)
    a.stamp(3)
    lds_wait(a, C_LNW, 44, 45, 8)
    for k in range(2):
        a(f"ds_read_b64_tr_b16 {pr(16+4*k)}, v40 offset:{512*k}", tag=('t', k))
        a(f"ds_read_b64_tr_b16 {pr(18+4*k)}, v40 offset:{4*1344+512*k}", tag=('t', k))
    a(f"s_add_u32 s58, s57, {4*64*4096}")
    a.wait(lg=[('t', 0)])
    a(f"buffer_store_dwordx4 v[16:19], v42, {WS}, s57 offen {SC}")
    L1 = lbl("LN1")
    a("s_mov_b32 s56, 3")
    a("s_cmp_ge_u32 s40, 2")
    a(f"s_cbranch_scc1 {L1}")
    a("ds_read_b64_tr_b16 v[24:25], v40 offset:1024")
    a(f"ds_read_b64_tr_b16 v[26:27], v40 offset:{4*1344+1024}")
    a(f"v_add_u32 v44, {L_ST}, v3")
    a("ds_read_b64 v[28:29], v44")
    a(f"s_add_u32 s57, s57, {8*64*4096}")
    a("s_lshl_b32 s61, s2, 6")
    a(f"s_add_u32 s61, s61, {ST_OFF}")
    a("s_mov_b32 s56, 7")
    a("s_waitcnt lgkmcnt(0)")
    a(f"buffer_store_dwordx4 v[24:27], v42, {WS}, s57 offen {SC}")
    a("s_mov_b64 exec, 0xff")
    a(f"buffer_store_dwordx2 v[28:29], v3, {WS}, s61 offen {SC}")
    a("s_mov_b64 exec, -1")
    a.label(L1)
    a("s_waitcnt lgkmcnt(0)")
    a(f"buffer_store_dwordx4 v[20:23], v42, {WS}, s58 offen {SC}", tag='hs')
    lds_arrive(a, C_LNR, 44, 45)
    a(f"v_mov_b32 v44, s{TAG}")
    a(f"v_mov_b32 v45, s{TAG+1}")
    a("s_mov_b32 s61, s56")
    if hook: hook()
    a.wait(vm='hs')
    a("s_mov_b32 exec_lo, s61")
    a("s_mov_b32 exec_hi, 0")
    a(f"buffer_store_dwordx2 v[44:45], v54, {WS}, s59 offen {SC}")
    a("s_mov_b64 exec, -1")
    a.stamp(4)

def gen(name):
    a = Asm()
    a.raw(kernel_header(name))
    a("s_cmp_ge_u32 s2, 256")
    a("s_cbranch_scc1 KF_DONE")
    a("s_load_dwordx16 s[4:19], s[0:1], 0")
    a("s_load_dwordx8 s[20:27], s[0:1], 64")
    a("s_load_dwordx2 s[28:29], s[0:1], 104")
    if CODEPF:
        a("s_getpc_b64 s[44:45]")
        a("s_and_b32 s44, s44, 0xffffff00")
        a("s_and_b32 s45, s45, 0xffff")
        a(f"s_mov_b32 s46, CODE_END-{name}")
        a("s_mov_b32 s47, 0x00020000")
        a("s_lshr_b32 s48, s2, 3")
        a("s_lshl_b32 s48, s48, 10")
        a("v_lshrrev_b32 v1, 6, v0")
        a("v_and_b32 v2, 7, v0")
        a("v_lshlrev_b32 v2, 4, v2")
        a("v_lshl_add_u32 v1, v1, 7, v2")
        a("buffer_load_dwordx4 v[252:255], v1, s[44:47], s48 offen")
    a.stamp(0)
    a("v_lshrrev_b32 v1, 6, v0")
    a("v_and_b32 v2, 63, v0")
    a("v_readfirstlane_b32 s40, v1")
    a("s_cmp_ge_u32 s40, 4")
    a("s_cbranch_scc1 KF_AUX")
    gen_gemm(a)
    a.label("KF_AUX")
    a.reset_counts()
    gen_aux(a)
    a.label("KF_DONE")
    a("s_endpgm")
    a.raw("CODE_END:")
    return a.render(), kernel_desc(name, 256, 72)

def lds_arrive(a, cnt_off, va, vb):
    a(f"v_mov_b32 v{va}, {cnt_off}")
    a(f"v_mov_b32 v{vb}, 1")
    a("s_waitcnt lgkmcnt(0)")
    a("s_mov_b64 exec, 1")
    a(f"ds_add_u32 v{va}, v{vb}")
    a("s_mov_b64 exec, -1")

def lds_wait(a, cnt_off, va, vb, target, sleep=0):
    L = lbl("LW"); Lx = lbl("LWX")
    a(f"v_mov_b32 v{va}, {cnt_off}")
    a("s_mov_b32 s70, 0")
    a.label(L)
    a(f"ds_read_b32 v{vb}, v{va}")
    a("s_add_u32 s70, s70, 1")
    a("s_waitcnt lgkmcnt(0)")
    a(f"v_readfirstlane_b32 s71, v{vb}")
    a(f"s_cmp_gt_u32 s70, {SPIN_MAX*4}")
    a(f"s_cbranch_scc1 {Lx}")
    a(f"s_cmp_ge_u32 s71, {target}")
    a(f"s_cbranch_scc1 {Lx}")
    if sleep: a(f"s_sleep {sleep}")
    a(f"s_branch {L}")
    a.label(Lx)

def gen_gemm(a):
    a("s_setprio 2")
    VD, VT, VH, VL = 56, 60, 64, 68
    VT2 = VT
    ACC = 72
    WR = 152
    HS = [8, 24, 40, 136]
    WR2 = 176
    GS = [8, 28, 152]
    a("s_and_b32 s64, s2, 7")
    a("s_lshr_b32 s65, s2, 3")
    ln_addr_and_load(a)
    if not P1:
        a("s_mul_i32 s66, s65, 171")
        a("s_lshr_b32 s66, s66, 9")
        a("s_mul_i32 s67, s66, 3")
        a("s_sub_u32 s67, s65, s67")
        a("s_mul_i32 s68, s66, 1639")
        a("s_lshr_b32 s68, s68, 10")
        a("s_and_b32 s68, s68, 15")
        a("s_mul_i32 s69, s64, 3")
        a("s_add_u32 s67, s67, s69")
    else:
        a("s_mul_i32 s66, s65, 43")
        a("s_lshr_b32 s66, s66, 8")
        a("s_mul_i32 s67, s66, 6")
        a("s_sub_u32 s67, s65, s67")
        a("s_mul_i32 s68, s66, 3277")
        a("s_lshr_b32 s68, s68, 10")
        a("s_and_b32 s68, s68, 15")
        a("s_lshr_b32 s69, s64, 2")
        a("s_mul_i32 s69, s69, 5")
        a("s_add_u32 s66, s66, s69")
        a("s_and_b32 s69, s64, 3")
        a("s_mul_i32 s69, s69, 6")
        a("s_add_u32 s67, s67, s69")
    a(f"v_lshlrev_b32 v{VL}, 4, v2")
    a("v_bfe_u32 v69, v2, 1, 2")
    a("v_lshrrev_b32 v70, 4, v2")
    a("v_xor_b32 v69, v69, v70")
    a("v_lshlrev_b32 v69, 5, v69")
    a("v_and_b32 v70, 1, v2")
    a("v_lshl_add_u32 v69, v70, 4, v69")
    a("v_lshrrev_b32 v70, 3, v2")
    a("s_movk_i32 s56, 3072")
    a(f"v_mad_u32_u24 v{VD}, v70, s56, v69")
    for t in range(1, 4):
        a(f"v_add_u32 v{VD+t}, {t*(24576-1024)}, v{VD}")
    a(f"s_mul_i32 s44, s40, {512*3072}")
    a("s_lshl_b32 s56, s67, 7")
    a("s_add_u32 s44, s44, s56")
    a(f"s_mul_i32 s45, s40, {RING}")
    a("s_mov_b32 s46, s68")
    W1 = srd(a, 48, P_W1, S * F * 2)
    a("v_lshrrev_b32 v71, 2, v2")
    a("v_lshlrev_b32 v71, 7, v71")
    a("v_and_b32 v70, 3, v2")
    a("v_lshl_add_u32 v71, v70, 3, v71")
    a("v_add_u32 v71, s45, v71")
    a("v_bfe_u32 v70, v2, 3, 2")
    for phi in range(4):
        a(f"v_xor_b32 v13, {phi}, v70")
        a(f"v_lshl_add_u32 v{VT+phi}, v13, 5, v71")
    for i in range(4):
        a(f"s_add_u32 s56, s40, {i}")
        a("s_and_b32 s56, s56, 3")
        a("s_lshl_b32 s56, s56, 10")
        a(f"v_add_u32 v{VH+i}, s56, v{VL}")
    def dma1_parts(t):
        mod = NTW if t < FT1 else NTB
        def p0():
            if t >= NS: a.wait(lg=[('r', t - NS)])
            a(f"s_mul_i32 s47, s46, {32*3072}")
            a("s_add_u32 s47, s47, s44")
            a(f"s_add_u32 m0, s45, {(t % NS)*4096}")
            a("s_add_u32 s46, s46, 1")
            a("s_and_b32 s46, s46, 15")
        ps = [p0]
        for i in range(4):
            ps.append(lambda i=i: a(f"buffer_load_dwordx4 v{VD+i}, {W1}, s47 offen offset:{i*1024} {mod} lds", tag=('w', t)))
        return ps
    def dma1(t):
        for p in dma1_parts(t): p()
    def hook():
        for t in range(FT0): dma1(t)
    ln_compute_publish(a, hook)
    a("s_cmp_ge_u32 s2, 240")
    a("s_cbranch_scc1 KF_G2")
    def trread_parts(t):
        wb = WR + (t % NR1) * 16
        ps = []
        for phi in range(4):
            def p(phi=phi):
                if phi == 0: a.wait(vm=[('w', t)])
                a(f"ds_read_b64_tr_b16 {pr(wb+phi*4)}, v{VT+phi} offset:{(t % NS)*4096}", tag=('r', t))
                a(f"ds_read_b64_tr_b16 {pr(wb+phi*4+2)}, v{VT+phi} offset:{(t % NS)*4096+2048}", tag=('r', t))
            ps.append(p)
        return ps
    NK = 16
    st = {'dma': FT0, 'rd': 0}
    def next_dma(defer=None):
        t = st['dma']; st['dma'] += 1
        if defer is None: dma1(t)
        else: defer.extend(dma1_parts(t))
    def next_rd(defer=None):
        t = st['rd']; st['rd'] += 1
        ps = trread_parts(t)
        if defer is None:
            for p in ps: p()
        else: defer.extend(ps)
    while st['dma'] < FTA: next_dma()
    if FTGATE: lds_wait(a, C_FLG if FTGATE == 1 else C_KVD, 4, 5, 4, sleep=1)
    while st['dma'] < FT1: next_dma()
    a("s_lshl_b32 s57, s66, 6")
    a("s_lshl_b32 s56, s40, 4")
    a("s_add_u32 s57, s57, s56")
    a("s_lshl_b32 s57, s57, 12")
    a(f"s_add_u32 s57, s57, {HF_OFF}")
    a("s_lshl_b32 s58, s68, 12")
    a("s_lshl_b32 s59, s66, 8")
    a("s_lshl_b32 s56, s40, 6")
    a("s_add_u32 s59, s59, s56")
    a(f"s_mul_i32 s59, s59, {FS}")
    a(f"s_add_u32 s59, s59, {FA_OFF}")
    B1 = srd(a, 52, P_B1, F * 2)
    a("v_lshrrev_b32 v3, 4, v2")
    a("v_lshlrev_b32 v3, 3, v3")
    a("s_lshl_b32 s56, s67, 7")
    BI = 248
    for phi in range(4):
        a(f"buffer_load_dwordx2 {pr(BI+2*phi)}, v3, {B1}, s56 offen offset:{phi*32}", tag='b')
    if FT1 and FTWAIT: a.wait(vm=[('w', FT1 - 1)])
    lds_arrive(a, C_FT, 4, 5)
    a.stamp(5)
    while st['dma'] < PRE1 - 2:
        while st['rd'] <= st['dma'] - NS + 1 and st['rd'] < NR1: next_rd()
        next_dma()
    a(f"buffer_load_dwordx2 v[4:5], v{VL}, {WS}, s59 offen {SC}", tag='fa')
    while st['dma'] < PRE1:
        while st['rd'] <= st['dma'] - NS + 1 and st['rd'] < NR1: next_rd()
        next_dma()
    while st['rd'] < min(LEADR, FT1): next_rd()
    a.wait(vm='fa')
    def fa_mask():
        a(f"v_cmp_ne_u64 vcc, s[{TAG}:{TAG+1}], v[4:5]")
        a("s_lshl_b32 s56, s68, 2")
        a("s_lshr_b64 s[62:63], vcc, s56")
        a("s_sub_u32 s56, 64, s56")
        a("s_lshl_b64 vcc, vcc, s56")
        a("s_or_b64 s[62:63], s[62:63], vcc")
    def fa_need(lo, hi):
        m = ((1 << (4 * hi)) - 1) & ~((1 << (4 * lo)) - 1)
        Lok = lbl("FAOK"); Lp = lbl("FAP")
        keep = list(a.vm)
        a("s_mov_b32 s70, 0")
        a.label(Lp)
        a(f"s_and_b32 s56, s62, {hex(m & 0xffffffff)}")
        a(f"s_and_b32 s71, s63, {hex(m >> 32)}")
        a("s_or_b32 s56, s56, s71")
        a(f"s_cbranch_scc0 {Lok}")
        a("s_add_u32 s70, s70, 1")
        a(f"s_cmp_gt_u32 s70, {SPIN_MAX}")
        a(f"s_cbranch_scc1 {Lok}")
        a("s_sleep 2")
        a(f"buffer_load_dwordx2 v[4:5], v{VL}, {WS}, s59 offen {SC}")
        a("s_waitcnt vmcnt(0)")
        fa_mask()
        a(f"s_branch {Lp}")
        a.label(Lok)
        a.vm = keep
    fa_mask()
    fa_need(0, 4 if PROG else 16)
    a.stamp(6)
    def hload(t, i):
        if i == 0: a("s_add_u32 s61, s57, s58")
        a(f"buffer_load_dwordx4 {q4(HS[t % NH]+i*4)}, v{VH+i}, {WS}, s61 offen {SCL}", tag=('h', t))
        if i == 3:
            a("s_add_u32 s58, s58, 4096")
            a("s_and_b32 s58, s58, 0xffff")
    for t in range(NH):
        for i in range(4): hload(t, i)
        if st['dma'] < min(NK, LEADD, st['rd'] + NS): next_dma()
    while st['rd'] < min(LEADR, st['dma']): next_rd()
    def w2_setup():
        if not P2:
            a("s_lshr_b32 s62, s65, 2")
            a("s_and_b32 s63, s65, 3")
            a("s_lshl_b32 s56, s64, 2")
            a("s_add_u32 s63, s63, s56")
        else:
            a("s_lshr_b32 s62, s65, 3")
            a("s_and_b32 s56, s64, 4")
            a("s_add_u32 s62, s62, s56")
            a("s_and_b32 s63, s65, 7")
            a("s_and_b32 s56, s64, 3")
            a("s_lshl_b32 s56, s56, 3")
            a("s_add_u32 s63, s63, s56")
        a("v_lshrrev_b32 v7, 3, v2")
        a(f"v_lshl_add_u32 v{VD}, v7, 12, v69")
        for t in range(1, 4):
            a(f"v_add_u32 v{VD+t}, {t*(32768-1024)}, v{VD}")
        a(f"s_mul_i32 s44, s40, {384*4096}")
        a("s_lshl_b32 s56, s63, 7")
        a("s_add_u32 s44, s44, s56")
        if ROT:
            a("s_and_b32 s46, s65, 3")
            a("s_mul_i32 s46, s46, 3")
            a("s_mul_i32 s56, s62, 3")
            a("s_lshr_b32 s56, s56, 1")
            a("s_add_u32 s46, s46, s56")
            a("s_cmp_ge_u32 s46, 12")
            a("s_cselect_b32 s56, 12, 0")
            a("s_sub_u32 s46, s46, s56")
        else:
            a("s_mov_b32 s46, 0")
        a("s_mov_b32 s68, s46")
        srd(a, 48, P_W2, S * F * 2)
        for si in range(4):
            a(f"s_add_u32 s56, s40, {si}")
            a("s_and_b32 s56, s56, 3")
            a("v_xor_b32 v7, s56, v70")
            a(f"v_lshl_add_u32 v{VT+si}, v7, 5, v71")
    W2 = "s[48:51]"
    SL2 = [3, 4, 5, 3, 4, 5, 3, 4, 0, 1, 5, 3]
    def trread2_parts(t):
        wb = WR2 + (t % NR2) * 16
        so = SL2[t] * 4096
        ps = []
        for si in range(4):
            def p(si=si):
                if si == 0: a.wait(vm=[('w2', t)])
                a(f"ds_read_b64_tr_b16 {pr(wb+si*4)}, v{VT2+si} offset:{so}", tag=('r2', t))
                a(f"ds_read_b64_tr_b16 {pr(wb+si*4+2)}, v{VT2+si} offset:{so+2048}", tag=('r2', t))
            ps.append(p)
        return ps
    def trread2(t):
        for p in trread2_parts(t): p()
    def dma2_parts(t, pre=None):
        def p0():
            if pre: pre()
            a(f"s_lshl_b32 s47, s46, 17")
            a("s_add_u32 s47, s47, s44")
            a(f"s_add_u32 m0, s45, {SL2[t]*4096}")
            a("s_add_u32 s46, s46, 1")
        ps = [p0]
        for i in range(4):
            ps.append(lambda i=i: a(f"buffer_load_dwordx4 v{VD+i}, {W2}, s47 offen offset:{i*1024} {NTB} lds", tag=('w2', t)))
        return ps
    def dma2(t):
        for p in dma2_parts(t): p()
    W2T0 = E('W2T0', 11)
    a(f"v_mov_b32 v3, {C_HIS}")
    a("v_mov_b32 v6, 1")
    def prog():
        a("s_mov_b64 exec, 1")
        a("ds_add_u32 v3, v6")
        a("s_mov_b64 exec, -1")
    for t in range(NK):
        wb = WR + (t % NR1) * 16
        hb = HS[t % NH]
        fill = []
        if st['dma'] < min(NK, st['rd'] + NS): next_dma(fill)
        if st['rd'] < NK and st['rd'] <= t - 1 + NR1: next_rd(fill)
        fill.append(prog)
        if t == W2T0:
            assert st['rd'] == NK and st['dma'] == NK, st
            fill.append(lambda: (a.wait(lg=[('r', NK - 1)]), w2_setup()))
        if W2T0 < t <= W2T0 + 3: fill.extend(dma2_parts(t - W2T0 - 1))
        if PROG and t % 4 == 0 and t + NH < NK: fa_need(t + NH, t + NH + 4)
        a.wait(vm=[('h', t)], lg=[('r', t)])
        for di in range(4):
            for phi in range(4):
                c = ACC + (phi * 4 + di) * 4
                src = "0" if t == 0 else q4(c)
                if not XNOMFMA or phi == 0: a(f"v_mfma_f32_16x16x32_bf16 {q4(c)}, {q4(wb+phi*4)}, {q4(hb+di*4)}, {src}")
                if phi < 3 and fill: fill.pop(0)()
            if t + NH < NK: hload(t + NH, di)
        while fill: fill.pop(0)()
        if t == 5: a.stamp(7)
    a.stamp(8)
    a(f"v_add_u32 v4, s45, v{VL}")
    for di in range(1, 4):
        for phi in range(4):
            a(f"ds_write_b128 v4, {q4(ACC+(phi*4+di)*4)} offset:{(di-1)*4096+phi*1024}")
    for di in range(1, 4):
        a(f"s_sub_u32 s56, s40, {di}")
        a("s_and_b32 s56, s56, 3")
        a(f"s_mul_i32 s56, s56, {RING}")
        a(f"v_add_u32 v{4+di}, s56, v{VL}")
    a("s_lshl_b32 s56, s66, 2")
    a("s_add_u32 s56, s56, s40")
    a("s_mul_i32 s57, s56, 205")
    a("s_lshr_b32 s57, s57, 10")
    a("s_mul_i32 s58, s57, 5")
    a("s_sub_u32 s58, s56, s58")
    a("s_mul_i32 s57, s57, 48")
    a("s_lshl_b32 s59, s67, 1")
    a("s_add_u32 s57, s57, s59")
    a("s_mul_i32 s57, s57, 5")
    a("s_add_u32 s57, s57, s58")
    a("s_lshl_b32 s57, s57, 10")
    a(f"s_add_u32 s57, s57, {GF_OFF}")
    a("s_add_u32 s58, s57, 5120")
    a("s_mul_i32 s59, s56, 24")
    a("s_add_u32 s59, s59, s67")
    a(f"s_mul_i32 s59, s59, {FS}")
    a(f"s_add_u32 s59, s59, {FG_OFF}")
    a(f"s_mov_b32 s60, {f2u(GELU_K1):#x}")
    BF, RB, SUM, OUT, TM, K0, ONE = 136, 8, 152, 168, ACC + 4, ACC + 12, ACC + 13
    a.wait(vm='b')
    unpack(a, BF, BI, 8)
    if not EXACT:
        for phi in range(4):
            for h in range(2):
                c = ACC + (phi * 4) * 4 + 2 * h
                a(f"v_pk_add_f32 {pr(c)}, {pr(c)}, {pr(BF+phi*4+2*h)}")
    lds_arrive(a, C_RED, 3, 4)
    for u in range(3): trread2(u)
    lds_wait(a, C_RED, 3, 4, 4)
    for di in range(1, 4):
        for phi in range(4):
            a(f"ds_read_b128 {q4(RB+((di-1)*4+phi)*4)}, v{4+di} offset:{(di-1)*4096+phi*1024}", tag=('p', di))
    for u in range(3, 6): dma2(u)
    a(f"v_mov_b32 v{K0}, {f2u(GELU_K0):#x}")
    for di in range(1, 4):
        a.wait(lg=[('p', di)])
        for phi in range(4):
            for h in range(2):
                s0 = ACC + (phi * 4) * 4 + 2 * h if di == 1 else SUM + phi * 4 + 2 * h
                a(f"v_pk_add_f32 {pr(SUM+phi*4+2*h)}, {pr(s0)}, {pr(RB+((di-1)*4+phi)*4+2*h)}")
    lds_arrive(a, C_RD, 3, ONE)
    n = 16
    if EXACT:
        round_bf16(a, SUM, 8, TM)
        for i in range(0, n, 2): a(f"v_pk_add_f32 {pr(SUM+i)}, {pr(SUM+i)}, {pr(BF+i)}")
        round_bf16(a, SUM, 8, TM)
    for half in range(2):
        R8 = range(8 * half, 8 * half + 8)
        for i in R8[::2]: a(f"v_pk_mul_f32 {pr(BF+i)}, {pr(SUM+i)}, {pr(SUM+i)}")
        for i in R8: a(f"v_fma_f32 v{BF+i}, v{BF+i}, s60, v{K0}")
        for i in R8[::2]: a(f"v_pk_mul_f32 {pr(BF+i)}, {pr(BF+i)}, {pr(SUM+i)}")
        for i in R8: a(f"v_exp_f32 v{BF+i}, v{BF+i}")
        for i in R8: a(f"v_add_f32 v{BF+i}, 1.0, v{BF+i}")
        for i in R8: a(f"v_rcp_f32 v{BF+i}, v{BF+i}")
        for i in R8[::2]: a(f"v_pk_mul_f32 {pr(SUM+i)}, {pr(SUM+i)}, {pr(BF+i)}")
        pack(a, OUT + 4 * half, SUM + 8 * half, 4)
        a(f"buffer_store_dwordx4 {q4(OUT+4*half)}, v{VL}, {WS}, s{57+half} offen {SC}", tag='gs')
    a(f"v_mov_b32 v3, {C_FGD}")
    a("v_mov_b32 v4, 1")
    a("s_mov_b64 exec, 1")
    a("ds_add_u32 v3, v4")
    a("s_mov_b64 exec, -1")
    for u in (3, 4): trread2(u)
    a.wait(vm='gs')
    set_flag(a, 59, 4)
    lds_arrive(a, C_FGF, 3, 7)
    a.stamp(9)
    keep = []
    a("s_or_b32 s56, s2, s40")
    a("s_cmp_lg_u32 s56, 0")
    a("s_cbranch_scc1 KF_NOEP")
    a(f"s_mov_b32 s56, {EP_OFF}")
    set_flag(a, 56, 4)
    a.label("KF_NOEP")
    lds_wait(a, C_FGF if E('GW', 1) else C_RD, 3, 4, 4)
    a("s_branch KF_G2B")
    a.label("KF_G2")
    w2_setup()
    lds_arrive(a, C_RED, 3, 4)
    a(f"v_mov_b32 v3, {C_HIS}")
    a("v_mov_b32 v4, 12")
    a("s_mov_b64 exec, 1")
    a("ds_add_u32 v3, v4")
    a("s_mov_b64 exec, -1")
    lds_arrive(a, C_FT, 3, 4)
    lds_arrive(a, C_FGD, 3, 4)
    lds_arrive(a, C_FGF, 3, 4)
    a("s_waitcnt vmcnt(0)")
    lds_arrive(a, C_RD, 3, 4)
    if FTGATE: lds_wait(a, C_FLG, 4, 5, 4, sleep=1)
    if not P2:
        a("v_lshrrev_b32 v3, 5, v2")
        a("v_lshlrev_b32 v3, 12, v3")
        a("v_and_b32 v4, 31, v2")
        a("v_lshl_add_u32 v3, v4, 4, v3")
    else:
        a(f"v_mov_b32 v3, v{VL}")
    a(f"s_mul_i32 s57, s40, {384*4096}")
    a("s_and_b32 s56, s65, 1")
    a(f"s_lshl_b32 s56, s56, {16 if P2 else 17}")
    a("s_add_u32 s57, s57, s56")
    if P2:
        a("s_and_b32 s56, s64, 3")
        a("s_lshl_b32 s56, s56, 10")
    else: a("s_lshl_b32 s56, s64, 9")
    a("s_add_u32 s57, s57, s56")
    a("s_mov_b32 s58, 0")
    a.label("KF_PF")
    for k in range(16):
        a(f"buffer_load_dwordx4 {q4(ACC+4*k)}, v3, {W2}, s57 offen {PFMOD}")
        a(f"s_add_u32 s57, s57, {(1 if P2 else 2)*4096}")
        a("s_waitcnt vmcnt(8)")
    a(f"s_add_u32 s57, s57, {(16 if P2 else 32)*4096}")
    a("s_add_u32 s58, s58, 1")
    a(f"s_cmp_lt_u32 s58, {PFSTEPS if P2 else PFSTEPS//2}")
    a("s_cbranch_scc1 KF_PF")
    for i in range(5, 10): a.stamp(i)
    a.reset_counts()
    for u in range(3): dma2(u)
    for u in range(3): trread2(u)
    a("s_waitcnt lgkmcnt(0)")
    for u in range(3, 6): dma2(u)
    for u in (3, 4): trread2(u)
    a("s_waitcnt vmcnt(0) lgkmcnt(0)")
    a.label("KF_G2B")
    NK = 12
    for u in range(6, W2PRE): dma2(u)
    a("s_mul_i32 s57, s62, 48")
    a("s_mul_i32 s56, s40, 12")
    a("s_add_u32 s57, s57, s56")
    a("s_mul_i32 s57, s57, 5120")
    a(f"s_add_u32 s57, s57, {GF_OFF}")
    a(f"v_add_u32 v{VH}, 4096, v{VL}")
    a("v_mul_u32_u24 v3, 43, v2")
    a("v_lshrrev_b32 v3, 8, v3")
    a("v_mul_u32_u24 v3, 18, v3")
    a("v_add_u32 v3, v3, v2")
    a(f"v_mul_u32_u24 v3, {FS}, v3")
    a("s_mul_i32 s41, s62, 120")
    a("s_mul_i32 s56, s40, 6")
    a("s_add_u32 s41, s41, s56")
    a(f"s_mul_i32 s41, s41, {FS}")
    a(f"s_add_u32 s41, s41, {FG_OFF}")
    a("s_mov_b32 s42, -1")
    a.stamp(10)
    def fg_need(ps, first=False):
        m = 0
        for p in ps:
            for i5 in range(5): m |= 1 << (6 * i5 + p)
        Lok = lbl("FGOK"); Lp = lbl("FGP")
        keep = list(a.vm)
        a("s_mov_b32 s70, 0")
        a.label(Lp)
        a(f"s_and_b32 s56, s42, {hex(m)}")
        a(f"s_cbranch_scc0 {Lok}")
        a("s_add_u32 s70, s70, 1")
        a(f"s_cmp_gt_u32 s70, {SPIN_MAX}")
        a(f"s_cbranch_scc1 {Lok}")
        set_exec(a, 30)
        a(f"buffer_load_dwordx2 v[4:5], v3, {WS}, s41 offen {SC}")
        a("s_waitcnt vmcnt(0)")
        a(f"v_cmp_ne_u64 vcc, s[{TAG}:{TAG+1}], v[4:5]")
        a("s_mov_b64 exec, -1")
        a("s_mov_b32 s42, vcc_lo")
        a(f"s_branch {Lp}")
        a.label(Lok)
        a.vm = [] if first else keep
    fg_need([0, 1] if PROG else range(6), first=True)
    a.lg = []
    a.stamp(11)
    def gload(t, i):
        gb = GS[t % NG]
        if i < 4: a(f"buffer_load_dwordx4 {q4(gb+i*4)}, v{VL}, {WS}, s57 offen offset:{i*1024} {SCL}", tag=('g', t))
        else:
            a(f"buffer_load_dwordx4 {q4(gb+16)}, v{VH}, {WS}, s57 offen {SCL}", tag=('g', t))
            a("s_add_u32 s57, s57, 5120")
    for t in range(NG):
        for i in range(5): gload(t, i)
    B2 = srd(a, 52, P_B2, S * 2)
    a(f"v_and_b32 v6, 15, v2")
    a(f"v_lshrrev_b32 v7, 4, v2")
    a("s_movk_i32 s56, 1280")
    a(f"v_mul_u32_u24 v{VH+1}, s56, v6")
    a(f"v_lshl_add_u32 v{VH+1}, v7, 3, v{VH+1}")
    a(f"v_lshlrev_b32 v{VH+2}, 1, v6")
    a(f"v_mul_u32_u24 v{VH+3}, s56, v6")
    a("v_and_b32 v6, 1, v7")
    a(f"v_lshl_add_u32 v{VH+3}, v6, 5, v{VH+3}")
    a("v_lshrrev_b32 v6, 1, v7")
    a(f"v_lshl_add_u32 v{VH+3}, v6, 4, v{VH+3}")
    a("s_lshl_b32 s60, s63, 6")
    a("s_lshl_b32 s56, s40, 4")
    a("s_add_u32 s60, s60, s56")
    a("s_mul_i32 s61, s60, 1280")
    a("s_mul_i32 s56, s62, 160")
    a("s_add_u32 s61, s61, s56")
    B2V = 174
    a("s_lshl_b32 s56, s60, 1")
    a(f"buffer_load_ushort v{B2V}, v{VH+2}, {B2}, s56 offen", tag='x')
    a(f"v_mov_b32 v6, {C_P2}")
    a("v_mov_b32 v7, 1")
    def prog2():
        a("s_mov_b64 exec, 1")
        a("ds_add_u32 v6, v7")
        a("s_mov_b64 exec, -1")
    nd = [W2PRE]
    for t in range(NK):
        wb = WR2 + (t % NR2) * 16
        gb = GS[t % NG]
        if PROG and (t + NG) % 2 == 0 and t + NG < NK and t + NG >= 4: fg_need([(t + NG) // 2])
        fill = []
        u = nd[0]
        if u < NK and (u < 10 or t >= u - 8):
            if u >= 10:
                assert SL2[u] == SL2[u - NS2]
                fill.extend(dma2_parts(u, pre=lambda u=u: a.wait(lg=[('r2', u - NS2)])))
            else: fill.extend(dma2_parts(u))
            nd[0] += 1
        if t >= 1 and t - 1 + NR2 < NK:
            assert t - 1 + NR2 < nd[0]
            fill.extend(trread2_parts(t - 1 + NR2))
        if t == ZT: fill.append(prog2)
        a.wait(vm=[('g', t)], lg=[('r2', t)])
        for i5 in range(5):
            for si in range(4):
                c = ACC + (i5 * 4 + si) * 4
                src = "0" if t == 0 else q4(c)
                if not XNOMFMA or si == 0: a(f"v_mfma_f32_16x16x32_bf16 {q4(c)}, {q4(gb+i5*4)}, {q4(wb+si*4)}, {src}")
                if si < 3 and fill: fill.pop(0)()
            if t + NG < NK: gload(t + NG, i5)
        while fill: fill.pop(0)()
        if t == 3: a.stamp(12)
    a.stamp(13)
    a(f"v_add_u32 v4, s45, v{VL}")
    def red_off(si, i5):
        k = (si - 1) * 5 + i5
        return (k if k < 8 else k + 4) * 1024
    for i5 in range(5):
        for si in range(1, 4):
            a(f"ds_write_b128 v4, {q4(ACC+(i5*4+si)*4)} offset:{red_off(si, i5)}")
    YF, TP, ER, EF = 176, 216, 226, 8
    for si in range(1, 4):
        a(f"s_sub_u32 s56, s40, {si}")
        a("s_and_b32 s56, s56, 3")
        a(f"s_mul_i32 s56, s56, {RING}")
        a(f"v_add_u32 v{48+si}, s56, v{VL}")
    a("v_lshlrev_b32 v48, 3, v2")
    a("v_add_u32 v48, s45, v48")
    a(f"v_lshlrev_b32 v{B2V}, 16, v{B2V}")
    OUTS = srd(a, 52, P_OUT, XBYTES)
    lds_arrive(a, C_RED, 3, 5)
    lds_wait(a, C_E, 3, 5, 4)
    for i5 in range(5):
        a(f"ds_read_b64 {pr(ER+2*i5)}, v48 offset:{8192+i5*512}", tag='e')
    lds_wait(a, C_RED, 3, 5, 8)
    for si in range(1, 4):
        for i5 in range(5):
            a(f"ds_read_b128 {q4(ACC+(i5*4+si)*4)}, v{48+si} offset:{red_off(si, i5)}", tag=('p', si))
    unpack(a, EF, ER, 10)
    if not EXACT:
        for i in range(10): a(f"v_pk_add_f32 {pr(EF+2*i)}, {pr(EF+2*i)}, {pr(B2V)} op_sel_hi:[1,0]")
        for i5 in range(5):
            for h in range(2):
                c = ACC + (i5 * 4) * 4 + 2 * h
                a(f"v_pk_add_f32 {pr(c)}, {pr(c)}, {pr(EF+4*i5+2*h)}")
    for si in range(1, 4):
        a.wait(lg=[('p', si)])
        for i5 in range(5):
            for h in range(2):
                c = ACC + (i5 * 4) * 4 + 2 * h
                a(f"v_pk_add_f32 {pr(c)}, {pr(c)}, {pr(c+4*si)}")
    for i5 in range(5):
        for h in range(2):
            c = ACC + (i5 * 4) * 4 + 2 * h
            a(f"v_cvt_pk_bf16_f32 v{TP+2*i5+h}, v{c}, v{c+1}")
        if EXACT:
            unpack(a, YF + 4 * i5, TP + 2 * i5, 2)
            for h in range(2): a(f"v_pk_add_f32 {pr(YF+4*i5+2*h)}, {pr(YF+4*i5+2*h)}, {pr(B2V)} op_sel_hi:[1,0]")
            round_bf16(a, YF + 4 * i5, 2, TP + 2 * i5)
            for h in range(2): a(f"v_pk_add_f32 {pr(YF+4*i5+2*h)}, {pr(YF+4*i5+2*h)}, {pr(EF+4*i5+2*h)}")
            pack(a, TP + 2 * i5, YF + 4 * i5, 2)
        if not OWIDE or i5 == 4:
            a(f"buffer_store_dwordx2 {pr(TP+2*i5)}, v{VH+1}, {OUTS}, s61 offen offset:{32*i5} {OUTMOD}")
        elif i5 & 1:
            o = TP + 2 * (i5 - 1)
            a(f"v_permlane16_swap_b32 v{o}, v{o+2}")
            a(f"v_permlane16_swap_b32 v{o+1}, v{o+3}")
            a(f"buffer_store_dwordx4 {q4(o)}, v{VH+3}, {OUTS}, s61 offen offset:{32*(i5-1)} {OUTMOD}")
    a.flush_stamps(0, 14, vt=250, ws=P_WS)
    a("s_endpgm")

XG = C_FGF if E('XGF', 1) else C_FGD
XFA, XNA = 192, 212
XRAW = 242
def aux_ids(a):
    a("s_lshr_b32 s56, s2, 3")
    a("s_lshr_b32 s65, s56, 2")
    a("s_and_b32 s66, s56, 3")
    a("s_and_b32 s56, s2, 7")
    a("s_lshl_b32 s56, s56, 2")
    a("s_add_u32 s66, s66, s56")
    a("s_lshl_b32 s68, s66, 6")
    a("s_lshl_b32 s56, s64, 4")
    a("s_add_u32 s68, s68, s56")
    a(f"s_mul_i32 s67, s64, {RING}")

def aux_p0(a):
    aux_ids(a)
    a("s_mul_i32 s69, s68, 1280")
    a("s_mul_i32 s56, s65, 160")
    a("s_add_u32 s69, s69, s56")
    XS = srd(a, 48, P_Q, XBYTES)
    a("s_movk_i32 s56, 1280")
    for k in range(3):
        a(f"v_add_u32 v232, {64*k}, v2")
        a("v_mul_u32_u24 v233, 205, v232")
        a("v_lshrrev_b32 v233, 11, v233")
        a("v_mul_u32_u24 v234, 10, v233")
        a("v_sub_u32 v234, v232, v234")
        a("v_lshlrev_b32 v234, 4, v234")
        a(f"v_mad_u32_u24 v236, v233, s56, v234")
        a(f"s_add_u32 m0, s67, {2*4096 + k*1024}")
        if k == 2: set_exec(a, 32)
        a(f"buffer_load_dwordx4 v236, {XS}, s69 offen {NT} lds")
        if k == 2: a("s_mov_b64 exec, -1")
    a("v_and_b32 v232, 15, v2")
    a("s_movk_i32 s56, 160")
    a("v_mul_u32_u24 v240, s56, v232")
    a("v_lshrrev_b32 v233, 4, v2")
    a("v_lshl_add_u32 v240, v233, 3, v240")
    a("v_add_u32 v240, s67, v240")

def aux_p0b(a):
    for i5 in range(5):
        a(f"ds_read_b64 {pr(XRAW+2*i5)}, v240 offset:{2*4096+32*i5}")

def aux_p1(a):
    aux_ids(a)
    a("v_and_b32 v232, 15, v2")
    a("v_lshrrev_b32 v233, 2, v232")
    a("v_lshlrev_b32 v233, 6, v233")
    a("v_and_b32 v234, 3, v232")
    a("v_lshl_add_u32 v239, v234, 3, v233")
    a("s_lshr_b32 s59, s68, 5")
    a(f"s_mul_i32 s59, s59, {4*FS}")
    a(f"s_add_u32 s59, s59, {FA_OFF}")
    poll(a, 3, 59, 232, 4, sleep=4)
    a("s_lshr_b32 s59, s68, 5")
    a("s_lshl_b32 s59, s59, 8")
    a("s_and_b32 s56, s68, 16")
    a("s_lshl_b32 s56, s56, 1")
    a("s_add_u32 s59, s59, s56")
    a(f"s_add_u32 s59, s59, {ST_OFF}")
    a(f"buffer_load_dwordx2 v[232:233], v239, {WS}, s59 offen {SC}")
    unpack(a, XFA, XRAW, 10)
    a("s_waitcnt vmcnt(0)")
    for i in range(20): a(f"v_sub_f32 v{XNA+i}, v{XFA+i}, v232")
    round_bf16(a, XNA, 10, XRAW)
    for i in range(20): a(f"v_mul_f32 v{XNA+i}, v{XNA+i}, v233")
    round_bf16(a, XNA, 10, XRAW)

def aux_p2(a):
    a("v_bfe_u32 v32, v2, 1, 2")
    a("v_lshrrev_b32 v33, 4, v2")
    a("v_xor_b32 v32, v32, v33")
    a("v_lshlrev_b32 v32, 5, v32")
    a("v_and_b32 v33, 1, v2")
    a("v_lshl_add_u32 v32, v33, 4, v32")
    a("v_lshrrev_b32 v33, 3, v2")
    a("v_lshl_add_u32 v32, v33, 12, v32")
    a("s_mul_i32 s57, s65, 80")
    a("s_mul_i32 s56, s64, 24")
    a("s_add_u32 s57, s57, s56")
    a(f"s_mul_i32 s59, s57, {FS}")
    a(f"s_add_u32 s59, s59, {FZ_OFF}")
    a("s_lshl_b32 s57, s57, 12")
    a("s_lshl_b32 s56, s66, 7")
    a("s_add_u32 s57, s57, s56")
    a(f"s_add_u32 s57, s57, {Z_OFF}")
    a(f"s_mul_i32 s58, s64, {KB_CH}")
    a(f"s_add_u32 s58, s58, {L_K+128}")
    a("v_bfe_u32 v34, v2, 3, 2")
    a("v_xor_b32 v34, s64, v34")
    a("v_lshlrev_b32 v34, 5, v34")
    a("v_and_b32 v35, 3, v2")
    a("v_lshl_add_u32 v34, v35, 3, v34")
    a(f"v_add_u32 v34, {L_K+128}, v34")
    a("v_lshrrev_b32 v35, 2, v2")
    a(f"s_movk_i32 s56, {KB_CH - 24*128}")
    for i5 in range(5):
        a(f"v_add_u32 v36, {16*i5}, v35")
        a("v_mul_u32_u24 v37, 43, v36")
        a("v_lshrrev_b32 v37, 10, v37")
        a("v_lshl_add_u32 v36, v36, 7, v34")
        a(f"v_mad_u32_u24 v{40+i5}, v37, s56, v36")
    a("v_lshlrev_b32 v38, 3, v2")
    a("v_add_u32 v38, s67, v38")
    lds_wait(a, C_RD, 5, 6, 4, sleep=8)
    lds_wait(a, C_P2, 5, 6, 1, sleep=8)
    L8 = lbl("Z8"); Lj = lbl("ZJ")
    a("s_cmp_eq_u32 s64, 3")
    a(f"s_cbranch_scc1 {L8}")
    poll(a, 3, 59, 46, 24, sleep=4)
    for k in range(3):
        a(f"s_add_u32 m0, s58, {k*1024}")
        a(f"buffer_load_dwordx4 v32, {WS}, s57 offen {SC} lds")
        a(f"s_add_u32 s57, s57, {8*4096}")
    a(f"s_branch {Lj}")
    a.label(L8)
    poll(a, 3, 59, 46, 8, sleep=4)
    a("s_mov_b32 m0, s58")
    a(f"buffer_load_dwordx4 v32, {WS}, s57 offen {SC} lds")
    a.label(Lj)
    a("s_waitcnt vmcnt(0)")
    lds_arrive(a, C_ZL, 5, 6)
    lds_wait(a, C_ZL, 5, 6, 4, sleep=1)
    for i5 in range(5):
        a(f"ds_read_b64_tr_b16 {pr(48+2*i5)}, v{40+i5}")
    a("s_waitcnt lgkmcnt(0)")
    unpack(a, 64, 48, 10)
    if EXACT:
        for i in range(20): a(f"v_mul_f32 v{64+i}, v{64+i}, v{XNA+i}")
        round_bf16(a, 64, 10, 48)
        for i in range(20): a(f"v_add_f32 v{64+i}, v{64+i}, v{XFA+i}")
    else:
        for i in range(20): a(f"v_fma_f32 v{64+i}, v{64+i}, v{XNA+i}, v{XFA+i}")
    pack(a, 48, 64, 10)
    for i5 in range(5):
        a(f"ds_write_b64 v38, {pr(48+2*i5)} offset:{8192+i5*512}")
    lds_arrive(a, C_E, 5, 6)

def gen_aux(a):
    a("s_setprio 3")
    a("s_sub_u32 s64, s40, 4")
    a("s_and_b32 s66, s2, 7")
    a("s_lshl_b32 s66, s66, 2")
    a("s_lshr_b32 s67, s2, 3")
    a("s_and_b32 s56, s67, 3")
    a("s_add_u32 s66, s66, s56")
    a("s_lshr_b32 s67, s67, 2")
    a("s_mul_i32 s68, s66, 81920")
    a("s_mul_i32 s56, s67, 160")
    a("s_add_u32 s68, s68, s56")
    a("s_lshl_b32 s56, s64, 6")
    a("v_add_u32 v56, s56, v2")
    a("s_lshl_b32 s57, s64, 10")
    a("s_sub_u32 s58, s68, 3840")
    a("s_movk_i32 s59, 1280")
    a("v_mov_b32 v63, -1")
    for i in range(3):
        if i: a("v_add_u32 v56, 256, v56")
        a("v_mul_u32_u24 v57, 729, v56")
        a("v_lshrrev_b32 v57, 16, v57")
        a("v_mul_u32_u24 v58, 90, v57")
        a("v_sub_u32 v58, v56, v58")
        a("v_mul_u32_u24 v59, 205, v58")
        a("v_lshrrev_b32 v59, 11, v59")
        a("v_mul_u32_u24 v60, 10, v59")
        a("v_sub_u32 v60, v58, v60")
        a("v_lshl_add_u32 v61, v59, 3, v57")
        a("v_lshlrev_b32 v60, 4, v60")
        a("v_mad_u32_u24 v60, v61, s59, v60")
        a("v_add_u32 v60, s58, v60")
        a("v_cmp_gt_u32 vcc, 67, v61")
        a("v_cndmask_b32 v60, v63, v60, vcc")
        a("v_cmp_gt_u32 vcc, 8, v57")
        a(f"v_cndmask_b32 v{40+i}, v63, v60, vcc")
    a("v_add_u32 v56, s56, v2")
    for i in range(3):
        if i: a("v_add_u32 v56, 256, v56")
        a("v_mul_u32_u24 v57, 820, v56")
        a("v_lshrrev_b32 v57, 16, v57")
        a("v_mul_u32_u24 v58, 80, v57")
        a("v_sub_u32 v58, v56, v58")
        a("v_mul_u32_u24 v59, 205, v58")
        a("v_lshrrev_b32 v59, 11, v59")
        a("v_mul_u32_u24 v60, 10, v59")
        a("v_sub_u32 v60, v58, v60")
        a("v_lshl_add_u32 v61, v59, 3, v57")
        a("v_lshlrev_b32 v60, 4, v60")
        a(f"v_mad_u32_u24 v{43+i}, v61, s59, v60")
    a("s_lshl_b32 s67, s67, 2")
    a("s_add_u32 s67, s67, s64")
    a("v_mul_u32_u24 v56, 52, v2")
    a("v_lshrrev_b32 v56, 8, v56")
    a("v_mul_u32_u24 v57, 5, v56")
    a("v_sub_u32 v57, v2, v57")
    a("v_lshlrev_b32 v61, 5, v57")
    a("s_mul_i32 s69, s67, 160")
    KR, VR, SK = 64, 86, 102
    a("s_movk_i32 s56, 160")
    a("v_mul_u32_u24 v58, s56, v56")
    a("v_lshl_add_u32 v58, v57, 3, v58")
    a("s_mul_i32 s56, s64, 40")
    a(f"s_add_u32 s56, s56, {L_KS}")
    a("v_add_u32 v58, s56, v58")
    a("s_lshl_b32 s41, s64, 8")
    a("s_sub_u32 s42, 255, s2")
    a("s_add_u32 s41, s41, s42")
    a(f"s_mul_i32 s42, s64, {HCOPY}")
    a(f"s_add_u32 s42, s42, {L_H}")
    a(f"s_mul_i32 s43, s64, {KB_CH}")
    a(f"s_add_u32 s43, s43, {L_K}")
    a("v_lshlrev_b32 v3, 4, v2")
    a("s_lshl_b32 s62, s41, 12")
    a("v_mov_b32 v4, 0")
    common_entry(a)
    KS = srd(a, 44, P_K, XBYTES)
    VS = srd(a, 48, P_V, XBYTES)
    SKS = srd(a, 52, P_SK, D * 8)
    SM = srd(a, 36, P_SSMK, D * S * 2)
    a("s_barrier")
    a.stamp(1)
    for i in range(3):
        a(f"s_add_u32 m0, s57, {L_KS + i*4096}")
        a(f"buffer_load_dwordx4 v{40+i}, {KS}, 0 offen {NT} lds")
    for i in range(2):
        a(f"s_add_u32 m0, s57, {L_VS + i*4096}")
        a(f"buffer_load_dwordx4 v{43+i}, {VS}, s68 offen {NT} lds")
    Ls = lbl("NOV")
    a("s_cmp_ge_u32 s64, 2")
    a(f"s_cbranch_scc1 {Ls}")
    a(f"s_add_u32 m0, s57, {L_VS + 2*4096}")
    a(f"buffer_load_dwordx4 v45, {VS}, s68 offen {NT} lds")
    a.label(Ls)
    tag_ready(a)
    lds_arrive(a, C_LNW, 5, 6)
    a(f"buffer_load_dwordx4 {q4(SK)}, v61, {SKS}, s69 offen")
    a(f"buffer_load_dwordx4 {q4(SK+4)}, v61, {SKS}, s69 offen offset:16")
    HL, HN = 192, 208
    def ssm_loads():
        for t in range(4):
            a(f"buffer_load_dwordx4 {q4(HL+4*t)}, v3, {SM}, s62 offen offset:{t*1024} {NT}")
        for t in range(4):
            a(f"buffer_load_dwordx2 {pr(HN+2*t)}, v3, {SM}, s62 offen offset:{t*1024+16}")
        SD = srd(a, 44, P_SSMD, D * 2)
        a("s_lshl_b32 s56, s41, 1")
        a(f"buffer_load_ushort v8, v4, {SD}, s56 offen")
    if not SSMLATE: ssm_loads()
    a.stamp(2)
    srd(a, 32, P_WS, WS_TOTAL)
    a(f"s_waitcnt vmcnt({0 if SSMLATE else 9})")
    a.vm = []
    a.stamp(3)
    lds_arrive(a, C_KVL, 5, 6)
    a("v_lshrrev_b32 v12, 3, v2")
    a("v_and_b32 v13, 7, v2")
    a("v_lshlrev_b32 v9, 14, v12")
    a("v_lshl_add_u32 v9, v13, 4, v9")
    a(f"s_mul_i32 s57, s67, {20*4096}")
    a("s_lshl_b32 s56, s66, 7")
    a("s_add_u32 s57, s57, s56")
    a(f"s_add_u32 s57, s57, {KVR_OFF}")
    a("s_mul_i32 s58, s64, 768")
    a(f"s_add_u32 s58, s58, {L_KVT}")
    a("s_movk_i32 s56, 144")
    a("v_mul_u32_u24 v10, s56, v57")
    a("v_lshl_add_u32 v10, v56, 4, v10")
    a("v_add_u32 v10, s58, v10")
    a("v_mul_u32_u24 v11, s56, v12")
    a("v_lshl_add_u32 v11, v13, 4, v11")
    a("v_add_u32 v11, s58, v11")
    lds_wait(a, C_KVL, 5, 6, 4)
    set_exec(a, 40)
    for t in range(11):
        a(f"ds_read_b64 {pr(KR+2*t)}, v58 offset:{(t % 8)*1440 + (t // 8)*160}")
    for t in range(8):
        a(f"ds_read_b64 {pr(VR+2*t)}, v58 offset:{12*1024 + t*1280}")
    a("s_waitcnt lgkmcnt(0)")
    W, KF, VF, O = 112, 120, 142, 160
    for p in range(2):
        for e in range(2):
            c = 2 * p + e
            a(f"v_lshlrev_b32 v{W+0+e}, 16, v{SK+2*c}")
            a(f"v_and_b32 v{W+2+e}, 0xffff0000, v{SK+2*c}")
            a(f"v_lshlrev_b32 v{W+4+e}, 16, v{SK+2*c+1}")
            a(f"v_and_b32 v{W+6+e}, 0xffff0000, v{SK+2*c+1}")
        for t in range(11):
            a(f"v_lshlrev_b32 v{KF+2*t}, 16, v{KR+2*t+p}")
            a(f"v_and_b32 v{KF+2*t+1}, 0xffff0000, v{KR+2*t+p}")
        for t in range(8):
            a(f"v_lshlrev_b32 v{VF+2*t}, 16, v{VR+2*t+p}")
            a(f"v_and_b32 v{VF+2*t+1}, 0xffff0000, v{VR+2*t+p}")
        for r in range(8):
            a(f"v_pk_mul_f32 {pr(KF+2*r)}, {pr(KF+2*r)}, {pr(W+6)}")
            a(f"v_pk_fma_f32 {pr(KF+2*r)}, {pr(KF+2*(r+1))}, {pr(W+4)}, {pr(KF+2*r)}")
            a(f"v_pk_fma_f32 {pr(KF+2*r)}, {pr(KF+2*(r+2))}, {pr(W+2)}, {pr(KF+2*r)}")
            a(f"v_pk_fma_f32 {pr(KF+2*r)}, {pr(KF+2*(r+3))}, {pr(W+0)}, {pr(KF+2*r)}")
        for r in range(8):
            a(f"v_pk_mul_f32 {pr(VF+2*r)}, {pr(VF+2*r)}, {pr(KF+2*r)}")
        for e in range(2):
            Ob = O + 8 * p + 4 * e
            for q in range(4):
                a(f"v_cvt_pk_bf16_f32 v{Ob+q}, v{VF+2*(7-2*q)+e}, v{VF+2*(6-2*q)+e}")
            a(f"ds_write_b128 v10, {q4(Ob)}")
            a(f"ds_read_b128 {q4(Ob)}, v11")
    a("s_waitcnt lgkmcnt(0)")
    for c in range(4):
        a(f"buffer_store_dwordx4 {q4(O+4*c)}, v9, {WS}, s57 offen {SC}", tag='ks')
        a("s_add_u32 s57, s57, 4096")
    a("s_mov_b64 exec, -1")
    a.stamp(4)
    lds_arrive(a, C_KVD, 5, 6)
    a("s_lshl_b32 s59, s67, 5")
    a("s_add_u32 s59, s59, s66")
    a(f"s_mul_i32 s59, s59, {FS}")
    a(f"s_add_u32 s59, s59, {FK_OFF}")
    a(f"s_cmp_ge_u32 s41, {0 if XNOCONV else D}")
    a("s_cbranch_scc1 KF_NOCONV")
    a.wait(vm='ks')
    set_flag(a, 59, 12)
    lds_arrive(a, C_FLG, 5, 6)
    a.stamp(5)
    if SSMLATE:
        lds_wait(a, C_FLG, 5, 6, 4)
        ssm_loads()
    lds_wait(a, C_KVD, 5, 6, 4)
    lds_wait(a, C_LNR, 5, 6, 4)
    a("s_waitcnt vmcnt(0)")
    a("v_add_u32 v9, s42, v3")
    TA = 216
    for t in range(4):
        d = [HL + 4 * t + i for i in range(4)] + [HN + 2 * t, HN + 2 * t + 1]
        a(f"ds_write_b128 v9, {q4(d[0])} offset:{32+t*1024}")
        for i in range(4): a(f"v_alignbit_b32 v{TA+i}, v{d[i+1]}, v{d[i]}, 16")
        for i in range(4): a(f"v_mov_b32 v{TA+4+i}, v{d[i+1]}")
        for i in range(4): a(f"v_alignbit_b32 v{TA+8+i}, v{d[i+2]}, v{d[i+1]}, 16")
        for j in range(1, 4):
            a(f"ds_write_b128 v9, {q4(TA+4*(j-1))} offset:{j*HJ+32+t*1024}")
        TA = 216 + 12 * ((t + 1) & 1)
    a(f"v_readfirstlane_b32 s60, v{HL}")
    a(f"v_readfirstlane_b32 s61, v{HL+1}")
    a("v_mov_b32 v6, s60")
    a("v_mov_b32 v7, s61")
    a("v_lshlrev_b32 v9, 3, v2")
    a("v_add_u32 v9, s43, v9")
    a("v_mov_b32 v5, 0")
    a("ds_write_b64 v9, v[4:5]")
    a("v_and_b32 v11, 15, v2")
    a("v_lshrrev_b32 v12, 4, v2")
    a("v_add_u32 v13, 1, v11")
    a("v_and_b32 v14, 3, v13")
    a(f"s_movk_i32 s56, {HJ}")
    a("v_mul_u32_u24 v10, s56, v14")
    a("v_and_b32 v14, 0x1c, v13")
    a("v_lshl_add_u32 v10, v14, 1, v10")
    a("v_lshl_add_u32 v10, v12, 4, v10")
    a("v_add_u32 v10, s42, v10")
    a("v_lshlrev_b32 v15, 1, v11")
    a("v_sub_u32 v15, v15, v12")
    a("v_lshlrev_b32 v15, 4, v15")
    a(f"s_add_u32 s57, s43, {33*16-448}")
    a("v_add_u32 v15, s57, v15")
    a("v_lshrrev_b32 v16, 2, v2")
    a("v_and_b32 v17, 3, v2")
    a("v_mul_u32_u24 v18, s56, v16")
    a("v_lshl_add_u32 v18, v17, 3, v18")
    a("v_add_u32 v18, s42, v18")
    a("v_lshlrev_b32 v19, 4, v16")
    a("v_sub_u32 v19, 64, v19")
    a("v_lshlrev_b32 v20, 3, v12")
    a("v_add_u32 v20, v20, v11")
    a("v_sub_u32 v20, 15, v20")
    a("v_and_b32 v21, 1, v20")
    a("v_lshlrev_b32 v21, 4, v21")
    a("v_lshrrev_b32 v20, 1, v20")
    a("v_lshlrev_b32 v22, 5, v11")
    a("v_lshl_add_u32 v22, v12, 3, v22")
    a("s_mul_i32 s59, s41, 3277")
    a("s_lshr_b32 s59, s59, 16")
    a(f"s_mul_i32 s59, s59, {32*FS}")
    a(f"s_add_u32 s59, s59, {FK_OFF}")
    if FKGATE: lds_wait(a, C_FT, 28, 29, 4, sleep=2)
    poll(a, 3, 59, 28, 32, sleep=PSLEEP)
    a.stamp(6)
    a("s_add_u32 m0, s43, 512")
    a(f"s_add_u32 s57, s62, {KVR_OFF}")
    for t in range(4):
        a(f"buffer_load_dwordx4 v3, {WS}, s57 offen offset:{t*1024} {SC} lds")
    a("v_lshlrev_b64 v[6:7], v19, v[6:7]")
    a("s_mov_b32 s60, 0x8880")
    a("s_mov_b32 s61, 0")
    a("v_cndmask_b32 v6, 0, v6, s[60:61]")
    a("v_cndmask_b32 v7, 0, v7, s[60:61]")
    a("s_mov_b64 exec, 0xffff")
    a("ds_write_b64 v18, v[6:7]")
    a("s_mov_b64 exec, -1")
    a("v_lshlrev_b32 v8, v21, v8")
    DF = 24
    for j in range(4):
        a(f"v_cmp_eq_u32 vcc, {j}, v20")
        a(f"v_cndmask_b32 v{DF+j}, 0, v8, vcc")
    CACC, AB, BB = 32, 64, 128
    def rd(r, idx):
        buf = (r & 1) * 32
        if idx < 8:
            q = 8 * idx - r
            a(f"ds_read_b128 {q4(BB+buf+idx*4)}, v15 offset:{64*(q+7)}")
        else:
            kap = idx - 8
            k = 8 * kap + r
            a(f"ds_read_b64 {pr(AB+buf+kap*4)}, v10 offset:{64*k}")
            a(f"ds_read_b64 {pr(AB+buf+kap*4+2)}, v10 offset:{64*k+8}")
    for idx in range(8, 16): rd(0, idx)
    a(f"s_setprio {E('CVPRIO', 0)}")
    a("s_waitcnt vmcnt(0)")
    a.stamp(7)
    for idx in range(8): rd(0, idx)
    a(f"v_mov_b32 v30, {C_HIS}")
    a("ds_read_b32 v31, v30")
    for r in range(8):
        buf = (r & 1) * 32
        a("s_waitcnt lgkmcnt(0)")
        if r == CVPAUSE:
            lds_wait(a, C_FGD, 5, 6, 4, sleep=8)
        if YIELD:
            Ly = lbl("NOY")
            a("v_readfirstlane_b32 s56, v31")
            a(f"s_cmp_lt_u32 s56, {YIELD}")
            a(f"s_cbranch_scc1 {Ly}")
            lds_wait(a, C_FGD, 5, 6, 4, sleep=8)
            a.label(Ly)
        seq = []
        if r == 0:
            for n in range(8): seq.append(('d', n))
        for kap in range(8):
            for n in range(kap, 8): seq.append((kap, n))
        nxt = list(range(16)) if r < 7 else []
        for i, (kap, n) in enumerate(seq):
            c = q4(CACC + n * 4)
            if kap == 'd':
                a(f"v_mfma_f32_16x16x32_bf16 {c}, {q4(DF)}, {q4(BB+buf+n*4)}, 0")
            else:
                a(f"v_mfma_f32_16x16x32_bf16 {c}, {q4(AB+buf+kap*4)}, {q4(BB+buf+(n-kap)*4)}, {c}")
            if nxt and i % 2 == 0:
                rd(r + 1, nxt.pop(0))
            if YIELD and i == len(seq) - 3 and r < 7: a("ds_read_b32 v31, v30")
        if r == 3: a.stamp(8)
    a.stamp(9)
    a("s_setprio 3")
    a(f"s_add_u32 s57, s62, {Z_OFF}")
    if ZWIDE:
        a("v_and_b32 v13, 1, v12")
        a("v_lshlrev_b32 v22, 9, v13")
        a("v_lshl_add_u32 v22, v11, 5, v22")
        a("v_lshrrev_b32 v13, 1, v12")
        a("v_lshl_add_u32 v22, v13, 4, v22")
        for n in range(0, 8, 2):
            o = AB + 2 * n
            a(f"v_cvt_pk_bf16_f32 v{o}, v{CACC+4*n}, v{CACC+4*n+1}")
            a(f"v_cvt_pk_bf16_f32 v{o+1}, v{CACC+4*n+2}, v{CACC+4*n+3}")
            a(f"v_cvt_pk_bf16_f32 v{o+2}, v{CACC+4*n+4}, v{CACC+4*n+5}")
            a(f"v_cvt_pk_bf16_f32 v{o+3}, v{CACC+4*n+6}, v{CACC+4*n+7}")
            a(f"v_permlane16_swap_b32 v{o}, v{o+2}")
            a(f"v_permlane16_swap_b32 v{o+1}, v{o+3}")
            a(f"buffer_store_dwordx4 {q4(o)}, v22, {WS}, s57 offen offset:{512*n} {SC}")
    else:
        for n in range(8):
            a(f"v_cvt_pk_bf16_f32 v{AB+2*n}, v{CACC+4*n}, v{CACC+4*n+1}")
            a(f"v_cvt_pk_bf16_f32 v{AB+2*n+1}, v{CACC+4*n+2}, v{CACC+4*n+3}")
            a(f"buffer_store_dwordx2 {pr(AB+2*n)}, v22, {WS}, s57 offen offset:{512*n} {SC}")
    a(f"s_mul_i32 s59, s41, {FS}")
    a(f"s_add_u32 s59, s59, {FZ_OFF}")
    a("s_waitcnt vmcnt(0)")
    set_flag(a, 59, 12)
    a.stamp(10)
    a("s_branch KF_AUXEND")
    a.label("KF_NOCONV")
    a("s_waitcnt vmcnt(0)")
    set_flag(a, 59, 12)
    lds_arrive(a, C_FLG, 5, 6)
    a.stamp(5)
    if PFSTEPS < 12 and not XNOW2:
        a("s_cmp_lg_u32 s64, 3")
        a("s_cbranch_scc1 KF_AUXEND")
        nrow = (12 - PFSTEPS) * (32 if P2 else 16)
        a("s_lshr_b32 s60, s2, 3")
        a("s_and_b32 s61, s2, 7")
        if not P2:
            a("s_lshr_b32 s57, s60, 2")
            a("s_and_b32 s56, s60, 3")
            a("s_lshl_b32 s58, s61, 2")
            a("s_add_u32 s56, s56, s58")
        else:
            a("s_lshr_b32 s57, s60, 3")
            a("s_and_b32 s58, s61, 4")
            a("s_add_u32 s57, s57, s58")
            a("s_and_b32 s56, s60, 7")
            a("s_and_b32 s58, s61, 3")
            a("s_lshl_b32 s58, s58, 3")
            a("s_add_u32 s56, s56, s58")
        if not P2:
            a("s_lshr_b32 s58, s57, 1")
            a("s_mul_i32 s58, s58, 384")
            a("s_and_b32 s57, s57, 1")
            a(f"s_mul_i32 s57, s57, {nrow}")
            a("s_add_u32 s57, s57, s58")
        else:
            a("s_and_b32 s57, s57, 3")
            a("s_mul_i32 s57, s57, 384")
        a(f"s_add_u32 s57, s57, {32*PFSTEPS}")
        a("s_lshl_b32 s57, s57, 12")
        a("s_lshl_b32 s56, s56, 7")
        a("s_add_u32 s57, s57, s56")
        a("v_lshrrev_b32 v59, 3, v2")
        a("v_and_b32 v60, 7, v2")
        a("v_lshlrev_b32 v60, 4, v60")
        a("v_lshl_add_u32 v62, v59, 12, v60")
        W2 = srd(a, 36, P_W2, S * F * 2)
        if STAG:
            a("s_lshr_b32 s58, s2, 3")
            a(f"s_and_b32 s58, s58, {STAG-1}")
            a(f"s_add_u32 s58, s58, {STAG0}")
            a("s_lshl_b32 s58, s58, 2")
            lds_wait(a, C_HIS, 5, 6, "s58", sleep=4)
        else:
            lds_wait(a, C_HIS, 5, 6, 48, sleep=4)
        for k in range(nrow // 8):
            a(f"buffer_load_dwordx4 {q4(64+4*(k%30))}, v62, {W2}, s57 offen {NTW}")
            a(f"s_add_u32 s57, s57, {8*4096}")
    a.label("KF_AUXEND")
    lds_wait(a, XG, 5, 6, 4, sleep=8)
    lds_wait(a, C_RD, 5, 6, 4, sleep=8)
    aux_p0(a)
    a("s_waitcnt vmcnt(0)")
    aux_p0b(a)
    a("s_waitcnt lgkmcnt(0)")
    aux_p1(a)
    a.stamp(11)
    aux_p2(a)
    a.flush_stamps(0, 12, vt=250, ws=P_WS)

NAME = "parallel_sum__ssm_conv_h3__mixer_token_mlp__prompt"
def build(path, as_list=True):
    ref = open(f"cdna_kernels/{NAME}.s.ref").read().split("\n")
    hdr = [l for l in ref if l.startswith(";") and "@launch" not in l and "Override launch" not in l and "grid=ceil" not in l]
    kn = NAME + "_kernel"
    t, d = gen(kn)
    s = "\n".join(hdr) + "\n"
    if as_list: s += f"; @launch kernel={kn} grid=(256,1,1) block=({THREADS},1,1) lds={LDS_TOTAL}\n"
    else: s += f"; @launch grid=(256,1,1) block=({THREADS},1,1) lds={LDS_TOTAL}\n"
    s += '.amdgcn_target "amdgcn-amd-amdhsa--gfx950"\n' + t + d
    open(path, "w").write(s)
if __name__ == "__main__":
    import sys
    build(sys.argv[1], as_list=(len(sys.argv) <= 2))
```

```python
from asmlib import *
import os, struct, math
E = lambda k, d: type(d)(os.environ.get(k, d))

S, D, F = 2048, 640, 1536
XBYTES = S * D * 2
EP_OFF = 0
FA_OFF = 0x1000
FK_OFF = 0xB000
FG_OFF = 0xF000
FZ_OFF = 0x13000
ST_OFF = 0x16000
HF_OFF = 0x20000
KVR_OFF = 0x2A0000
Z_OFF = 0x520000
GF_OFF = 0x7A0000
WS_TOTAL = 0x980000
FS = 16

NS = 6
RING = NS * 4096
HCOPY = 4160
HB_CH = 4 * HCOPY
KB_CH = 512 + 4096
L_H = 4 * RING
L_K = L_H + 3 * HB_CH
L_MISC = L_K + 3 * KB_CH
L_CNT = L_MISC
L_ST = L_MISC + 64
LDS_TOTAL = L_MISC + 128 + 1024
HJ = 3 * HCOPY
L_KS = L_H + HJ
L_VS = L_KS + 12 * 1024
L_KVT = L_VS + 10 * 1024
assert L_KVT + 4 * 768 <= L_K
C_RED, C_RD, C_KVL, C_KVD, C_LNW, C_LNR, C_HIS, C_FLG, C_FT, C_FGD, C_ZL, C_E, C_P2, C_FGF = [L_CNT + 4 * i for i in range(14)]
ZT = E('ZT', 1)
W2PRE = E('W2PRE', 10)
assert LDS_TOTAL <= 163840
THREADS = 512
NT = os.environ.get('NT', '')
CODEPF = E('CODEPF', 1)
EARLYW = E('EARLYW', 1)
ZWIDE = E('ZWIDE', 1)
OWIDE = E('OWIDE', 1)
YIELD = E('YIELD', 56)
XNOCONV = E('XNOCONV', 0)
XNOW2 = E('XNOW2', 0)
XNOMFMA = E('XNOMFMA', 0)
FTA = E('FTA', 1)
SSMLATE = E('SSMLATE', 0)
P1 = E('P1', 0)
P2 = E('P2', 0)
STAG = E('STAG', 8)
STAG0 = E('STAG0', 1)
PROG = E('PROG', 1)
OUTMOD = os.environ.get('OUTMOD', '')
NTW = os.environ.get('NTW', NT)
SC = "sc1"
SCL = os.environ.get("SCL", "sc1")
NTB = os.environ.get("NTB", "")
FT0 = E("FT0", 0)
PRE1 = E("PRE1", 12)
LEADD = E("LEADD", 12)
LEADR = E("LEADR", 6)
PFSTEPS = E("PFSTEPS", 4)
FTGATE = E("FTGATE", 1)
FKGATE = E("FKGATE", 1)
CVPAUSE = E("CVPAUSE", 8)
SPIN_MAX = 1 << 16
FT1 = E('FT1', 2)
NR1, NH = 6, 4
NR2, NS2, NG = 5, 5, 3
ROT = E('ROT', 0)
PSLEEP = E('PSLEEP', 6)
FTWAIT = E('FTWAIT', 1)
PFMOD = os.environ.get('PFMOD', '')
W2EARLY = E('W2EARLY', 0)
EXACT = E('EXACT', 1)
W2SIG = E('W2SIG', 0)

def f2u(x): return struct.unpack('<I', struct.pack('<f', x))[0]
GELU_K0 = -2.0 * math.sqrt(2.0 / math.pi) * math.log2(math.e)
GELU_K1 = GELU_K0 * 0.044715
def pr(r): return f"v[{r}:{r+1}]"
def q4(r): return f"v[{r}:{r+3}]"

P_Q, P_K, P_V, P_SK, P_SSMK, P_SSMD, P_BX, P_W1, P_B1, P_W2, P_B2, P_OUT, P_WS = 4, 6, 8, 10, 12, 14, 16, 18, 20, 22, 24, 26, 28
TAG = 30
WS = "s[32:35]"

def srd(a, d, base, nbytes):
    a(f"s_mov_b32 s{d}, s{base}")
    a(f"s_and_b32 s{d+1}, s{base+1}, 0xffff")
    a(f"s_mov_b32 s{d+2}, {nbytes}")
    a(f"s_mov_b32 s{d+3}, 0x00020000")
    return f"s[{d}:{d+3}]"

def reduce2(a, x, y, tx, ty):
    for m in ("quad_perm:[1,0,3,2]", "quad_perm:[2,3,0,1]", "row_half_mirror", "row_mirror"):
        a(f"v_add_f32_dpp v{x}, v{x}, v{x} {m} row_mask:0xf bank_mask:0xf")
        a(f"v_add_f32_dpp v{y}, v{y}, v{y} {m} row_mask:0xf bank_mask:0xf")
    for p in ("v_permlane16_swap_b32", "v_permlane32_swap_b32"):
        a(f"v_mov_b32 v{tx}, v{x}")
        a(f"v_mov_b32 v{ty}, v{y}")
        a(f"{p} v{x}, v{tx}")
        a(f"{p} v{y}, v{ty}")
        a(f"v_add_f32 v{x}, v{x}, v{tx}")
        a(f"v_add_f32 v{y}, v{y}, v{ty}")

def unpack(a, dst, src, n):
    for i in range(n):
        a(f"v_lshlrev_b32 v{dst+2*i}, 16, v{src+i}")
        a(f"v_and_b32 v{dst+2*i+1}, 0xffff0000, v{src+i}")

def pack(a, dst, src, n):
    for i in range(n):
        a(f"v_cvt_pk_bf16_f32 v{dst+i}, v{src+2*i}, v{src+2*i+1}")

def round_bf16(a, reg, n2, tmp):
    pack(a, tmp, reg, n2); unpack(a, reg, tmp, n2)

_uid = [0]
def lbl(p):
    _uid[0] += 1
    return f"{p}_{_uid[0]}"

def set_exec(a, n):
    m = (1 << n) - 1
    a(f"s_mov_b32 exec_lo, {hex(m & 0xffffffff)}")
    a(f"s_mov_b32 exec_hi, {hex(m >> 32)}")

def poll(a, vaddr, soff, vt, nlanes=64, sleep=0):
    L = lbl("POLL"); Lx = lbl("POLLX")
    a("s_mov_b32 s70, 0")
    if nlanes < 64: set_exec(a, nlanes)
    a.label(L)
    a(f"buffer_load_dwordx2 {pr(vt)}, v{vaddr}, {WS}, s{soff} offen {SC}")
    a("s_add_u32 s70, s70, 1")
    a("s_waitcnt vmcnt(0)")
    a(f"v_cmp_ne_u64 vcc, s[{TAG}:{TAG+1}], {pr(vt)}")
    a(f"s_cmp_gt_u32 s70, {SPIN_MAX}")
    a(f"s_cbranch_scc1 {Lx}")
    a(f"s_cbranch_vccz {Lx}")
    if sleep: a(f"s_sleep {sleep}")
    a(f"s_branch {L}")
    a.label(Lx)
    if nlanes < 64: a("s_mov_b64 exec, -1")

def set_flag(a, soff, vt):
    a(f"v_mov_b32 v{vt}, s{TAG}")
    a(f"v_mov_b32 v{vt+1}, s{TAG+1}")
    a(f"v_mov_b32 v{vt+2}, 0")
    a("s_mov_b64 exec, 1")
    a(f"buffer_store_dwordx2 {pr(vt)}, v{vt+2}, {WS}, s{soff} offen {SC}")
    a("s_mov_b64 exec, -1")

def lds_sync(a, cnt_off, va, vb, target):
    L = lbl("LSYNC"); Lx = lbl("LSYNCX")
    a(f"v_mov_b32 v{va}, {cnt_off}")
    a(f"v_mov_b32 v{vb}, 1")
    a("s_waitcnt lgkmcnt(0)")
    a("s_mov_b64 exec, 1")
    a(f"ds_add_u32 v{va}, v{vb}")
    a("s_mov_b64 exec, -1")
    a("s_mov_b32 s70, 0")
    a.label(L)
    a(f"ds_read_b32 v{vb}, v{va}")
    a("s_add_u32 s70, s70, 1")
    a("s_waitcnt lgkmcnt(0)")
    a(f"v_readfirstlane_b32 s71, v{vb}")
    a(f"s_cmp_gt_u32 s70, {SPIN_MAX*4}")
    a(f"s_cbranch_scc1 {Lx}")
    a(f"s_cmp_lt_u32 s71, {target}")
    a(f"s_cbranch_scc1 {L}")
    a.label(Lx)

class Coll:
    def __init__(self): self.l = []
    def __call__(self, t, tag=None): self.l.append(t)

def reduce2c(a, x, y, tx, ty): reduce2(a, x, y, tx, ty)

def ln_row(RAW, X, T, Q, sh):
    a = Coll()
    S1, S1h, S2, S2h, M, R = Q, Q + 1, Q + 2, Q + 3, Q + 4, Q + 5
    unpack(a, X, RAW, 5)
    a(f"v_readfirstlane_b32 s{sh}, v{X}")
    for i in range(10): a(f"v_subrev_f32 v{T+i}, s{sh}, v{X+i}")
    def sums(src):
        a(f"v_pk_add_f32 {pr(S1)}, {pr(src)}, {pr(src+2)}")
        a(f"v_pk_mul_f32 {pr(S2)}, {pr(src)}, {pr(src)}")
        for i in range(1, 5):
            if i >= 2: a(f"v_pk_add_f32 {pr(S1)}, {pr(S1)}, {pr(src+2*i)}")
            a(f"v_pk_fma_f32 {pr(S2)}, {pr(src+2*i)}, {pr(src+2*i)}, {pr(S2)}")
        a(f"v_add_f32 v{S1}, v{S1}, v{S1h}")
        a(f"v_add_f32 v{S2}, v{S2}, v{S2h}")
        reduce2(a, S1, S2, S1h, S2h)
    def stats(shift):
        a(f"v_mul_f32 v{S1}, s60, v{S1}")
        a(f"v_mul_f32 v{S2}, s60, v{S2}")
        a(f"v_fma_f32 v{S2}, -v{S1}, v{S1}, v{S2}")
        a(f"v_max_f32 v{S2}, 0, v{S2}")
        if shift: a(f"v_add_f32 v{S1}, s{sh}, v{S1}")
        a(f"v_cvt_pk_bf16_f32 v{S1h}, v{S1}, v{S2}")
        a(f"v_lshlrev_b32 v{M}, 16, v{S1h}")
        a(f"v_and_b32 v{S2}, 0xffff0000, v{S1h}")
        a(f"v_add_f32 v{S2}, 0x3727c5ac, v{S2}")
        a(f"v_cvt_pk_bf16_f32 v{S2}, v{S2}, v{S2}")
        a(f"v_lshlrev_b32 v{S2}, 16, v{S2}")
        a(f"v_sqrt_f32 v{S2}, v{S2}")
        a(f"v_cvt_pk_bf16_f32 v{S2}, v{S2}, v{S2}")
        a(f"v_lshlrev_b32 v{S2}, 16, v{S2}")
        a(f"v_rcp_f32 v{R}, v{S2}")
    def normalize():
        for i in range(5):
            a(f"v_pk_add_f32 {pr(T+2*i)}, {pr(X+2*i)}, {pr(M)} op_sel_hi:[1,0] neg_lo:[0,1] neg_hi:[0,1]")
        round_bf16(a, T, 5, RAW)
        for i in range(5):
            a(f"v_pk_mul_f32 {pr(T+2*i)}, {pr(T+2*i)}, {pr(M)} op_sel:[0,1] op_sel_hi:[1,1]")
        pack(a, RAW, T, 5)
    sums(T); stats(True)
    p1 = a.l; a.l = []
    normalize()
    unpack(a, X, RAW, 5)
    sums(X); stats(False)
    normalize()
    return p1, a.l

def common_entry(a):
    a("s_waitcnt lgkmcnt(0)")
    a(f"s_load_dwordx2 s[{TAG}:{TAG+1}], s[{P_WS}:{P_WS+1}], {EP_OFF}")

def tag_ready(a):
    a("s_waitcnt lgkmcnt(0)")
    a(f"s_add_u32 s{TAG}, s{TAG}, 0x9E3779B9")
    a(f"s_add_u32 s{TAG+1}, s{TAG+1}, 0x7F4A7C15")

RA, RB_ = 8, 72
def ln_addr_and_load(a):
    a("s_lshr_b32 s41, s2, 2")
    a("s_and_b32 s42, s2, 3")
    a("s_lshl_b32 s43, s41, 5")
    a("s_lshl_b32 s56, s42, 2")
    a("s_add_u32 s43, s43, s56")
    a("s_and_b32 s56, s40, 1")
    a("s_lshl_b32 s56, s56, 1")
    a("s_add_u32 s43, s43, s56")
    a("s_lshr_b32 s56, s40, 1")
    a("s_lshl_b32 s56, s56, 4")
    a("s_add_u32 s43, s43, s56")
    a("s_mul_i32 s43, s43, 1280")
    a("v_lshlrev_b32 v3, 3, v2")
    a("v_lshlrev_b32 v4, 2, v2")
    a(f"v_add_u32 v5, {L_CNT}, v4")
    a("v_mov_b32 v6, 0")
    a("s_mov_b64 exec, 0xffff")
    a("ds_write_b32 v5, v6")
    a("s_mov_b64 exec, -1")
    common_entry(a)
    X = srd(a, 36, P_Q, XBYTES)
    for r, o in ((RA, 0), (RB_, 1280)):
        a(f"buffer_load_dwordx2 {pr(r)}, v3, {X}, s43 offen offset:{o} {NT}", tag='x')
        a(f"buffer_load_dwordx2 {pr(r+2)}, v3, {X}, s43 offen offset:{o+512} {NT}", tag='x')
        a(f"buffer_load_dword v{r+4}, v4, {X}, s43 offen offset:{o+1024} {NT}", tag='x')
    a("s_barrier")
    srd(a, 32, P_WS, WS_TOTAL)

def ln_compute_publish(a, hook=None):
    a("s_mul_i32 s56, s40, 2688")
    a(f"s_add_u32 s56, s56, {L_K}")
    a("v_add_u32 v5, s56, v3")
    a("v_add_u32 v6, s56, v4")
    a("v_bfe_u32 v40, v2, 2, 2")
    a("s_movk_i32 s57, 1344")
    a("v_mul_u32_u24 v40, s57, v40")
    a("v_lshrrev_b32 v41, 4, v2")
    a("v_lshl_add_u32 v40, v41, 5, v40")
    a("v_and_b32 v42, 3, v2")
    a("v_lshl_add_u32 v40, v42, 3, v40")
    a("s_lshl_b32 s57, s40, 7")
    a(f"s_add_u32 s57, s57, {L_K}")
    a("v_add_u32 v40, s57, v40")
    a("v_and_b32 v42, 15, v2")
    a("v_lshlrev_b32 v42, 4, v42")
    a("v_lshl_add_u32 v42, v41, 10, v42")
    a("s_lshl_b32 s57, s40, 6")
    a("s_add_u32 s57, s57, s41")
    a("s_lshl_b32 s57, s57, 12")
    a("s_lshl_b32 s58, s42, 8")
    a("s_add_u32 s57, s57, s58")
    a(f"s_add_u32 s57, s57, {HF_OFF}")
    a("s_lshl_b32 s59, s40, 8")
    a("s_add_u32 s59, s59, s2")
    a(f"s_mul_i32 s59, s59, {FS}")
    a(f"s_add_u32 s59, s59, {FA_OFF}")
    a("s_mov_b32 s60, 0x3acccccd")
    a("s_lshl_b32 s61, s40, 4")
    a(f"s_add_u32 s61, s61, {L_ST}")
    a("v_mov_b32 v43, s61")
    a(f"v_lshlrev_b32 v54, {(4*256*FS).bit_length()-1}, v2")
    tag_ready(a)
    a.stamp(1)
    a.wait(vm='x')
    a.stamp(2)
    A1, A2 = ln_row(RA, 16, 44, 26, 62)
    B1, B2 = ln_row(RB_, 80, 92, 104, 63)
    for x, y in zip(A1, B1): a(x); a(y)
    a("s_mov_b64 exec, 1")
    a("ds_write_b64 v43, v[30:31]")
    a("ds_write_b64 v43, v[108:109] offset:8")
    a("s_mov_b64 exec, -1")
    for x, y in zip(A2, B2): a(x); a(y)
    for r, o in ((RA, 0), (RB_, 1344)):
        a(f"ds_write_b64 v5, {pr(r)} offset:{o}")
        a(f"ds_write_b64 v5, {pr(r+2)} offset:{o+512}")
        a(f"ds_write_b32 v6, v{r+4} offset:{o+1024}")
    lds_arrive(a, C_LNW, 44, 45)
    a.stamp(3)
    lds_wait(a, C_LNW, 44, 45, 8)
    for k in range(2):
        a(f"ds_read_b64_tr_b16 {pr(16+4*k)}, v40 offset:{512*k}", tag=('t', k))
        a(f"ds_read_b64_tr_b16 {pr(18+4*k)}, v40 offset:{4*1344+512*k}", tag=('t', k))
    a(f"s_add_u32 s58, s57, {4*64*4096}")
    a.wait(lg=[('t', 0)])
    a(f"buffer_store_dwordx4 v[16:19], v42, {WS}, s57 offen {SC}")
    L1 = lbl("LN1")
    a("s_mov_b32 s56, 3")
    a("s_cmp_ge_u32 s40, 2")
    a(f"s_cbranch_scc1 {L1}")
    a("ds_read_b64_tr_b16 v[24:25], v40 offset:1024")
    a(f"ds_read_b64_tr_b16 v[26:27], v40 offset:{4*1344+1024}")
    a(f"v_add_u32 v44, {L_ST}, v3")
    a("ds_read_b64 v[28:29], v44")
    a(f"s_add_u32 s57, s57, {8*64*4096}")
    a("s_lshl_b32 s61, s2, 6")
    a(f"s_add_u32 s61, s61, {ST_OFF}")
    a("s_mov_b32 s56, 7")
    a("s_waitcnt lgkmcnt(0)")
    a(f"buffer_store_dwordx4 v[24:27], v42, {WS}, s57 offen {SC}")
    a("s_mov_b64 exec, 0xff")
    a(f"buffer_store_dwordx2 v[28:29], v3, {WS}, s61 offen {SC}")
    a("s_mov_b64 exec, -1")
    a.label(L1)
    a("s_waitcnt lgkmcnt(0)")
    a(f"buffer_store_dwordx4 v[20:23], v42, {WS}, s58 offen {SC}", tag='hs')
    lds_arrive(a, C_LNR, 44, 45)
    a(f"v_mov_b32 v44, s{TAG}")
    a(f"v_mov_b32 v45, s{TAG+1}")
    a("s_mov_b32 s61, s56")
    if hook: hook()
    a.wait(vm='hs')
    a("s_mov_b32 exec_lo, s61")
    a("s_mov_b32 exec_hi, 0")
    a(f"buffer_store_dwordx2 v[44:45], v54, {WS}, s59 offen {SC}")
    a("s_mov_b64 exec, -1")
    a.stamp(4)

def gen(name):
    a = Asm()
    a.raw(kernel_header(name))
    a("s_cmp_ge_u32 s2, 256")
    a("s_cbranch_scc1 KF_DONE")
    a("s_load_dwordx16 s[4:19], s[0:1], 0")
    a("s_load_dwordx8 s[20:27], s[0:1], 64")
    a("s_load_dwordx2 s[28:29], s[0:1], 104")
    if CODEPF:
        a("s_getpc_b64 s[44:45]")
        a("s_and_b32 s44, s44, 0xffffff00")
        a("s_and_b32 s45, s45, 0xffff")
        a(f"s_mov_b32 s46, CODE_END-{name}")
        a("s_mov_b32 s47, 0x00020000")
        a("s_lshr_b32 s48, s2, 3")
        a("s_lshl_b32 s48, s48, 10")
        a("v_lshrrev_b32 v1, 6, v0")
        a("v_and_b32 v2, 7, v0")
        a("v_lshlrev_b32 v2, 4, v2")
        a("v_lshl_add_u32 v1, v1, 7, v2")
        a("buffer_load_dwordx4 v[252:255], v1, s[44:47], s48 offen")
    a.stamp(0)
    a("v_lshrrev_b32 v1, 6, v0")
    a("v_and_b32 v2, 63, v0")
    a("v_readfirstlane_b32 s40, v1")
    a("s_cmp_lt_u32 s40, 4")
    a("s_cbranch_scc1 KF_GEMM")
    gen_aux_early(a)
    a("s_branch KF_AUX")
    a.label("KF_GEMM")
    a.reset_counts()
    gen_gemm(a)
    a.label("KF_AUX")
    a.reset_counts()
    gen_aux(a)
    a.label("KF_DONE")
    a("s_endpgm")
    a.raw("CODE_END:")
    return a.render(), kernel_desc(name, 256, 72)

def lds_arrive(a, cnt_off, va, vb):
    a(f"v_mov_b32 v{va}, {cnt_off}")
    a(f"v_mov_b32 v{vb}, 1")
    a("s_waitcnt lgkmcnt(0)")
    a("s_mov_b64 exec, 1")
    a(f"ds_add_u32 v{va}, v{vb}")
    a("s_mov_b64 exec, -1")

def lds_wait(a, cnt_off, va, vb, target, sleep=0):
    L = lbl("LW"); Lx = lbl("LWX")
    a(f"v_mov_b32 v{va}, {cnt_off}")
    a("s_mov_b32 s70, 0")
    a.label(L)
    a(f"ds_read_b32 v{vb}, v{va}")
    a("s_add_u32 s70, s70, 1")
    a("s_waitcnt lgkmcnt(0)")
    a(f"v_readfirstlane_b32 s71, v{vb}")
    a(f"s_cmp_gt_u32 s70, {SPIN_MAX*4}")
    a(f"s_cbranch_scc1 {Lx}")
    a(f"s_cmp_ge_u32 s71, {target}")
    a(f"s_cbranch_scc1 {Lx}")
    if sleep: a(f"s_sleep {sleep}")
    a(f"s_branch {L}")
    a.label(Lx)

def gen_gemm(a):
    a("s_setprio 2")
    VD, VT, VH, VL = 56, 60, 64, 68
    VT2 = VT
    ACC = 72
    WR = 152
    HS = [8, 24, 40, 136]
    WR2 = 176
    GS = [8, 28, 152]
    a("s_and_b32 s64, s2, 7")
    a("s_lshr_b32 s65, s2, 3")
    ln_addr_and_load(a)
    if not P1:
        a("s_mul_i32 s66, s65, 171")
        a("s_lshr_b32 s66, s66, 9")
        a("s_mul_i32 s67, s66, 3")
        a("s_sub_u32 s67, s65, s67")
        a("s_mul_i32 s68, s66, 1639")
        a("s_lshr_b32 s68, s68, 10")
        a("s_and_b32 s68, s68, 15")
        a("s_mul_i32 s69, s64, 3")
        a("s_add_u32 s67, s67, s69")
    else:
        a("s_mul_i32 s66, s65, 43")
        a("s_lshr_b32 s66, s66, 8")
        a("s_mul_i32 s67, s66, 6")
        a("s_sub_u32 s67, s65, s67")
        a("s_mul_i32 s68, s66, 3277")
        a("s_lshr_b32 s68, s68, 10")
        a("s_and_b32 s68, s68, 15")
        a("s_lshr_b32 s69, s64, 2")
        a("s_mul_i32 s69, s69, 5")
        a("s_add_u32 s66, s66, s69")
        a("s_and_b32 s69, s64, 3")
        a("s_mul_i32 s69, s69, 6")
        a("s_add_u32 s67, s67, s69")
    a(f"v_lshlrev_b32 v{VL}, 4, v2")
    a("v_bfe_u32 v69, v2, 1, 2")
    a("v_lshrrev_b32 v70, 4, v2")
    a("v_xor_b32 v69, v69, v70")
    a("v_lshlrev_b32 v69, 5, v69")
    a("v_and_b32 v70, 1, v2")
    a("v_lshl_add_u32 v69, v70, 4, v69")
    a("v_lshrrev_b32 v70, 3, v2")
    a("s_movk_i32 s56, 3072")
    a(f"v_mad_u32_u24 v{VD}, v70, s56, v69")
    for t in range(1, 4):
        a(f"v_add_u32 v{VD+t}, {t*(24576-1024)}, v{VD}")
    a(f"s_mul_i32 s44, s40, {512*3072}")
    a("s_lshl_b32 s56, s67, 7")
    a("s_add_u32 s44, s44, s56")
    a(f"s_mul_i32 s45, s40, {RING}")
    a("s_mov_b32 s46, s68")
    W1 = srd(a, 48, P_W1, S * F * 2)
    a("v_lshrrev_b32 v71, 2, v2")
    a("v_lshlrev_b32 v71, 7, v71")
    a("v_and_b32 v70, 3, v2")
    a("v_lshl_add_u32 v71, v70, 3, v71")
    a("v_add_u32 v71, s45, v71")
    a("v_bfe_u32 v70, v2, 3, 2")
    for phi in range(4):
        a(f"v_xor_b32 v13, {phi}, v70")
        a(f"v_lshl_add_u32 v{VT+phi}, v13, 5, v71")
    for i in range(4):
        a(f"s_add_u32 s56, s40, {i}")
        a("s_and_b32 s56, s56, 3")
        a("s_lshl_b32 s56, s56, 10")
        a(f"v_add_u32 v{VH+i}, s56, v{VL}")
    def dma1_parts(t):
        mod = NTW if t < FT1 else NTB
        def p0():
            if t >= NS: a.wait(lg=[('r', t - NS)])
            a(f"s_mul_i32 s47, s46, {32*3072}")
            a("s_add_u32 s47, s47, s44")
            a(f"s_add_u32 m0, s45, {(t % NS)*4096}")
            a("s_add_u32 s46, s46, 1")
            a("s_and_b32 s46, s46, 15")
        ps = [p0]
        for i in range(4):
            ps.append(lambda i=i: a(f"buffer_load_dwordx4 v{VD+i}, {W1}, s47 offen offset:{i*1024} {mod} lds", tag=('w', t)))
        return ps
    def dma1(t):
        for p in dma1_parts(t): p()
    def hook():
        for t in range(FT0): dma1(t)
    ln_compute_publish(a, hook)
    a("s_cmp_ge_u32 s2, 240")
    a("s_cbranch_scc1 KF_G2")
    def trread_parts(t):
        wb = WR + (t % NR1) * 16
        ps = []
        for phi in range(4):
            def p(phi=phi):
                if phi == 0: a.wait(vm=[('w', t)])
                a(f"ds_read_b64_tr_b16 {pr(wb+phi*4)}, v{VT+phi} offset:{(t % NS)*4096}", tag=('r', t))
                a(f"ds_read_b64_tr_b16 {pr(wb+phi*4+2)}, v{VT+phi} offset:{(t % NS)*4096+2048}", tag=('r', t))
            ps.append(p)
        return ps
    NK = 16
    st = {'dma': FT0, 'rd': 0}
    def next_dma(defer=None):
        t = st['dma']; st['dma'] += 1
        if defer is None: dma1(t)
        else: defer.extend(dma1_parts(t))
    def next_rd(defer=None):
        t = st['rd']; st['rd'] += 1
        ps = trread_parts(t)
        if defer is None:
            for p in ps: p()
        else: defer.extend(ps)
    while st['dma'] < FTA: next_dma()
    if FTGATE: lds_wait(a, C_FLG if FTGATE == 1 else C_KVD, 4, 5, 4, sleep=1)
    while st['dma'] < FT1: next_dma()
    a("s_lshl_b32 s57, s66, 6")
    a("s_lshl_b32 s56, s40, 4")
    a("s_add_u32 s57, s57, s56")
    a("s_lshl_b32 s57, s57, 12")
    a(f"s_add_u32 s57, s57, {HF_OFF}")
    a("s_lshl_b32 s58, s68, 12")
    a("s_lshl_b32 s59, s66, 8")
    a("s_lshl_b32 s56, s40, 6")
    a("s_add_u32 s59, s59, s56")
    a(f"s_mul_i32 s59, s59, {FS}")
    a(f"s_add_u32 s59, s59, {FA_OFF}")
    B1 = srd(a, 52, P_B1, F * 2)
    a("v_lshrrev_b32 v3, 4, v2")
    a("v_lshlrev_b32 v3, 3, v3")
    a("s_lshl_b32 s56, s67, 7")
    BI = 248
    for phi in range(4):
        a(f"buffer_load_dwordx2 {pr(BI+2*phi)}, v3, {B1}, s56 offen offset:{phi*32}", tag='b')
    if FT1 and FTWAIT: a.wait(vm=[('w', FT1 - 1)])
    lds_arrive(a, C_FT, 4, 5)
    a.stamp(5)
    while st['dma'] < PRE1 - 2:
        while st['rd'] <= st['dma'] - NS + 1 and st['rd'] < NR1: next_rd()
        next_dma()
    a(f"buffer_load_dwordx2 v[4:5], v{VL}, {WS}, s59 offen {SC}", tag='fa')
    while st['dma'] < PRE1:
        while st['rd'] <= st['dma'] - NS + 1 and st['rd'] < NR1: next_rd()
        next_dma()
    while st['rd'] < min(LEADR, FT1): next_rd()
    a.wait(vm='fa')
    def fa_mask():
        a(f"v_cmp_ne_u64 vcc, s[{TAG}:{TAG+1}], v[4:5]")
        a("s_lshl_b32 s56, s68, 2")
        a("s_lshr_b64 s[62:63], vcc, s56")
        a("s_sub_u32 s56, 64, s56")
        a("s_lshl_b64 vcc, vcc, s56")
        a("s_or_b64 s[62:63], s[62:63], vcc")
    def fa_need(lo, hi):
        m = ((1 << (4 * hi)) - 1) & ~((1 << (4 * lo)) - 1)
        Lok = lbl("FAOK"); Lp = lbl("FAP")
        keep = list(a.vm)
        a("s_mov_b32 s70, 0")
        a.label(Lp)
        a(f"s_and_b32 s56, s62, {hex(m & 0xffffffff)}")
        a(f"s_and_b32 s71, s63, {hex(m >> 32)}")
        a("s_or_b32 s56, s56, s71")
        a(f"s_cbranch_scc0 {Lok}")
        a("s_add_u32 s70, s70, 1")
        a(f"s_cmp_gt_u32 s70, {SPIN_MAX}")
        a(f"s_cbranch_scc1 {Lok}")
        a("s_sleep 2")
        a(f"buffer_load_dwordx2 v[4:5], v{VL}, {WS}, s59 offen {SC}")
        a("s_waitcnt vmcnt(0)")
        fa_mask()
        a(f"s_branch {Lp}")
        a.label(Lok)
        a.vm = keep
    fa_mask()
    fa_need(0, 4 if PROG else 16)
    a.stamp(6)
    def hload(t, i):
        if i == 0: a("s_add_u32 s61, s57, s58")
        a(f"buffer_load_dwordx4 {q4(HS[t % NH]+i*4)}, v{VH+i}, {WS}, s61 offen {SCL}", tag=('h', t))
        if i == 3:
            a("s_add_u32 s58, s58, 4096")
            a("s_and_b32 s58, s58, 0xffff")
    for t in range(NH):
        for i in range(4): hload(t, i)
        if st['dma'] < min(NK, LEADD, st['rd'] + NS): next_dma()
    while st['rd'] < min(LEADR, st['dma']): next_rd()
    def w2_setup():
        if not P2:
            a("s_lshr_b32 s62, s65, 2")
            a("s_and_b32 s63, s65, 3")
            a("s_lshl_b32 s56, s64, 2")
            a("s_add_u32 s63, s63, s56")
        else:
            a("s_lshr_b32 s62, s65, 3")
            a("s_and_b32 s56, s64, 4")
            a("s_add_u32 s62, s62, s56")
            a("s_and_b32 s63, s65, 7")
            a("s_and_b32 s56, s64, 3")
            a("s_lshl_b32 s56, s56, 3")
            a("s_add_u32 s63, s63, s56")
        a("v_lshrrev_b32 v7, 3, v2")
        a(f"v_lshl_add_u32 v{VD}, v7, 12, v69")
        for t in range(1, 4):
            a(f"v_add_u32 v{VD+t}, {t*(32768-1024)}, v{VD}")
        a(f"s_mul_i32 s44, s40, {384*4096}")
        a("s_lshl_b32 s56, s63, 7")
        a("s_add_u32 s44, s44, s56")
        if ROT:
            a("s_and_b32 s46, s65, 3")
            a("s_mul_i32 s46, s46, 3")
            a("s_mul_i32 s56, s62, 3")
            a("s_lshr_b32 s56, s56, 1")
            a("s_add_u32 s46, s46, s56")
            a("s_cmp_ge_u32 s46, 12")
            a("s_cselect_b32 s56, 12, 0")
            a("s_sub_u32 s46, s46, s56")
        else:
            a("s_mov_b32 s46, 0")
        a("s_mov_b32 s68, s46")
        srd(a, 48, P_W2, S * F * 2)
        for si in range(4):
            a(f"s_add_u32 s56, s40, {si}")
            a("s_and_b32 s56, s56, 3")
            a("v_xor_b32 v7, s56, v70")
            a(f"v_lshl_add_u32 v{VT+si}, v7, 5, v71")
    W2 = "s[48:51]"
    SL2 = [3, 4, 5, 3, 4, 5, 3, 4, 0, 1, 5, 3]
    def trread2_parts(t):
        wb = WR2 + (t % NR2) * 16
        so = SL2[t] * 4096
        ps = []
        for si in range(4):
            def p(si=si):
                if si == 0: a.wait(vm=[('w2', t)])
                a(f"ds_read_b64_tr_b16 {pr(wb+si*4)}, v{VT2+si} offset:{so}", tag=('r2', t))
                a(f"ds_read_b64_tr_b16 {pr(wb+si*4+2)}, v{VT2+si} offset:{so+2048}", tag=('r2', t))
            ps.append(p)
        return ps
    def trread2(t):
        for p in trread2_parts(t): p()
    def dma2_parts(t, pre=None):
        def p0():
            if pre: pre()
            a(f"s_lshl_b32 s47, s46, 17")
            a("s_add_u32 s47, s47, s44")
            a(f"s_add_u32 m0, s45, {SL2[t]*4096}")
            a("s_add_u32 s46, s46, 1")
        ps = [p0]
        for i in range(4):
            ps.append(lambda i=i: a(f"buffer_load_dwordx4 v{VD+i}, {W2}, s47 offen offset:{i*1024} {NTB} lds", tag=('w2', t)))
        return ps
    def dma2(t):
        for p in dma2_parts(t): p()
    W2T0 = E('W2T0', 11)
    a(f"v_mov_b32 v3, {C_HIS}")
    a("v_mov_b32 v6, 1")
    def prog():
        a("s_mov_b64 exec, 1")
        a("ds_add_u32 v3, v6")
        a("s_mov_b64 exec, -1")
    for t in range(NK):
        wb = WR + (t % NR1) * 16
        hb = HS[t % NH]
        fill = []
        if st['dma'] < min(NK, st['rd'] + NS): next_dma(fill)
        if st['rd'] < NK and st['rd'] <= t - 1 + NR1: next_rd(fill)
        fill.append(prog)
        if t == W2T0:
            assert st['rd'] == NK and st['dma'] == NK, st
            fill.append(lambda: (a.wait(lg=[('r', NK - 1)]), w2_setup()))
        if W2T0 < t <= W2T0 + 3: fill.extend(dma2_parts(t - W2T0 - 1))
        if PROG and t % 4 == 0 and t + NH < NK: fa_need(t + NH, t + NH + 4)
        a.wait(vm=[('h', t)], lg=[('r', t)])
        last = EARLYW and t == NK - 1
        if last: a(f"v_add_u32 v4, s45, v{VL}")
        order = [1, 2, 3, 0] if last else [0, 1, 2, 3]
        for oi, di in enumerate(order):
            for phi in range(4):
                c = ACC + (phi * 4 + di) * 4
                src = "0" if t == 0 else q4(c)
                if not XNOMFMA or phi == 0: a(f"v_mfma_f32_16x16x32_bf16 {q4(c)}, {q4(wb+phi*4)}, {q4(hb+di*4)}, {src}")
                if last and oi >= 2:
                    dj = order[oi - 2]
                    a(f"ds_write_b128 v4, {q4(ACC+(phi*4+dj)*4)} offset:{(dj-1)*4096+phi*1024}")
                elif phi < 3 and fill: fill.pop(0)()
            if t + NH < NK: hload(t + NH, di)
        while fill: fill.pop(0)()
        if t == 5: a.stamp(7)
    a.stamp(8)
    if not EARLYW: a(f"v_add_u32 v4, s45, v{VL}")
    for di in range(3 if EARLYW else 1, 4):
        for phi in range(4):
            a(f"ds_write_b128 v4, {q4(ACC+(phi*4+di)*4)} offset:{(di-1)*4096+phi*1024}")
    for di in range(1, 4):
        a(f"s_sub_u32 s56, s40, {di}")
        a("s_and_b32 s56, s56, 3")
        a(f"s_mul_i32 s56, s56, {RING}")
        a(f"v_add_u32 v{4+di}, s56, v{VL}")
    a("s_lshl_b32 s56, s66, 2")
    a("s_add_u32 s56, s56, s40")
    a("s_mul_i32 s57, s56, 205")
    a("s_lshr_b32 s57, s57, 10")
    a("s_mul_i32 s58, s57, 5")
    a("s_sub_u32 s58, s56, s58")
    a("s_mul_i32 s57, s57, 48")
    a("s_lshl_b32 s59, s67, 1")
    a("s_add_u32 s57, s57, s59")
    a("s_mul_i32 s57, s57, 5")
    a("s_add_u32 s57, s57, s58")
    a("s_lshl_b32 s57, s57, 10")
    a(f"s_add_u32 s57, s57, {GF_OFF}")
    a("s_add_u32 s58, s57, 5120")
    a("s_mul_i32 s59, s56, 24")
    a("s_add_u32 s59, s59, s67")
    a(f"s_mul_i32 s59, s59, {FS}")
    a(f"s_add_u32 s59, s59, {FG_OFF}")
    a(f"s_mov_b32 s60, {f2u(GELU_K1):#x}")
    BF, RB, SUM, OUT, TM, K0, ONE = 136, 8, 152, 168, ACC + 4, ACC + 12, ACC + 13
    a.wait(vm='b')
    unpack(a, BF, BI, 8)
    if not EXACT:
        for phi in range(4):
            for h in range(2):
                c = ACC + (phi * 4) * 4 + 2 * h
                a(f"v_pk_add_f32 {pr(c)}, {pr(c)}, {pr(BF+phi*4+2*h)}")
    lds_arrive(a, C_RED, 3, 4)
    for u in range(3): trread2(u)
    lds_wait(a, C_RED, 3, 4, 4)
    for di in range(1, 4):
        for phi in range(4):
            a(f"ds_read_b128 {q4(RB+((di-1)*4+phi)*4)}, v{4+di} offset:{(di-1)*4096+phi*1024}", tag=('p', di))
    for u in range(3, 6): dma2(u)
    a(f"v_mov_b32 v{K0}, {f2u(GELU_K0):#x}")
    for di in range(1, 4):
        a.wait(lg=[('p', di)])
        for phi in range(4):
            for h in range(2):
                s0 = ACC + (phi * 4) * 4 + 2 * h if di == 1 else SUM + phi * 4 + 2 * h
                a(f"v_pk_add_f32 {pr(SUM+phi*4+2*h)}, {pr(s0)}, {pr(RB+((di-1)*4+phi)*4+2*h)}")
    lds_arrive(a, C_RD, 3, ONE)
    n = 16
    if EXACT:
        round_bf16(a, SUM, 8, TM)
        for i in range(0, n, 2): a(f"v_pk_add_f32 {pr(SUM+i)}, {pr(SUM+i)}, {pr(BF+i)}")
        round_bf16(a, SUM, 8, TM)
    for half in range(2):
        R8 = range(8 * half, 8 * half + 8)
        for i in R8[::2]: a(f"v_pk_mul_f32 {pr(BF+i)}, {pr(SUM+i)}, {pr(SUM+i)}")
        for i in R8: a(f"v_fma_f32 v{BF+i}, v{BF+i}, s60, v{K0}")
        for i in R8[::2]: a(f"v_pk_mul_f32 {pr(BF+i)}, {pr(BF+i)}, {pr(SUM+i)}")
        for i in R8: a(f"v_exp_f32 v{BF+i}, v{BF+i}")
        for i in R8: a(f"v_add_f32 v{BF+i}, 1.0, v{BF+i}")
        for i in R8: a(f"v_rcp_f32 v{BF+i}, v{BF+i}")
        for i in R8[::2]: a(f"v_pk_mul_f32 {pr(SUM+i)}, {pr(SUM+i)}, {pr(BF+i)}")
        pack(a, OUT + 4 * half, SUM + 8 * half, 4)
        a(f"buffer_store_dwordx4 {q4(OUT+4*half)}, v{VL}, {WS}, s{57+half} offen {SC}", tag='gs')
    a(f"v_mov_b32 v3, {C_FGD}")
    a("v_mov_b32 v4, 1")
    a("s_mov_b64 exec, 1")
    a("ds_add_u32 v3, v4")
    a("s_mov_b64 exec, -1")
    for u in (3, 4): trread2(u)
    a.wait(vm='gs')
    set_flag(a, 59, 4)
    lds_arrive(a, C_FGF, 3, 7)
    a.stamp(9)
    keep = []
    a("s_or_b32 s56, s2, s40")
    a("s_cmp_lg_u32 s56, 0")
    a("s_cbranch_scc1 KF_NOEP")
    a(f"s_mov_b32 s56, {EP_OFF}")
    set_flag(a, 56, 4)
    a.label("KF_NOEP")
    lds_wait(a, C_FGF if E('GW', 1) else C_RD, 3, 4, 4)
    a("s_branch KF_G2B")
    a.label("KF_G2")
    w2_setup()
    lds_arrive(a, C_RED, 3, 4)
    a(f"v_mov_b32 v3, {C_HIS}")
    a("v_mov_b32 v4, 12")
    a("s_mov_b64 exec, 1")
    a("ds_add_u32 v3, v4")
    a("s_mov_b64 exec, -1")
    lds_arrive(a, C_FT, 3, 4)
    lds_arrive(a, C_FGD, 3, 4)
    lds_arrive(a, C_FGF, 3, 4)
    a("s_waitcnt vmcnt(0)")
    lds_arrive(a, C_RD, 3, 4)
    if FTGATE: lds_wait(a, C_FLG, 4, 5, 4, sleep=1)
    if not P2:
        a("v_lshrrev_b32 v3, 5, v2")
        a("v_lshlrev_b32 v3, 12, v3")
        a("v_and_b32 v4, 31, v2")
        a("v_lshl_add_u32 v3, v4, 4, v3")
    else:
        a(f"v_mov_b32 v3, v{VL}")
    a(f"s_mul_i32 s57, s40, {384*4096}")
    a("s_and_b32 s56, s65, 1")
    a(f"s_lshl_b32 s56, s56, {16 if P2 else 17}")
    a("s_add_u32 s57, s57, s56")
    if P2:
        a("s_and_b32 s56, s64, 3")
        a("s_lshl_b32 s56, s56, 10")
    else: a("s_lshl_b32 s56, s64, 9")
    a("s_add_u32 s57, s57, s56")
    a("s_mov_b32 s58, 0")
    a.label("KF_PF")
    for k in range(16):
        a(f"buffer_load_dwordx4 {q4(ACC+4*k)}, v3, {W2}, s57 offen {PFMOD}")
        a(f"s_add_u32 s57, s57, {(1 if P2 else 2)*4096}")
        a("s_waitcnt vmcnt(8)")
    a(f"s_add_u32 s57, s57, {(16 if P2 else 32)*4096}")
    a("s_add_u32 s58, s58, 1")
    a(f"s_cmp_lt_u32 s58, {PFSTEPS if P2 else PFSTEPS//2}")
    a("s_cbranch_scc1 KF_PF")
    for i in range(5, 10): a.stamp(i)
    a.reset_counts()
    for u in range(3): dma2(u)
    for u in range(3): trread2(u)
    a("s_waitcnt lgkmcnt(0)")
    for u in range(3, 6): dma2(u)
    for u in (3, 4): trread2(u)
    a("s_waitcnt vmcnt(0) lgkmcnt(0)")
    a.label("KF_G2B")
    NK = 12
    for u in range(6, W2PRE): dma2(u)
    a("s_mul_i32 s57, s62, 48")
    a("s_mul_i32 s56, s40, 12")
    a("s_add_u32 s57, s57, s56")
    a("s_mul_i32 s57, s57, 5120")
    a(f"s_add_u32 s57, s57, {GF_OFF}")
    a(f"v_add_u32 v{VH}, 4096, v{VL}")
    a("v_mul_u32_u24 v3, 43, v2")
    a("v_lshrrev_b32 v3, 8, v3")
    a("v_mul_u32_u24 v3, 18, v3")
    a("v_add_u32 v3, v3, v2")
    a(f"v_mul_u32_u24 v3, {FS}, v3")
    a("s_mul_i32 s41, s62, 120")
    a("s_mul_i32 s56, s40, 6")
    a("s_add_u32 s41, s41, s56")
    a(f"s_mul_i32 s41, s41, {FS}")
    a(f"s_add_u32 s41, s41, {FG_OFF}")
    a("s_mov_b32 s42, -1")
    a.stamp(10)
    def fg_need(ps, first=False):
        m = 0
        for p in ps:
            for i5 in range(5): m |= 1 << (6 * i5 + p)
        Lok = lbl("FGOK"); Lp = lbl("FGP")
        keep = list(a.vm)
        a("s_mov_b32 s70, 0")
        a.label(Lp)
        a(f"s_and_b32 s56, s42, {hex(m)}")
        a(f"s_cbranch_scc0 {Lok}")
        a("s_add_u32 s70, s70, 1")
        a(f"s_cmp_gt_u32 s70, {SPIN_MAX}")
        a(f"s_cbranch_scc1 {Lok}")
        set_exec(a, 30)
        a(f"buffer_load_dwordx2 v[4:5], v3, {WS}, s41 offen {SC}")
        a("s_waitcnt vmcnt(0)")
        a(f"v_cmp_ne_u64 vcc, s[{TAG}:{TAG+1}], v[4:5]")
        a("s_mov_b64 exec, -1")
        a("s_mov_b32 s42, vcc_lo")
        a(f"s_branch {Lp}")
        a.label(Lok)
        a.vm = [] if first else keep
    fg_need([0, 1] if PROG else range(6), first=True)
    a.lg = []
    a.stamp(11)
    def gload(t, i):
        gb = GS[t % NG]
        if i < 4: a(f"buffer_load_dwordx4 {q4(gb+i*4)}, v{VL}, {WS}, s57 offen offset:{i*1024} {SCL}", tag=('g', t))
        else:
            a(f"buffer_load_dwordx4 {q4(gb+16)}, v{VH}, {WS}, s57 offen {SCL}", tag=('g', t))
            a("s_add_u32 s57, s57, 5120")
    for t in range(NG):
        for i in range(5): gload(t, i)
    B2 = srd(a, 52, P_B2, S * 2)
    a(f"v_and_b32 v6, 15, v2")
    a(f"v_lshrrev_b32 v7, 4, v2")
    a("s_movk_i32 s56, 1280")
    a(f"v_mul_u32_u24 v{VH+1}, s56, v6")
    a(f"v_lshl_add_u32 v{VH+1}, v7, 3, v{VH+1}")
    a(f"v_lshlrev_b32 v{VH+2}, 1, v6")
    a(f"v_mul_u32_u24 v{VH+3}, s56, v6")
    a("v_and_b32 v6, 1, v7")
    a(f"v_lshl_add_u32 v{VH+3}, v6, 5, v{VH+3}")
    a("v_lshrrev_b32 v6, 1, v7")
    a(f"v_lshl_add_u32 v{VH+3}, v6, 4, v{VH+3}")
    a("s_lshl_b32 s60, s63, 6")
    a("s_lshl_b32 s56, s40, 4")
    a("s_add_u32 s60, s60, s56")
    a("s_mul_i32 s61, s60, 1280")
    a("s_mul_i32 s56, s62, 160")
    a("s_add_u32 s61, s61, s56")
    B2V = 174
    a("s_lshl_b32 s56, s60, 1")
    a(f"buffer_load_ushort v{B2V}, v{VH+2}, {B2}, s56 offen", tag='x')
    a(f"v_mov_b32 v6, {C_P2}")
    a("v_mov_b32 v7, 1")
    def prog2():
        a("s_mov_b64 exec, 1")
        a("ds_add_u32 v6, v7")
        a("s_mov_b64 exec, -1")
    def red_off(si, i5):
        k = (si - 1) * 5 + i5
        return (k if k < 8 else k + 4) * 1024
    nd = [W2PRE]
    for t in range(NK):
        wb = WR2 + (t % NR2) * 16
        gb = GS[t % NG]
        if PROG and (t + NG) % 2 == 0 and t + NG < NK and t + NG >= 4: fg_need([(t + NG) // 2])
        fill = []
        u = nd[0]
        if u < NK and (u < 10 or t >= u - 8):
            if u >= 10:
                assert SL2[u] == SL2[u - NS2]
                fill.extend(dma2_parts(u, pre=lambda u=u: a.wait(lg=[('r2', u - NS2)])))
            else: fill.extend(dma2_parts(u))
            nd[0] += 1
        if t >= 1 and t - 1 + NR2 < NK:
            assert t - 1 + NR2 < nd[0]
            fill.extend(trread2_parts(t - 1 + NR2))
        if t == ZT: fill.append(prog2)
        a.wait(vm=[('g', t)], lg=[('r2', t)])
        last = EARLYW and t == NK - 1
        if last: a(f"v_add_u32 v4, s45, v{VL}")
        for i5 in range(5):
            for si in range(4):
                c = ACC + (i5 * 4 + si) * 4
                src = "0" if t == 0 else q4(c)
                if not XNOMFMA or si == 0: a(f"v_mfma_f32_16x16x32_bf16 {q4(c)}, {q4(gb+i5*4)}, {q4(wb+si*4)}, {src}")
                if last and i5 >= 2 and si >= 1:
                    a(f"ds_write_b128 v4, {q4(ACC+((i5-2)*4+si)*4)} offset:{red_off(si, i5-2)}")
                elif si < 3 and fill: fill.pop(0)()
            if t + NG < NK: gload(t + NG, i5)
        while fill: fill.pop(0)()
        if t == 3: a.stamp(12)
    a.stamp(13)
    if not EARLYW: a(f"v_add_u32 v4, s45, v{VL}")
    for i5 in range(3 if EARLYW else 0, 5):
        for si in range(1, 4):
            a(f"ds_write_b128 v4, {q4(ACC+(i5*4+si)*4)} offset:{red_off(si, i5)}")
    YF, TP, ER, EF = 176, 216, 226, 8
    for si in range(1, 4):
        a(f"s_sub_u32 s56, s40, {si}")
        a("s_and_b32 s56, s56, 3")
        a(f"s_mul_i32 s56, s56, {RING}")
        a(f"v_add_u32 v{48+si}, s56, v{VL}")
    a("v_lshlrev_b32 v48, 3, v2")
    a("v_add_u32 v48, s45, v48")
    a(f"v_lshlrev_b32 v{B2V}, 16, v{B2V}")
    OUTS = srd(a, 52, P_OUT, XBYTES)
    lds_arrive(a, C_E, 3, 5)
    lds_wait(a, C_E, 3, 5, 8)
    for i5 in range(5):
        a(f"ds_read_b64 {pr(ER+2*i5)}, v48 offset:{8192+i5*512}", tag='e')
    for si in range(1, 4):
        for i5 in range(5):
            a(f"ds_read_b128 {q4(ACC+(i5*4+si)*4)}, v{48+si} offset:{red_off(si, i5)}", tag=('p', si))
    a.wait(lg='e')
    unpack(a, EF, ER, 10)
    if not EXACT:
        for i in range(10): a(f"v_pk_add_f32 {pr(EF+2*i)}, {pr(EF+2*i)}, {pr(B2V)} op_sel_hi:[1,0]")
        for i5 in range(5):
            for h in range(2):
                c = ACC + (i5 * 4) * 4 + 2 * h
                a(f"v_pk_add_f32 {pr(c)}, {pr(c)}, {pr(EF+4*i5+2*h)}")
    for si in range(1, 4):
        a.wait(lg=[('p', si)])
        for i5 in range(5):
            for h in range(2):
                c = ACC + (i5 * 4) * 4 + 2 * h
                a(f"v_pk_add_f32 {pr(c)}, {pr(c)}, {pr(c+4*si)}")
    for i5 in range(5):
        for h in range(2):
            c = ACC + (i5 * 4) * 4 + 2 * h
            a(f"v_cvt_pk_bf16_f32 v{TP+2*i5+h}, v{c}, v{c+1}")
        if EXACT:
            unpack(a, YF + 4 * i5, TP + 2 * i5, 2)
            for h in range(2): a(f"v_pk_add_f32 {pr(YF+4*i5+2*h)}, {pr(YF+4*i5+2*h)}, {pr(B2V)} op_sel_hi:[1,0]")
            round_bf16(a, YF + 4 * i5, 2, TP + 2 * i5)
            for h in range(2): a(f"v_pk_add_f32 {pr(YF+4*i5+2*h)}, {pr(YF+4*i5+2*h)}, {pr(EF+4*i5+2*h)}")
            pack(a, TP + 2 * i5, YF + 4 * i5, 2)
        if not OWIDE or i5 == 4:
            a(f"buffer_store_dwordx2 {pr(TP+2*i5)}, v{VH+1}, {OUTS}, s61 offen offset:{32*i5} {OUTMOD}")
        elif i5 & 1:
            o = TP + 2 * (i5 - 1)
            a(f"v_permlane16_swap_b32 v{o}, v{o+2}")
            a(f"v_permlane16_swap_b32 v{o+1}, v{o+3}")
            a(f"buffer_store_dwordx4 {q4(o)}, v{VH+3}, {OUTS}, s61 offen offset:{32*(i5-1)} {OUTMOD}")
    a.flush_stamps(0, 14, vt=250, ws=P_WS)
    a("s_endpgm")

XG = C_FGF if E('XGF', 1) else C_FGD
XFA, XNA = 192, 212
XRAW = 242
def aux_ids(a):
    a("s_lshr_b32 s56, s2, 3")
    a("s_lshr_b32 s65, s56, 2")
    a("s_and_b32 s66, s56, 3")
    a("s_and_b32 s56, s2, 7")
    a("s_lshl_b32 s56, s56, 2")
    a("s_add_u32 s66, s66, s56")
    a("s_lshl_b32 s68, s66, 6")
    a("s_lshl_b32 s56, s64, 4")
    a("s_add_u32 s68, s68, s56")
    a(f"s_mul_i32 s67, s64, {RING}")

def aux_p0(a, base=None):
    aux_ids(a)
    if base is None: a(f"s_add_u32 s63, s67, {2*4096}")
    else: a(f"s_mov_b32 s63, {base}")
    a("s_mul_i32 s69, s68, 1280")
    a("s_mul_i32 s56, s65, 160")
    a("s_add_u32 s69, s69, s56")
    XS = srd(a, 48, P_Q, XBYTES)
    a("s_movk_i32 s56, 1280")
    for k in range(3):
        a(f"v_add_u32 v232, {64*k}, v2")
        a("v_mul_u32_u24 v233, 205, v232")
        a("v_lshrrev_b32 v233, 11, v233")
        a("v_mul_u32_u24 v234, 10, v233")
        a("v_sub_u32 v234, v232, v234")
        a("v_lshlrev_b32 v234, 4, v234")
        a(f"v_mad_u32_u24 v236, v233, s56, v234")
        a(f"s_add_u32 m0, s63, {k*1024}")
        if k == 2: set_exec(a, 32)
        a(f"buffer_load_dwordx4 v236, {XS}, s69 offen {NT} lds")
        if k == 2: a("s_mov_b64 exec, -1")
    a("v_and_b32 v232, 15, v2")
    a("s_movk_i32 s56, 160")
    a("v_mul_u32_u24 v240, s56, v232")
    a("v_lshrrev_b32 v233, 4, v2")
    a("v_lshl_add_u32 v240, v233, 3, v240")
    a("v_add_u32 v240, s63, v240")

def aux_p0b(a):
    for i5 in range(5):
        a(f"ds_read_b64 {pr(XRAW+2*i5)}, v240 offset:{32*i5}")

def aux_stats_addr(a):
    a("v_and_b32 v232, 15, v2")
    a("v_lshrrev_b32 v233, 2, v232")
    a("v_lshlrev_b32 v233, 6, v233")
    a("v_and_b32 v234, 3, v232")
    a("v_lshl_add_u32 v239, v234, 3, v233")
def aux_stats_load(a):
    a("s_lshr_b32 s59, s68, 5")
    a("s_lshl_b32 s59, s59, 8")
    a("s_and_b32 s56, s68, 16")
    a("s_lshl_b32 s56, s56, 1")
    a("s_add_u32 s59, s59, s56")
    a(f"s_add_u32 s59, s59, {ST_OFF}")
    a(f"buffer_load_dwordx2 v[232:233], v239, {WS}, s59 offen {SC}")
def aux_xn(a):
    unpack(a, XFA, XRAW, 10)
    for i in range(20): a(f"v_sub_f32 v{XNA+i}, v{XFA+i}, v232")
    round_bf16(a, XNA, 10, XRAW)
    for i in range(20): a(f"v_mul_f32 v{XNA+i}, v{XNA+i}, v233")
    round_bf16(a, XNA, 10, XRAW)
def aux_p1(a):
    aux_stats_addr(a)
    a("s_lshr_b32 s59, s68, 5")
    a(f"s_mul_i32 s59, s59, {4*FS}")
    a(f"s_add_u32 s59, s59, {FA_OFF}")
    poll(a, 3, 59, 232, 4, sleep=4)
    aux_stats_load(a)
    a("s_waitcnt vmcnt(0)")
    aux_xn(a)

def aux_p2(a):
    a("v_bfe_u32 v32, v2, 1, 2")
    a("v_lshrrev_b32 v33, 4, v2")
    a("v_xor_b32 v32, v32, v33")
    a("v_lshlrev_b32 v32, 5, v32")
    a("v_and_b32 v33, 1, v2")
    a("v_lshl_add_u32 v32, v33, 4, v32")
    a("v_lshrrev_b32 v33, 3, v2")
    a("v_lshl_add_u32 v32, v33, 12, v32")
    a("s_mul_i32 s57, s65, 80")
    a("s_mul_i32 s56, s64, 24")
    a("s_add_u32 s57, s57, s56")
    a(f"s_mul_i32 s59, s57, {FS}")
    a(f"s_add_u32 s59, s59, {FZ_OFF}")
    a("s_lshl_b32 s57, s57, 12")
    a("s_lshl_b32 s56, s66, 7")
    a("s_add_u32 s57, s57, s56")
    a(f"s_add_u32 s57, s57, {Z_OFF}")
    a(f"s_mul_i32 s58, s64, {KB_CH}")
    a(f"s_add_u32 s58, s58, {L_K+128}")
    a("v_bfe_u32 v34, v2, 3, 2")
    a("v_xor_b32 v34, s64, v34")
    a("v_lshlrev_b32 v34, 5, v34")
    a("v_and_b32 v35, 3, v2")
    a("v_lshl_add_u32 v34, v35, 3, v34")
    a(f"v_add_u32 v34, {L_K+128}, v34")
    a("v_lshrrev_b32 v35, 2, v2")
    a(f"s_movk_i32 s56, {KB_CH - 24*128}")
    for i5 in range(5):
        a(f"v_add_u32 v36, {16*i5}, v35")
        a("v_mul_u32_u24 v37, 43, v36")
        a("v_lshrrev_b32 v37, 10, v37")
        a("v_lshl_add_u32 v36, v36, 7, v34")
        a(f"v_mad_u32_u24 v{40+i5}, v37, s56, v36")
    a("v_lshlrev_b32 v38, 3, v2")
    a("v_add_u32 v38, s67, v38")
    lds_wait(a, C_RD, 5, 6, 4, sleep=8)
    lds_wait(a, C_P2, 5, 6, 1, sleep=8)
    L8 = lbl("Z8"); Lj = lbl("ZJ")
    a("s_cmp_eq_u32 s64, 3")
    a(f"s_cbranch_scc1 {L8}")
    poll(a, 3, 59, 46, 24, sleep=4)
    for k in range(3):
        a(f"s_add_u32 m0, s58, {k*1024}")
        a(f"buffer_load_dwordx4 v32, {WS}, s57 offen {SC} lds")
        a(f"s_add_u32 s57, s57, {8*4096}")
    a(f"s_branch {Lj}")
    a.label(L8)
    poll(a, 3, 59, 46, 8, sleep=4)
    a("s_mov_b32 m0, s58")
    a(f"buffer_load_dwordx4 v32, {WS}, s57 offen {SC} lds")
    a.label(Lj)
    a("s_waitcnt vmcnt(0)")
    lds_arrive(a, C_ZL, 5, 6)
    lds_wait(a, C_ZL, 5, 6, 4, sleep=1)
    for i5 in range(5):
        a(f"ds_read_b64_tr_b16 {pr(48+2*i5)}, v{40+i5}")
    a("s_waitcnt lgkmcnt(0)")
    unpack(a, 64, 48, 10)
    if EXACT:
        for i in range(20): a(f"v_mul_f32 v{64+i}, v{64+i}, v{XNA+i}")
        round_bf16(a, 64, 10, 48)
        for i in range(20): a(f"v_add_f32 v{64+i}, v{64+i}, v{XFA+i}")
    else:
        for i in range(20): a(f"v_fma_f32 v{64+i}, v{64+i}, v{XNA+i}, v{XFA+i}")
    pack(a, 48, 64, 10)
    for i5 in range(5):
        a(f"ds_write_b64 v38, {pr(48+2*i5)} offset:{8192+i5*512}")
    lds_arrive(a, C_E, 5, 6)

def gen_aux_early(a):
    a("s_setprio 3")
    a("s_sub_u32 s64, s40, 4")
    a("s_and_b32 s66, s2, 7")
    a("s_lshl_b32 s66, s66, 2")
    a("s_lshr_b32 s67, s2, 3")
    a("s_and_b32 s56, s67, 3")
    a("s_add_u32 s66, s66, s56")
    a("s_lshr_b32 s67, s67, 2")
    a("s_mul_i32 s68, s66, 81920")
    a("s_mul_i32 s56, s67, 160")
    a("s_add_u32 s68, s68, s56")
    a("s_mul_i32 s56, s64, 2560")
    a("s_add_u32 s68, s68, s56")
    a("s_movk_i32 s59, 10240-160")
    a("v_mul_u32_u24 v40, 205, v2")
    a("v_lshrrev_b32 v40, 11, v40")
    a("v_lshlrev_b32 v3, 4, v2")
    a("v_mad_u32_u24 v40, v40, s59, v3")
    a("v_add_u32 v42, 64, v2")
    a("v_mul_u32_u24 v41, 205, v42")
    a("v_lshrrev_b32 v41, 11, v41")
    a("v_lshlrev_b32 v42, 4, v42")
    a("v_mad_u32_u24 v41, v41, s59, v42")
    a("s_sub_u32 s58, s68, 3840")
    a("v_add_u32 v42, s58, v40")
    a("v_add_u32 v43, s58, v41")
    a("v_add_u32 v44, 1280, v42")
    a("v_add_u32 v45, 1280, v43")
    a("s_mul_i32 s57, s64, 2880")
    a("s_mul_i32 s60, s64, 2560")
    a("s_mov_b32 s56, 0xffff")
    a("s_cmp_lt_u32 s64, 2")
    a("s_cselect_b32 s61, 0x3ffffff, s56")
    a("s_cmp_lt_u32 s64, 1")
    a("s_cselect_b32 s63, 0x3ffffff, s56")
    common_entry(a)
    KS = srd(a, 44, P_K, XBYTES)
    VS = srd(a, 48, P_V, XBYTES)
    a("s_barrier")
    a.stamp(1)
    a(f"s_add_u32 m0, s57, {L_KS}")
    a(f"buffer_load_dwordx4 v42, {KS}, 0 offen {NT} lds")
    a(f"s_add_u32 m0, s57, {L_KS+1440}")
    a(f"buffer_load_dwordx4 v44, {KS}, 0 offen {NT} lds")
    a(f"s_add_u32 m0, s60, {L_VS}")
    a(f"buffer_load_dwordx4 v40, {VS}, s68 offen {NT} lds")
    a(f"buffer_load_dwordx4 v40, {VS}, s68 offen offset:1280 {NT} lds")
    a("s_mov_b32 exec_hi, 0")
    a("s_mov_b32 exec_lo, s61")
    a(f"s_add_u32 m0, s57, {L_KS+1024}")
    a(f"buffer_load_dwordx4 v43, {KS}, 0 offen {NT} lds")
    a("s_mov_b32 exec_lo, s63")
    a(f"s_add_u32 m0, s57, {L_KS+1440+1024}")
    a(f"buffer_load_dwordx4 v45, {KS}, 0 offen {NT} lds")
    a("s_mov_b32 exec_lo, 0xffff")
    a(f"s_add_u32 m0, s60, {L_VS+1024}")
    a(f"buffer_load_dwordx4 v41, {VS}, s68 offen {NT} lds")
    a(f"buffer_load_dwordx4 v41, {VS}, s68 offen offset:1280 {NT} lds")
    a("s_mov_b64 exec, -1")

def gen_aux(a):
    a("s_lshl_b32 s67, s67, 2")
    a("s_add_u32 s67, s67, s64")
    a("v_mul_u32_u24 v56, 52, v2")
    a("v_lshrrev_b32 v56, 8, v56")
    a("v_mul_u32_u24 v57, 5, v56")
    a("v_sub_u32 v57, v2, v57")
    a("v_lshlrev_b32 v61, 5, v57")
    a("s_mul_i32 s69, s67, 160")
    KR, VR, SK = 64, 86, 102
    SKS = srd(a, 52, P_SK, D * 8)
    a(f"buffer_load_dwordx4 {q4(SK)}, v61, {SKS}, s69 offen")
    a(f"buffer_load_dwordx4 {q4(SK+4)}, v61, {SKS}, s69 offen offset:16")
    tag_ready(a)
    lds_arrive(a, C_LNW, 5, 6)
    a("s_lshl_b32 s41, s64, 8")
    a("s_sub_u32 s42, 255, s2")
    a("s_add_u32 s41, s41, s42")
    a("s_lshl_b32 s62, s41, 12")
    a("v_mov_b32 v4, 0")
    SM = srd(a, 36, P_SSMK, D * S * 2)
    HL, HN = 192, 208
    def ssm_loads():
        for t in range(4):
            a(f"buffer_load_dwordx4 {q4(HL+4*t)}, v3, {SM}, s62 offen offset:{t*1024} {NT}")
        for t in range(4):
            a(f"buffer_load_dwordx2 {pr(HN+2*t)}, v3, {SM}, s62 offen offset:{t*1024+16}")
        SD = srd(a, 44, P_SSMD, D * 2)
        a("s_lshl_b32 s56, s41, 1")
        a(f"buffer_load_ushort v8, v4, {SD}, s56 offen")
    a("s_movk_i32 s56, 160")
    a("v_mul_u32_u24 v58, s56, v56")
    a("v_lshl_add_u32 v58, v57, 3, v58")
    a("s_mul_i32 s56, s64, 40")
    a(f"s_add_u32 s56, s56, {L_KS}")
    a("v_add_u32 v58, s56, v58")
    a(f"s_mul_i32 s42, s64, {HCOPY}")
    a(f"s_add_u32 s42, s42, {L_H}")
    a(f"s_mul_i32 s43, s64, {KB_CH}")
    a(f"s_add_u32 s43, s43, {L_K}")
    srd(a, 32, P_WS, WS_TOTAL)
    a("v_lshrrev_b32 v12, 3, v2")
    a("v_and_b32 v13, 7, v2")
    a("v_lshlrev_b32 v9, 14, v12")
    a("v_lshl_add_u32 v9, v13, 4, v9")
    a(f"s_mul_i32 s57, s67, {20*4096}")
    a("s_lshl_b32 s56, s66, 7")
    a("s_add_u32 s57, s57, s56")
    a(f"s_add_u32 s57, s57, {KVR_OFF}")
    a("s_mul_i32 s58, s64, 768")
    a(f"s_add_u32 s58, s58, {L_KVT}")
    a("s_movk_i32 s56, 144")
    a("v_mul_u32_u24 v10, s56, v57")
    a("v_lshl_add_u32 v10, v56, 4, v10")
    a("v_add_u32 v10, s58, v10")
    a("v_mul_u32_u24 v11, s56, v12")
    a("v_lshl_add_u32 v11, v13, 4, v11")
    a("v_add_u32 v11, s58, v11")
    if SSMLATE == 0: ssm_loads()
    a.stamp(2)
    a(f"s_waitcnt vmcnt({0 if SSMLATE else 9})")
    a.vm = []
    a.stamp(3)
    lds_arrive(a, C_KVL, 5, 6)
    if SSMLATE == 2: ssm_loads()
    lds_wait(a, C_KVL, 5, 6, 4)
    set_exec(a, 40)
    for t in range(11):
        a(f"ds_read_b64 {pr(KR+2*t)}, v58 offset:{(t % 8)*1440 + (t // 8)*160}")
    for t in range(8):
        a(f"ds_read_b64 {pr(VR+2*t)}, v58 offset:{12*1024 + t*1280}")
    a("s_waitcnt lgkmcnt(0)")
    W, KF, VF, O = 112, 120, 142, 160
    for p in range(2):
        for e in range(2):
            c = 2 * p + e
            a(f"v_lshlrev_b32 v{W+0+e}, 16, v{SK+2*c}")
            a(f"v_and_b32 v{W+2+e}, 0xffff0000, v{SK+2*c}")
            a(f"v_lshlrev_b32 v{W+4+e}, 16, v{SK+2*c+1}")
            a(f"v_and_b32 v{W+6+e}, 0xffff0000, v{SK+2*c+1}")
        for t in range(11):
            a(f"v_lshlrev_b32 v{KF+2*t}, 16, v{KR+2*t+p}")
            a(f"v_and_b32 v{KF+2*t+1}, 0xffff0000, v{KR+2*t+p}")
        for t in range(8):
            a(f"v_lshlrev_b32 v{VF+2*t}, 16, v{VR+2*t+p}")
            a(f"v_and_b32 v{VF+2*t+1}, 0xffff0000, v{VR+2*t+p}")
        for r in range(8):
            a(f"v_pk_mul_f32 {pr(KF+2*r)}, {pr(KF+2*r)}, {pr(W+6)}")
            a(f"v_pk_fma_f32 {pr(KF+2*r)}, {pr(KF+2*(r+1))}, {pr(W+4)}, {pr(KF+2*r)}")
            a(f"v_pk_fma_f32 {pr(KF+2*r)}, {pr(KF+2*(r+2))}, {pr(W+2)}, {pr(KF+2*r)}")
            a(f"v_pk_fma_f32 {pr(KF+2*r)}, {pr(KF+2*(r+3))}, {pr(W+0)}, {pr(KF+2*r)}")
        for r in range(8):
            a(f"v_pk_mul_f32 {pr(VF+2*r)}, {pr(VF+2*r)}, {pr(KF+2*r)}")
        for e in range(2):
            Ob = O + 8 * p + 4 * e
            for q in range(4):
                a(f"v_cvt_pk_bf16_f32 v{Ob+q}, v{VF+2*(7-2*q)+e}, v{VF+2*(6-2*q)+e}")
            a(f"ds_write_b128 v10, {q4(Ob)}")
            a(f"ds_read_b128 {q4(Ob)}, v11")
    a("s_waitcnt lgkmcnt(0)")
    for c in range(4):
        a(f"buffer_store_dwordx4 {q4(O+4*c)}, v9, {WS}, s57 offen {SC}", tag='ks')
        a("s_add_u32 s57, s57, 4096")
    a("s_mov_b64 exec, -1")
    a.stamp(4)
    lds_arrive(a, C_KVD, 5, 6)
    a("s_lshl_b32 s59, s67, 5")
    a("s_add_u32 s59, s59, s66")
    a(f"s_mul_i32 s59, s59, {FS}")
    a(f"s_add_u32 s59, s59, {FK_OFF}")
    a(f"s_cmp_ge_u32 s41, {0 if XNOCONV else D}")
    a("s_cbranch_scc1 KF_NOCONV")
    a.wait(vm='ks')
    set_flag(a, 59, 12)
    lds_arrive(a, C_FLG, 5, 6)
    a.stamp(5)
    if SSMLATE == 1:
        lds_wait(a, C_FLG, 5, 6, 4)
        ssm_loads()
    lds_wait(a, C_KVD, 5, 6, 4)
    lds_wait(a, C_LNR, 5, 6, 4)
    a("s_waitcnt vmcnt(0)")
    a("v_add_u32 v9, s42, v3")
    TA = 216
    for t in range(4):
        d = [HL + 4 * t + i for i in range(4)] + [HN + 2 * t, HN + 2 * t + 1]
        a(f"ds_write_b128 v9, {q4(d[0])} offset:{32+t*1024}")
        for i in range(4): a(f"v_alignbit_b32 v{TA+i}, v{d[i+1]}, v{d[i]}, 16")
        for i in range(4): a(f"v_mov_b32 v{TA+4+i}, v{d[i+1]}")
        for i in range(4): a(f"v_alignbit_b32 v{TA+8+i}, v{d[i+2]}, v{d[i+1]}, 16")
        for j in range(1, 4):
            a(f"ds_write_b128 v9, {q4(TA+4*(j-1))} offset:{j*HJ+32+t*1024}")
        TA = 216 + 12 * ((t + 1) & 1)
    a(f"v_readfirstlane_b32 s60, v{HL}")
    a(f"v_readfirstlane_b32 s61, v{HL+1}")
    a("v_mov_b32 v6, s60")
    a("v_mov_b32 v7, s61")
    a("v_lshlrev_b32 v9, 3, v2")
    a("v_add_u32 v9, s43, v9")
    a("v_mov_b32 v5, 0")
    a("ds_write_b64 v9, v[4:5]")
    a("v_and_b32 v11, 15, v2")
    a("v_lshrrev_b32 v12, 4, v2")
    a("v_add_u32 v13, 1, v11")
    a("v_and_b32 v14, 3, v13")
    a(f"s_movk_i32 s56, {HJ}")
    a("v_mul_u32_u24 v10, s56, v14")
    a("v_and_b32 v14, 0x1c, v13")
    a("v_lshl_add_u32 v10, v14, 1, v10")
    a("v_lshl_add_u32 v10, v12, 4, v10")
    a("v_add_u32 v10, s42, v10")
    a("v_lshlrev_b32 v15, 1, v11")
    a("v_sub_u32 v15, v15, v12")
    a("v_lshlrev_b32 v15, 4, v15")
    a(f"s_add_u32 s57, s43, {33*16-448}")
    a("v_add_u32 v15, s57, v15")
    a("v_lshrrev_b32 v16, 2, v2")
    a("v_and_b32 v17, 3, v2")
    a("v_mul_u32_u24 v18, s56, v16")
    a("v_lshl_add_u32 v18, v17, 3, v18")
    a("v_add_u32 v18, s42, v18")
    a("v_lshlrev_b32 v19, 4, v16")
    a("v_sub_u32 v19, 64, v19")
    a("v_lshlrev_b32 v20, 3, v12")
    a("v_add_u32 v20, v20, v11")
    a("v_sub_u32 v20, 15, v20")
    a("v_and_b32 v21, 1, v20")
    a("v_lshlrev_b32 v21, 4, v21")
    a("v_lshrrev_b32 v20, 1, v20")
    a("v_lshlrev_b32 v22, 5, v11")
    a("v_lshl_add_u32 v22, v12, 3, v22")
    aux_ids(a)
    a("s_mul_i32 s59, s41, 3277")
    a("s_lshr_b32 s59, s59, 16")
    a(f"s_mul_i32 s59, s59, {32*FS}")
    a(f"s_add_u32 s59, s59, {FK_OFF}")
    a("v_add_u32 v23, s59, v3")
    a("s_lshr_b32 s59, s68, 5")
    a(f"s_mul_i32 s59, s59, {4*FS}")
    a(f"s_add_u32 s59, s59, {FA_OFF - 32*FS}")
    a("v_add_u32 v28, s59, v3")
    a("v_cmp_gt_u32 vcc, 32, v2")
    a("v_cndmask_b32 v23, v28, v23, vcc")
    a("s_mov_b32 s59, 0")
    if FKGATE: lds_wait(a, C_FT, 28, 29, 4, sleep=2)
    poll(a, 23, 59, 28, 36, sleep=PSLEEP)
    a.stamp(6)
    aux_stats_addr(a)
    aux_stats_load(a)
    a("s_add_u32 m0, s43, 512")
    a(f"s_add_u32 s57, s62, {KVR_OFF}")
    for t in range(4):
        a(f"buffer_load_dwordx4 v3, {WS}, s57 offen offset:{t*1024} {SC} lds")
    a("v_lshlrev_b64 v[6:7], v19, v[6:7]")
    a("s_mov_b32 s60, 0x8880")
    a("s_mov_b32 s61, 0")
    a("v_cndmask_b32 v6, 0, v6, s[60:61]")
    a("v_cndmask_b32 v7, 0, v7, s[60:61]")
    a("s_mov_b64 exec, 0xffff")
    a("ds_write_b64 v18, v[6:7]")
    a("s_mov_b64 exec, -1")
    a("v_lshlrev_b32 v8, v21, v8")
    DF = 24
    for j in range(4):
        a(f"v_cmp_eq_u32 vcc, {j}, v20")
        a(f"v_cndmask_b32 v{DF+j}, 0, v8, vcc")
    CACC, AB, BB = 32, 64, 128
    def rd(r, idx):
        buf = (r & 1) * 32
        if idx < 8:
            q = 8 * idx - r
            a(f"ds_read_b128 {q4(BB+buf+idx*4)}, v15 offset:{64*(q+7)}")
        else:
            kap = idx - 8
            k = 8 * kap + r
            a(f"ds_read_b64 {pr(AB+buf+kap*4)}, v10 offset:{64*k}")
            a(f"ds_read_b64 {pr(AB+buf+kap*4+2)}, v10 offset:{64*k+8}")
    for idx in range(8, 16): rd(0, idx)
    a(f"s_setprio {E('CVPRIO', 0)}")
    a("s_waitcnt vmcnt(0)")
    a.stamp(7)
    for idx in range(8): rd(0, idx)
    a(f"v_mov_b32 v30, {C_HIS}")
    a("ds_read_b32 v31, v30")
    for r in range(8):
        buf = (r & 1) * 32
        a("s_waitcnt lgkmcnt(0)")
        if r == CVPAUSE:
            lds_wait(a, C_FGD, 5, 6, 4, sleep=8)
        if YIELD:
            Ly = lbl("NOY")
            a("v_readfirstlane_b32 s56, v31")
            a(f"s_cmp_lt_u32 s56, {YIELD}")
            a(f"s_cbranch_scc1 {Ly}")
            lds_wait(a, C_FGD, 5, 6, 4, sleep=8)
            a.label(Ly)
        seq = []
        if r == 0:
            for n in range(8): seq.append(('d', n))
        for kap in range(8):
            for n in range(kap, 8): seq.append((kap, n))
        nxt = list(range(16)) if r < 7 else []
        for i, (kap, n) in enumerate(seq):
            c = q4(CACC + n * 4)
            if kap == 'd':
                a(f"v_mfma_f32_16x16x32_bf16 {c}, {q4(DF)}, {q4(BB+buf+n*4)}, 0")
            else:
                a(f"v_mfma_f32_16x16x32_bf16 {c}, {q4(AB+buf+kap*4)}, {q4(BB+buf+(n-kap)*4)}, {c}")
            if nxt and i % 2 == 0:
                rd(r + 1, nxt.pop(0))
            if YIELD and i == len(seq) - 3 and r < 7: a("ds_read_b32 v31, v30")
        if r == 3: a.stamp(8)
    a.stamp(9)
    a("s_setprio 3")
    a(f"s_add_u32 s57, s62, {Z_OFF}")
    if ZWIDE:
        a("v_and_b32 v13, 1, v12")
        a("v_lshlrev_b32 v22, 9, v13")
        a("v_lshl_add_u32 v22, v11, 5, v22")
        a("v_lshrrev_b32 v13, 1, v12")
        a("v_lshl_add_u32 v22, v13, 4, v22")
        for n in range(0, 8, 2):
            o = AB + 2 * n
            a(f"v_cvt_pk_bf16_f32 v{o}, v{CACC+4*n}, v{CACC+4*n+1}")
            a(f"v_cvt_pk_bf16_f32 v{o+1}, v{CACC+4*n+2}, v{CACC+4*n+3}")
            a(f"v_cvt_pk_bf16_f32 v{o+2}, v{CACC+4*n+4}, v{CACC+4*n+5}")
            a(f"v_cvt_pk_bf16_f32 v{o+3}, v{CACC+4*n+6}, v{CACC+4*n+7}")
            a(f"v_permlane16_swap_b32 v{o}, v{o+2}")
            a(f"v_permlane16_swap_b32 v{o+1}, v{o+3}")
            a(f"buffer_store_dwordx4 {q4(o)}, v22, {WS}, s57 offen offset:{512*n} {SC}")
    else:
        for n in range(8):
            a(f"v_cvt_pk_bf16_f32 v{AB+2*n}, v{CACC+4*n}, v{CACC+4*n+1}")
            a(f"v_cvt_pk_bf16_f32 v{AB+2*n+1}, v{CACC+4*n+2}, v{CACC+4*n+3}")
            a(f"buffer_store_dwordx2 {pr(AB+2*n)}, v22, {WS}, s57 offen offset:{512*n} {SC}")
    a("v_mov_b32 v190, v232")
    a("v_mov_b32 v191, v233")
    a("s_add_u32 s58, s43, 512")
    aux_p0(a, "s58")
    a(f"s_mul_i32 s59, s41, {FS}")
    a(f"s_add_u32 s59, s59, {FZ_OFF}")
    a("s_waitcnt vmcnt(3)")
    set_flag(a, 59, 12)
    a.stamp(10)
    a("s_waitcnt vmcnt(0)")
    aux_p0b(a)
    a("v_mov_b32 v232, v190")
    a("v_mov_b32 v233, v191")
    lds_wait(a, C_FGD, 5, 6, 4, sleep=8)
    aux_xn(a)
    a("s_branch KF_P2")
    a.label("KF_NOCONV")
    a("s_waitcnt vmcnt(0)")
    set_flag(a, 59, 12)
    lds_arrive(a, C_FLG, 5, 6)
    a.stamp(5)
    if PFSTEPS < 12 and not XNOW2:
        a("s_cmp_lg_u32 s64, 3")
        a("s_cbranch_scc1 KF_AUXEND")
        nrow = (12 - PFSTEPS) * (32 if P2 else 16)
        a("s_lshr_b32 s60, s2, 3")
        a("s_and_b32 s61, s2, 7")
        if not P2:
            a("s_lshr_b32 s57, s60, 2")
            a("s_and_b32 s56, s60, 3")
            a("s_lshl_b32 s58, s61, 2")
            a("s_add_u32 s56, s56, s58")
        else:
            a("s_lshr_b32 s57, s60, 3")
            a("s_and_b32 s58, s61, 4")
            a("s_add_u32 s57, s57, s58")
            a("s_and_b32 s56, s60, 7")
            a("s_and_b32 s58, s61, 3")
            a("s_lshl_b32 s58, s58, 3")
            a("s_add_u32 s56, s56, s58")
        if not P2:
            a("s_lshr_b32 s58, s57, 1")
            a("s_mul_i32 s58, s58, 384")
            a("s_and_b32 s57, s57, 1")
            a(f"s_mul_i32 s57, s57, {nrow}")
            a("s_add_u32 s57, s57, s58")
        else:
            a("s_and_b32 s57, s57, 3")
            a("s_mul_i32 s57, s57, 384")
        a(f"s_add_u32 s57, s57, {32*PFSTEPS}")
        a("s_lshl_b32 s57, s57, 12")
        a("s_lshl_b32 s56, s56, 7")
        a("s_add_u32 s57, s57, s56")
        a("v_lshrrev_b32 v59, 3, v2")
        a("v_and_b32 v60, 7, v2")
        a("v_lshlrev_b32 v60, 4, v60")
        a("v_lshl_add_u32 v62, v59, 12, v60")
        W2 = srd(a, 36, P_W2, S * F * 2)
        if STAG:
            a("s_lshr_b32 s58, s2, 3")
            a(f"s_and_b32 s58, s58, {STAG-1}")
            a(f"s_add_u32 s58, s58, {STAG0}")
            a("s_lshl_b32 s58, s58, 2")
            lds_wait(a, C_HIS, 5, 6, "s58", sleep=4)
        else:
            lds_wait(a, C_HIS, 5, 6, 48, sleep=4)
        for k in range(nrow // 8):
            a(f"buffer_load_dwordx4 {q4(64+4*(k%30))}, v62, {W2}, s57 offen {NTW}")
            a(f"s_add_u32 s57, s57, {8*4096}")
    a.label("KF_AUXEND")
    aux_ids(a)
    aux_stats_addr(a)
    a("s_lshr_b32 s59, s68, 5")
    a(f"s_mul_i32 s59, s59, {4*FS}")
    a(f"s_add_u32 s59, s59, {FA_OFF}")
    lds_wait(a, C_HIS, 5, 6, 40, sleep=8)
    poll(a, 3, 59, 232, 4, sleep=4)
    aux_stats_load(a)
    a("s_waitcnt vmcnt(0)")
    a("v_mov_b32 v190, v232")
    a("v_mov_b32 v191, v233")
    lds_wait(a, C_RD, 5, 6, 4, sleep=2)
    aux_p0(a)
    a("s_waitcnt vmcnt(0)")
    aux_p0b(a)
    a("v_mov_b32 v232, v190")
    a("v_mov_b32 v233, v191")
    lds_wait(a, C_FGD, 5, 6, 4, sleep=8)
    aux_xn(a)
    a.label("KF_P2")
    a.stamp(11)
    aux_p2(a)
    a.flush_stamps(0, 12, vt=250, ws=P_WS)

NAME = "parallel_sum__ssm_conv_h3__mixer_token_mlp__prompt"
def build(path, as_list=True):
    ref = open(f"cdna_kernels/{NAME}.s.ref").read().split("\n")
    hdr = [l for l in ref if l.startswith(";") and "@launch" not in l and "Override launch" not in l and "grid=ceil" not in l]
    kn = NAME + "_kernel"
    t, d = gen(kn)
    s = "\n".join(hdr) + "\n"
    if as_list: s += f"; @launch kernel={kn} grid=(256,1,1) block=({THREADS},1,1) lds={LDS_TOTAL}\n"
    else: s += f"; @launch grid=(256,1,1) block=({THREADS},1,1) lds={LDS_TOTAL}\n"
    s += '.amdgcn_target "amdgcn-amd-amdhsa--gfx950"\n' + t + d
    open(path, "w").write(s)
if __name__ == "__main__":
    import sys
    build(sys.argv[1], as_list=(len(sys.argv) <= 2))
```

```python
from asmlib import *
import os, struct, math
E = lambda k, d: type(d)(os.environ.get(k, d))

S, D, F = 2048, 640, 1536
XBYTES = S * D * 2
EP_OFF = 0
FGS = E('FGS', 64); FKS = E('FKS', 16); FZS = E('FZS', 16); FAS = E('FAS', 16); WIDEF = E('WIDEF', 0)
FG_OFF = 0x1000
FK_OFF = FG_OFF + 960 * FGS
FZ_OFF = FK_OFF + 1024 * FKS
FA_OFF = FZ_OFF + 640 * FZS
ST_OFF = FA_OFF + 2560 * FAS
HF_OFF = (ST_OFF + 16384 + 0xffff) & ~0xffff
KVR_OFF = HF_OFF + 0x280000
Z_OFF = KVR_OFF + 0x280000
GF_OFF = Z_OFF + 0x280000
WS_TOTAL = GF_OFF + 0x1E0000
sh = lambda x: x.bit_length() - 1
FS = 16

NS = 6
RING = NS * 4096
HCOPY = 4160
HB_CH = 4 * HCOPY
KB_CH = 512 + 4096
L_H = 4 * RING
L_K = L_H + 3 * HB_CH
L_MISC = L_K + 3 * KB_CH
L_CNT = L_MISC
L_ST = L_MISC + 64
LDS_TOTAL = L_MISC + 128 + 1024
HJ = 3 * HCOPY
L_KS = L_H + HJ
L_VS = L_KS + 12 * 1024
L_KVT = L_VS + 10 * 1024
assert L_KVT + 4 * 768 <= L_K
C_RED, C_RD, C_KVL, C_KVD, C_LNW, C_LNR, C_HIS, C_FLG, C_FT, C_FGD, C_ZL, C_E, C_P2, C_FGF = [L_CNT + 4 * i for i in range(14)]
ZT = E('ZT', 2)
W2PRE = E('W2PRE', 10)
assert LDS_TOTAL <= 163840
THREADS = 512
NT = os.environ.get('NT', '')
CODEPF = E('CODEPF', 1)
FGSL = E('FGSL', 0)
EARLYW = E('EARLYW', 1)
ZWIDE = E('ZWIDE', 1)
OWIDE = E('OWIDE', 1)
YIELD = E('YIELD', 52)
XNOCONV = E('XNOCONV', 0)
XNOW2 = E('XNOW2', 0)
XNOMFMA = E('XNOMFMA', 0)
FTA = E('FTA', 1)
SSMLATE = E('SSMLATE', 0)
P1 = E('P1', 0)
P2 = E('P2', 0)
STAG = E('STAG', 8)
STAG0 = E('STAG0', 1)
PROG = E('PROG', 1)
OUTMOD = os.environ.get('OUTMOD', '')
NTW = os.environ.get('NTW', NT)
SC = "sc1"
SCL = os.environ.get("SCL", "sc1")
NTB = os.environ.get("NTB", "")
FT0 = E("FT0", 0)
PRE1 = E("PRE1", 12)
LEADD = E("LEADD", 12)
LEADR = E("LEADR", 6)
PFSTEPS = E("PFSTEPS", 4)
FTGATE = E("FTGATE", 1)
FKGATE = E("FKGATE", 1)
CVPAUSE = E("CVPAUSE", 8)
SPIN_MAX = 1 << 16
FT1 = E('FT1', 2)
NR1, NH = 6, 4
NR2, NS2, NG = 5, 5, 3
ROT = E('ROT', 0)
PSLEEP = E('PSLEEP', 6)
FTWAIT = E('FTWAIT', 1)
PFMOD = os.environ.get('PFMOD', '')
W2EARLY = E('W2EARLY', 0)
EXACT = E('EXACT', 1)
W2SIG = E('W2SIG', 0)

def f2u(x): return struct.unpack('<I', struct.pack('<f', x))[0]
GELU_K0 = -2.0 * math.sqrt(2.0 / math.pi) * math.log2(math.e)
GELU_K1 = GELU_K0 * 0.044715
def pr(r): return f"v[{r}:{r+1}]"
def q4(r): return f"v[{r}:{r+3}]"

P_Q, P_K, P_V, P_SK, P_SSMK, P_SSMD, P_BX, P_W1, P_B1, P_W2, P_B2, P_OUT, P_WS = 4, 6, 8, 10, 12, 14, 16, 18, 20, 22, 24, 26, 28
TAG = 30
WS = "s[32:35]"

def srd(a, d, base, nbytes):
    a(f"s_mov_b32 s{d}, s{base}")
    a(f"s_and_b32 s{d+1}, s{base+1}, 0xffff")
    a(f"s_mov_b32 s{d+2}, {nbytes}")
    a(f"s_mov_b32 s{d+3}, 0x00020000")
    return f"s[{d}:{d+3}]"

def reduce2(a, x, y, tx, ty):
    for m in ("quad_perm:[1,0,3,2]", "quad_perm:[2,3,0,1]", "row_half_mirror", "row_mirror"):
        a(f"v_add_f32_dpp v{x}, v{x}, v{x} {m} row_mask:0xf bank_mask:0xf")
        a(f"v_add_f32_dpp v{y}, v{y}, v{y} {m} row_mask:0xf bank_mask:0xf")
    for p in ("v_permlane16_swap_b32", "v_permlane32_swap_b32"):
        a(f"v_mov_b32 v{tx}, v{x}")
        a(f"v_mov_b32 v{ty}, v{y}")
        a(f"{p} v{x}, v{tx}")
        a(f"{p} v{y}, v{ty}")
        a(f"v_add_f32 v{x}, v{x}, v{tx}")
        a(f"v_add_f32 v{y}, v{y}, v{ty}")

def unpack(a, dst, src, n):
    for i in range(n):
        a(f"v_lshlrev_b32 v{dst+2*i}, 16, v{src+i}")
        a(f"v_and_b32 v{dst+2*i+1}, 0xffff0000, v{src+i}")

def pack(a, dst, src, n):
    for i in range(n):
        a(f"v_cvt_pk_bf16_f32 v{dst+i}, v{src+2*i}, v{src+2*i+1}")

def round_bf16(a, reg, n2, tmp):
    pack(a, tmp, reg, n2); unpack(a, reg, tmp, n2)

_uid = [0]
def lbl(p):
    _uid[0] += 1
    return f"{p}_{_uid[0]}"

def set_exec(a, n):
    m = (1 << n) - 1
    a(f"s_mov_b32 exec_lo, {hex(m & 0xffffffff)}")
    a(f"s_mov_b32 exec_hi, {hex(m >> 32)}")

def poll(a, vaddr, soff, vt, nlanes=64, sleep=0):
    L = lbl("POLL"); Lx = lbl("POLLX")
    a("s_mov_b32 s70, 0")
    if nlanes < 64: set_exec(a, nlanes)
    a.label(L)
    a(f"buffer_load_dwordx2 {pr(vt)}, v{vaddr}, {WS}, s{soff} offen {SC}")
    a("s_add_u32 s70, s70, 1")
    a("s_waitcnt vmcnt(0)")
    a(f"v_cmp_ne_u64 vcc, s[{TAG}:{TAG+1}], {pr(vt)}")
    a(f"s_cmp_gt_u32 s70, {SPIN_MAX}")
    a(f"s_cbranch_scc1 {Lx}")
    a(f"s_cbranch_vccz {Lx}")
    if sleep: a(f"s_sleep {sleep}")
    a(f"s_branch {L}")
    a.label(Lx)
    if nlanes < 64: a("s_mov_b64 exec, -1")

def set_flag(a, soff, vt, rec=8):
    a(f"v_mov_b32 v{vt}, s{TAG}")
    a(f"v_mov_b32 v{vt+1}, s{TAG+1}")
    if WIDEF and rec > 8:
        a(f"v_lshlrev_b32 v{vt+2}, 3, v2")
        a(f"s_mov_b64 exec, {hex((1 << (rec // 8)) - 1)}")
    else:
        a(f"v_mov_b32 v{vt+2}, 0")
        a("s_mov_b64 exec, 1")
    a(f"buffer_store_dwordx2 {pr(vt)}, v{vt+2}, {WS}, s{soff} offen {SC}")
    a("s_mov_b64 exec, -1")

def lds_sync(a, cnt_off, va, vb, target):
    L = lbl("LSYNC"); Lx = lbl("LSYNCX")
    a(f"v_mov_b32 v{va}, {cnt_off}")
    a(f"v_mov_b32 v{vb}, 1")
    a("s_waitcnt lgkmcnt(0)")
    a("s_mov_b64 exec, 1")
    a(f"ds_add_u32 v{va}, v{vb}")
    a("s_mov_b64 exec, -1")
    a("s_mov_b32 s70, 0")
    a.label(L)
    a(f"ds_read_b32 v{vb}, v{va}")
    a("s_add_u32 s70, s70, 1")
    a("s_waitcnt lgkmcnt(0)")
    a(f"v_readfirstlane_b32 s71, v{vb}")
    a(f"s_cmp_gt_u32 s70, {SPIN_MAX*4}")
    a(f"s_cbranch_scc1 {Lx}")
    a(f"s_cmp_lt_u32 s71, {target}")
    a(f"s_cbranch_scc1 {L}")
    a.label(Lx)

class Coll:
    def __init__(self): self.l = []
    def __call__(self, t, tag=None): self.l.append(t)

def reduce2c(a, x, y, tx, ty): reduce2(a, x, y, tx, ty)

def ln_row(RAW, X, T, Q, sh):
    a = Coll()
    S1, S1h, S2, S2h, M, R = Q, Q + 1, Q + 2, Q + 3, Q + 4, Q + 5
    unpack(a, X, RAW, 5)
    a(f"v_readfirstlane_b32 s{sh}, v{X}")
    for i in range(10): a(f"v_subrev_f32 v{T+i}, s{sh}, v{X+i}")
    def sums(src):
        a(f"v_pk_add_f32 {pr(S1)}, {pr(src)}, {pr(src+2)}")
        a(f"v_pk_mul_f32 {pr(S2)}, {pr(src)}, {pr(src)}")
        for i in range(1, 5):
            if i >= 2: a(f"v_pk_add_f32 {pr(S1)}, {pr(S1)}, {pr(src+2*i)}")
            a(f"v_pk_fma_f32 {pr(S2)}, {pr(src+2*i)}, {pr(src+2*i)}, {pr(S2)}")
        a(f"v_add_f32 v{S1}, v{S1}, v{S1h}")
        a(f"v_add_f32 v{S2}, v{S2}, v{S2h}")
        reduce2(a, S1, S2, S1h, S2h)
    def stats(shift):
        a(f"v_mul_f32 v{S1}, s60, v{S1}")
        a(f"v_mul_f32 v{S2}, s60, v{S2}")
        a(f"v_fma_f32 v{S2}, -v{S1}, v{S1}, v{S2}")
        a(f"v_max_f32 v{S2}, 0, v{S2}")
        if shift: a(f"v_add_f32 v{S1}, s{sh}, v{S1}")
        a(f"v_cvt_pk_bf16_f32 v{S1h}, v{S1}, v{S2}")
        a(f"v_lshlrev_b32 v{M}, 16, v{S1h}")
        a(f"v_and_b32 v{S2}, 0xffff0000, v{S1h}")
        a(f"v_add_f32 v{S2}, 0x3727c5ac, v{S2}")
        a(f"v_cvt_pk_bf16_f32 v{S2}, v{S2}, v{S2}")
        a(f"v_lshlrev_b32 v{S2}, 16, v{S2}")
        a(f"v_sqrt_f32 v{S2}, v{S2}")
        a(f"v_cvt_pk_bf16_f32 v{S2}, v{S2}, v{S2}")
        a(f"v_lshlrev_b32 v{S2}, 16, v{S2}")
        a(f"v_rcp_f32 v{R}, v{S2}")
    def normalize():
        for i in range(5):
            a(f"v_pk_add_f32 {pr(T+2*i)}, {pr(X+2*i)}, {pr(M)} op_sel_hi:[1,0] neg_lo:[0,1] neg_hi:[0,1]")
        round_bf16(a, T, 5, RAW)
        for i in range(5):
            a(f"v_pk_mul_f32 {pr(T+2*i)}, {pr(T+2*i)}, {pr(M)} op_sel:[0,1] op_sel_hi:[1,1]")
        pack(a, RAW, T, 5)
    sums(T); stats(True)
    p1 = a.l; a.l = []
    normalize()
    unpack(a, X, RAW, 5)
    sums(X); stats(False)
    normalize()
    return p1, a.l

def common_entry(a):
    a("s_waitcnt lgkmcnt(0)")
    a(f"s_load_dwordx2 s[{TAG}:{TAG+1}], s[{P_WS}:{P_WS+1}], {EP_OFF}")

def tag_ready(a):
    a("s_waitcnt lgkmcnt(0)")
    a(f"s_add_u32 s{TAG}, s{TAG}, 0x9E3779B9")
    a(f"s_add_u32 s{TAG+1}, s{TAG+1}, 0x7F4A7C15")

RA, RB_ = 8, 72
def ln_addr_and_load(a):
    a("s_lshr_b32 s41, s2, 2")
    a("s_and_b32 s42, s2, 3")
    a("s_lshl_b32 s43, s41, 5")
    a("s_lshl_b32 s56, s42, 2")
    a("s_add_u32 s43, s43, s56")
    a("s_and_b32 s56, s40, 1")
    a("s_lshl_b32 s56, s56, 1")
    a("s_add_u32 s43, s43, s56")
    a("s_lshr_b32 s56, s40, 1")
    a("s_lshl_b32 s56, s56, 4")
    a("s_add_u32 s43, s43, s56")
    a("s_mul_i32 s43, s43, 1280")
    a("v_lshlrev_b32 v3, 3, v2")
    a("v_lshlrev_b32 v4, 2, v2")
    a(f"v_add_u32 v5, {L_CNT}, v4")
    a("v_mov_b32 v6, 0")
    a("s_mov_b64 exec, 0xffff")
    a("ds_write_b32 v5, v6")
    a("s_mov_b64 exec, -1")
    common_entry(a)
    X = srd(a, 36, P_Q, XBYTES)
    for r, o in ((RA, 0), (RB_, 1280)):
        a(f"buffer_load_dwordx2 {pr(r)}, v3, {X}, s43 offen offset:{o} {NT}", tag='x')
        a(f"buffer_load_dwordx2 {pr(r+2)}, v3, {X}, s43 offen offset:{o+512} {NT}", tag='x')
        a(f"buffer_load_dword v{r+4}, v4, {X}, s43 offen offset:{o+1024} {NT}", tag='x')
    a("s_barrier")
    srd(a, 32, P_WS, WS_TOTAL)

def ln_compute_publish(a, hook=None):
    a("s_mul_i32 s56, s40, 2688")
    a(f"s_add_u32 s56, s56, {L_K}")
    a("v_add_u32 v5, s56, v3")
    a("v_add_u32 v6, s56, v4")
    a("v_bfe_u32 v40, v2, 2, 2")
    a("s_movk_i32 s57, 1344")
    a("v_mul_u32_u24 v40, s57, v40")
    a("v_lshrrev_b32 v41, 4, v2")
    a("v_lshl_add_u32 v40, v41, 5, v40")
    a("v_and_b32 v42, 3, v2")
    a("v_lshl_add_u32 v40, v42, 3, v40")
    a("s_lshl_b32 s57, s40, 7")
    a(f"s_add_u32 s57, s57, {L_K}")
    a("v_add_u32 v40, s57, v40")
    a("v_and_b32 v42, 15, v2")
    a("v_lshlrev_b32 v42, 4, v42")
    a("v_lshl_add_u32 v42, v41, 10, v42")
    a("s_lshl_b32 s57, s40, 6")
    a("s_add_u32 s57, s57, s41")
    a("s_lshl_b32 s57, s57, 12")
    a("s_lshl_b32 s58, s42, 8")
    a("s_add_u32 s57, s57, s58")
    a(f"s_add_u32 s57, s57, {HF_OFF}")
    a("s_lshl_b32 s59, s40, 8")
    a("s_add_u32 s59, s59, s2")
    a(f"s_mul_i32 s59, s59, {FAS}")
    a(f"s_add_u32 s59, s59, {FA_OFF}")
    a("s_mov_b32 s60, 0x3acccccd")
    a("s_lshl_b32 s61, s40, 4")
    a(f"s_add_u32 s61, s61, {L_ST}")
    a("v_mov_b32 v43, s61")
    a(f"v_lshlrev_b32 v54, {(4*256*FAS).bit_length()-1}, v2")
    tag_ready(a)
    a.stamp(1)
    a.wait(vm='x')
    a.stamp(2)
    A1, A2 = ln_row(RA, 16, 44, 26, 62)
    B1, B2 = ln_row(RB_, 80, 92, 104, 63)
    for x, y in zip(A1, B1): a(x); a(y)
    a("s_mov_b64 exec, 1")
    a("ds_write_b64 v43, v[30:31]")
    a("ds_write_b64 v43, v[108:109] offset:8")
    a("s_mov_b64 exec, -1")
    for x, y in zip(A2, B2): a(x); a(y)
    for r, o in ((RA, 0), (RB_, 1344)):
        a(f"ds_write_b64 v5, {pr(r)} offset:{o}")
        a(f"ds_write_b64 v5, {pr(r+2)} offset:{o+512}")
        a(f"ds_write_b32 v6, v{r+4} offset:{o+1024}")
    lds_arrive(a, C_LNW, 44, 45)
    a.stamp(3)
    lds_wait(a, C_LNW, 44, 45, 8)
    for k in range(2):
        a(f"ds_read_b64_tr_b16 {pr(16+4*k)}, v40 offset:{512*k}", tag=('t', k))
        a(f"ds_read_b64_tr_b16 {pr(18+4*k)}, v40 offset:{4*1344+512*k}", tag=('t', k))
    a(f"s_add_u32 s58, s57, {4*64*4096}")
    a.wait(lg=[('t', 0)])
    a(f"buffer_store_dwordx4 v[16:19], v42, {WS}, s57 offen {SC}")
    L1 = lbl("LN1")
    a("s_mov_b32 s56, 3")
    a("s_cmp_ge_u32 s40, 2")
    a(f"s_cbranch_scc1 {L1}")
    a("ds_read_b64_tr_b16 v[24:25], v40 offset:1024")
    a(f"ds_read_b64_tr_b16 v[26:27], v40 offset:{4*1344+1024}")
    a(f"v_add_u32 v44, {L_ST}, v3")
    a("ds_read_b64 v[28:29], v44")
    a(f"s_add_u32 s57, s57, {8*64*4096}")
    a("s_lshl_b32 s61, s2, 6")
    a(f"s_add_u32 s61, s61, {ST_OFF}")
    a("s_mov_b32 s56, 7")
    a("s_waitcnt lgkmcnt(0)")
    a(f"buffer_store_dwordx4 v[24:27], v42, {WS}, s57 offen {SC}")
    a("s_mov_b64 exec, 0xff")
    a(f"buffer_store_dwordx2 v[28:29], v3, {WS}, s61 offen {SC}")
    a("s_mov_b64 exec, -1")
    a.label(L1)
    a("s_waitcnt lgkmcnt(0)")
    a(f"buffer_store_dwordx4 v[20:23], v42, {WS}, s58 offen {SC}", tag='hs')
    lds_arrive(a, C_LNR, 44, 45)
    a(f"v_mov_b32 v44, s{TAG}")
    a(f"v_mov_b32 v45, s{TAG+1}")
    a("s_mov_b32 s61, s56")
    if hook: hook()
    a.wait(vm='hs')
    a("s_mov_b32 exec_lo, s61")
    a("s_mov_b32 exec_hi, 0")
    a(f"buffer_store_dwordx2 v[44:45], v54, {WS}, s59 offen {SC}")
    a("s_mov_b64 exec, -1")
    a.stamp(4)

def gen(name):
    a = Asm()
    a.raw(kernel_header(name))
    a("s_cmp_ge_u32 s2, 256")
    a("s_cbranch_scc1 KF_DONE")
    a("s_load_dwordx16 s[4:19], s[0:1], 0")
    a("s_load_dwordx8 s[20:27], s[0:1], 64")
    a("s_load_dwordx2 s[28:29], s[0:1], 104")
    if CODEPF:
        a("s_getpc_b64 s[44:45]")
        a("s_and_b32 s44, s44, 0xffffff00")
        a("s_and_b32 s45, s45, 0xffff")
        a(f"s_mov_b32 s46, CODE_END-{name}")
        a("s_mov_b32 s47, 0x00020000")
        a("s_lshr_b32 s48, s2, 3")
        a("s_lshl_b32 s48, s48, 10")
        a("v_lshrrev_b32 v1, 6, v0")
        a("v_and_b32 v2, 7, v0")
        a("v_lshlrev_b32 v2, 4, v2")
        a("v_lshl_add_u32 v1, v1, 7, v2")
        a("buffer_load_dwordx4 v[252:255], v1, s[44:47], s48 offen")
    a.stamp(0)
    a("v_lshrrev_b32 v1, 6, v0")
    a("v_and_b32 v2, 63, v0")
    a("v_readfirstlane_b32 s40, v1")
    a("s_cmp_lt_u32 s40, 4")
    a("s_cbranch_scc1 KF_GEMM")
    gen_aux_early(a)
    a("s_branch KF_AUX")
    a.label("KF_GEMM")
    a.reset_counts()
    gen_gemm(a)
    a.label("KF_AUX")
    a.reset_counts()
    gen_aux(a)
    a.label("KF_DONE")
    a("s_endpgm")
    a.raw("CODE_END:")
    return a.render(), kernel_desc(name, 256, 72)

def lds_arrive(a, cnt_off, va, vb):
    a(f"v_mov_b32 v{va}, {cnt_off}")
    a(f"v_mov_b32 v{vb}, 1")
    a("s_waitcnt lgkmcnt(0)")
    a("s_mov_b64 exec, 1")
    a(f"ds_add_u32 v{va}, v{vb}")
    a("s_mov_b64 exec, -1")

def lds_wait(a, cnt_off, va, vb, target, sleep=0):
    L = lbl("LW"); Lx = lbl("LWX")
    a(f"v_mov_b32 v{va}, {cnt_off}")
    a("s_mov_b32 s70, 0")
    a.label(L)
    a(f"ds_read_b32 v{vb}, v{va}")
    a("s_add_u32 s70, s70, 1")
    a("s_waitcnt lgkmcnt(0)")
    a(f"v_readfirstlane_b32 s71, v{vb}")
    a(f"s_cmp_gt_u32 s70, {SPIN_MAX*4}")
    a(f"s_cbranch_scc1 {Lx}")
    a(f"s_cmp_ge_u32 s71, {target}")
    a(f"s_cbranch_scc1 {Lx}")
    if sleep: a(f"s_sleep {sleep}")
    a(f"s_branch {L}")
    a.label(Lx)

def gen_gemm(a):
    a("s_setprio 2")
    VD, VT, VH, VL = 56, 60, 64, 68
    VT2 = VT
    ACC = 72
    WR = 152
    HS = [8, 24, 40, 136]
    WR2 = 176
    GS = [8, 28, 152]
    a("s_and_b32 s64, s2, 7")
    a("s_lshr_b32 s65, s2, 3")
    ln_addr_and_load(a)
    if not P1:
        a("s_mul_i32 s66, s65, 171")
        a("s_lshr_b32 s66, s66, 9")
        a("s_mul_i32 s67, s66, 3")
        a("s_sub_u32 s67, s65, s67")
        a("s_mul_i32 s68, s66, 1639")
        a("s_lshr_b32 s68, s68, 10")
        a("s_and_b32 s68, s68, 15")
        a("s_mul_i32 s69, s64, 3")
        a("s_add_u32 s67, s67, s69")
    else:
        a("s_mul_i32 s66, s65, 43")
        a("s_lshr_b32 s66, s66, 8")
        a("s_mul_i32 s67, s66, 6")
        a("s_sub_u32 s67, s65, s67")
        a("s_mul_i32 s68, s66, 3277")
        a("s_lshr_b32 s68, s68, 10")
        a("s_and_b32 s68, s68, 15")
        a("s_lshr_b32 s69, s64, 2")
        a("s_mul_i32 s69, s69, 5")
        a("s_add_u32 s66, s66, s69")
        a("s_and_b32 s69, s64, 3")
        a("s_mul_i32 s69, s69, 6")
        a("s_add_u32 s67, s67, s69")
    a(f"v_lshlrev_b32 v{VL}, 4, v2")
    a("v_bfe_u32 v69, v2, 1, 2")
    a("v_lshrrev_b32 v70, 4, v2")
    a("v_xor_b32 v69, v69, v70")
    a("v_lshlrev_b32 v69, 5, v69")
    a("v_and_b32 v70, 1, v2")
    a("v_lshl_add_u32 v69, v70, 4, v69")
    a("v_lshrrev_b32 v70, 3, v2")
    a("s_movk_i32 s56, 3072")
    a(f"v_mad_u32_u24 v{VD}, v70, s56, v69")
    for t in range(1, 4):
        a(f"v_add_u32 v{VD+t}, {t*(24576-1024)}, v{VD}")
    a(f"s_mul_i32 s44, s40, {512*3072}")
    a("s_lshl_b32 s56, s67, 7")
    a("s_add_u32 s44, s44, s56")
    a(f"s_mul_i32 s45, s40, {RING}")
    a("s_mov_b32 s46, s68")
    W1 = srd(a, 48, P_W1, S * F * 2)
    a("v_lshrrev_b32 v71, 2, v2")
    a("v_lshlrev_b32 v71, 7, v71")
    a("v_and_b32 v70, 3, v2")
    a("v_lshl_add_u32 v71, v70, 3, v71")
    a("v_add_u32 v71, s45, v71")
    a("v_bfe_u32 v70, v2, 3, 2")
    for phi in range(4):
        a(f"v_xor_b32 v13, {phi}, v70")
        a(f"v_lshl_add_u32 v{VT+phi}, v13, 5, v71")
    for i in range(4):
        a(f"s_add_u32 s56, s40, {i}")
        a("s_and_b32 s56, s56, 3")
        a("s_lshl_b32 s56, s56, 10")
        a(f"v_add_u32 v{VH+i}, s56, v{VL}")
    def dma1_parts(t):
        mod = NTW if t < FT1 else NTB
        def p0():
            if t >= NS: a.wait(lg=[('r', t - NS)])
            a(f"s_mul_i32 s47, s46, {32*3072}")
            a("s_add_u32 s47, s47, s44")
            a(f"s_add_u32 m0, s45, {(t % NS)*4096}")
            a("s_add_u32 s46, s46, 1")
            a("s_and_b32 s46, s46, 15")
        ps = [p0]
        for i in range(4):
            ps.append(lambda i=i: a(f"buffer_load_dwordx4 v{VD+i}, {W1}, s47 offen offset:{i*1024} {mod} lds", tag=('w', t)))
        return ps
    def dma1(t):
        for p in dma1_parts(t): p()
    def hook():
        for t in range(FT0): dma1(t)
    ln_compute_publish(a, hook)
    a("s_cmp_ge_u32 s2, 240")
    a("s_cbranch_scc1 KF_G2")
    def trread_parts(t):
        wb = WR + (t % NR1) * 16
        ps = []
        for phi in range(4):
            def p(phi=phi):
                if phi == 0: a.wait(vm=[('w', t)])
                a(f"ds_read_b64_tr_b16 {pr(wb+phi*4)}, v{VT+phi} offset:{(t % NS)*4096}", tag=('r', t))
                a(f"ds_read_b64_tr_b16 {pr(wb+phi*4+2)}, v{VT+phi} offset:{(t % NS)*4096+2048}", tag=('r', t))
            ps.append(p)
        return ps
    NK = 16
    st = {'dma': FT0, 'rd': 0}
    def next_dma(defer=None):
        t = st['dma']; st['dma'] += 1
        if defer is None: dma1(t)
        else: defer.extend(dma1_parts(t))
    def next_rd(defer=None):
        t = st['rd']; st['rd'] += 1
        ps = trread_parts(t)
        if defer is None:
            for p in ps: p()
        else: defer.extend(ps)
    while st['dma'] < FTA: next_dma()
    if FTGATE: lds_wait(a, C_FLG if FTGATE == 1 else C_KVD, 4, 5, 4, sleep=1)
    while st['dma'] < FT1: next_dma()
    a("s_lshl_b32 s57, s66, 6")
    a("s_lshl_b32 s56, s40, 4")
    a("s_add_u32 s57, s57, s56")
    a("s_lshl_b32 s57, s57, 12")
    a(f"s_add_u32 s57, s57, {HF_OFF}")
    a("s_lshl_b32 s58, s68, 12")
    a("s_lshl_b32 s59, s66, 8")
    a("s_lshl_b32 s56, s40, 6")
    a("s_add_u32 s59, s59, s56")
    a(f"s_mul_i32 s59, s59, {FAS}")
    a(f"s_add_u32 s59, s59, {FA_OFF}")
    B1 = srd(a, 52, P_B1, F * 2)
    a("v_lshrrev_b32 v3, 4, v2")
    a("v_lshlrev_b32 v3, 3, v3")
    a("s_lshl_b32 s56, s67, 7")
    BI = 248
    for phi in range(4):
        a(f"buffer_load_dwordx2 {pr(BI+2*phi)}, v3, {B1}, s56 offen offset:{phi*32}", tag='b')
    if FT1 and FTWAIT: a.wait(vm=[('w', FT1 - 1)])
    lds_arrive(a, C_FT, 4, 5)
    a.stamp(5)
    while st['dma'] < PRE1 - 2:
        while st['rd'] <= st['dma'] - NS + 1 and st['rd'] < NR1: next_rd()
        next_dma()
    a(f"v_lshlrev_b32 v7, {sh(FAS)}, v2")
    a(f"buffer_load_dwordx2 v[4:5], v7, {WS}, s59 offen {SC}", tag='fa')
    while st['dma'] < PRE1:
        while st['rd'] <= st['dma'] - NS + 1 and st['rd'] < NR1: next_rd()
        next_dma()
    while st['rd'] < min(LEADR, FT1): next_rd()
    a.wait(vm='fa')
    def fa_mask():
        a(f"v_cmp_ne_u64 vcc, s[{TAG}:{TAG+1}], v[4:5]")
        a("s_lshl_b32 s56, s68, 2")
        a("s_lshr_b64 s[62:63], vcc, s56")
        a("s_sub_u32 s56, 64, s56")
        a("s_lshl_b64 vcc, vcc, s56")
        a("s_or_b64 s[62:63], s[62:63], vcc")
    def fa_need(lo, hi):
        m = ((1 << (4 * hi)) - 1) & ~((1 << (4 * lo)) - 1)
        Lok = lbl("FAOK"); Lp = lbl("FAP")
        keep = list(a.vm)
        a("s_mov_b32 s70, 0")
        a.label(Lp)
        a(f"s_and_b32 s56, s62, {hex(m & 0xffffffff)}")
        a(f"s_and_b32 s71, s63, {hex(m >> 32)}")
        a("s_or_b32 s56, s56, s71")
        a(f"s_cbranch_scc0 {Lok}")
        a("s_add_u32 s70, s70, 1")
        a(f"s_cmp_gt_u32 s70, {SPIN_MAX}")
        a(f"s_cbranch_scc1 {Lok}")
        a("s_sleep 2")
        a(f"buffer_load_dwordx2 v[4:5], v7, {WS}, s59 offen {SC}")
        a("s_waitcnt vmcnt(0)")
        fa_mask()
        a(f"s_branch {Lp}")
        a.label(Lok)
        a.vm = keep
    fa_mask()
    fa_need(0, 4 if PROG else 16)
    a.stamp(6)
    def hload(t, i):
        if i == 0: a("s_add_u32 s61, s57, s58")
        a(f"buffer_load_dwordx4 {q4(HS[t % NH]+i*4)}, v{VH+i}, {WS}, s61 offen {SCL}", tag=('h', t))
        if i == 3:
            a("s_add_u32 s58, s58, 4096")
            a("s_and_b32 s58, s58, 0xffff")
    for t in range(NH):
        for i in range(4): hload(t, i)
        if st['dma'] < min(NK, LEADD, st['rd'] + NS): next_dma()
    while st['rd'] < min(LEADR, st['dma']): next_rd()
    def w2_setup():
        if not P2:
            a("s_lshr_b32 s62, s65, 2")
            a("s_and_b32 s63, s65, 3")
            a("s_lshl_b32 s56, s64, 2")
            a("s_add_u32 s63, s63, s56")
        else:
            a("s_lshr_b32 s62, s65, 3")
            a("s_and_b32 s56, s64, 4")
            a("s_add_u32 s62, s62, s56")
            a("s_and_b32 s63, s65, 7")
            a("s_and_b32 s56, s64, 3")
            a("s_lshl_b32 s56, s56, 3")
            a("s_add_u32 s63, s63, s56")
        a("v_lshrrev_b32 v7, 3, v2")
        a(f"v_lshl_add_u32 v{VD}, v7, 12, v69")
        for t in range(1, 4):
            a(f"v_add_u32 v{VD+t}, {t*(32768-1024)}, v{VD}")
        a(f"s_mul_i32 s44, s40, {384*4096}")
        a("s_lshl_b32 s56, s63, 7")
        a("s_add_u32 s44, s44, s56")
        if ROT:
            a("s_and_b32 s46, s65, 3")
            a("s_mul_i32 s46, s46, 3")
            a("s_mul_i32 s56, s62, 3")
            a("s_lshr_b32 s56, s56, 1")
            a("s_add_u32 s46, s46, s56")
            a("s_cmp_ge_u32 s46, 12")
            a("s_cselect_b32 s56, 12, 0")
            a("s_sub_u32 s46, s46, s56")
        else:
            a("s_mov_b32 s46, 0")
        a("s_mov_b32 s68, s46")
        srd(a, 48, P_W2, S * F * 2)
        for si in range(4):
            a(f"s_add_u32 s56, s40, {si}")
            a("s_and_b32 s56, s56, 3")
            a("v_xor_b32 v7, s56, v70")
            a(f"v_lshl_add_u32 v{VT+si}, v7, 5, v71")
    W2 = "s[48:51]"
    SL2 = [3, 4, 5, 3, 4, 5, 3, 4, 0, 1, 5, 3]
    def trread2_parts(t):
        wb = WR2 + (t % NR2) * 16
        so = SL2[t] * 4096
        ps = []
        for si in range(4):
            def p(si=si):
                if si == 0: a.wait(vm=[('w2', t)])
                a(f"ds_read_b64_tr_b16 {pr(wb+si*4)}, v{VT2+si} offset:{so}", tag=('r2', t))
                a(f"ds_read_b64_tr_b16 {pr(wb+si*4+2)}, v{VT2+si} offset:{so+2048}", tag=('r2', t))
            ps.append(p)
        return ps
    def trread2(t):
        for p in trread2_parts(t): p()
    def dma2_parts(t, pre=None):
        def p0():
            if pre: pre()
            a(f"s_lshl_b32 s47, s46, 17")
            a("s_add_u32 s47, s47, s44")
            a(f"s_add_u32 m0, s45, {SL2[t]*4096}")
            a("s_add_u32 s46, s46, 1")
        ps = [p0]
        for i in range(4):
            ps.append(lambda i=i: a(f"buffer_load_dwordx4 v{VD+i}, {W2}, s47 offen offset:{i*1024} {NTB} lds", tag=('w2', t)))
        return ps
    def dma2(t):
        for p in dma2_parts(t): p()
    W2T0 = E('W2T0', 11)
    a(f"v_mov_b32 v3, {C_HIS}")
    a("v_mov_b32 v6, 1")
    def prog():
        a("s_mov_b64 exec, 1")
        a("ds_add_u32 v3, v6")
        a("s_mov_b64 exec, -1")
    for t in range(NK):
        wb = WR + (t % NR1) * 16
        hb = HS[t % NH]
        fill = []
        if st['dma'] < min(NK, st['rd'] + NS): next_dma(fill)
        if st['rd'] < NK and st['rd'] <= t - 1 + NR1: next_rd(fill)
        fill.append(prog)
        if t == W2T0:
            assert st['rd'] == NK and st['dma'] == NK, st
            fill.append(lambda: (a.wait(lg=[('r', NK - 1)]), w2_setup()))
        if W2T0 < t <= W2T0 + 3: fill.extend(dma2_parts(t - W2T0 - 1))
        if PROG and t % 4 == 0 and t + NH < NK: fa_need(t + NH, t + NH + 4)
        a.wait(vm=[('h', t)], lg=[('r', t)])
        last = EARLYW and t == NK - 1
        if last: a(f"v_add_u32 v4, s45, v{VL}")
        order = [1, 2, 3, 0] if last else [0, 1, 2, 3]
        for oi, di in enumerate(order):
            for phi in range(4):
                c = ACC + (phi * 4 + di) * 4
                src = "0" if t == 0 else q4(c)
                if not XNOMFMA or phi == 0: a(f"v_mfma_f32_16x16x32_bf16 {q4(c)}, {q4(wb+phi*4)}, {q4(hb+di*4)}, {src}")
                if last and oi >= 2:
                    dj = order[oi - 2]
                    a(f"ds_write_b128 v4, {q4(ACC+(phi*4+dj)*4)} offset:{(dj-1)*4096+phi*1024}")
                elif phi < 3 and fill: fill.pop(0)()
            if t + NH < NK: hload(t + NH, di)
        while fill: fill.pop(0)()
        if t == 5: a.stamp(7)
    a.stamp(8)
    if not EARLYW: a(f"v_add_u32 v4, s45, v{VL}")
    for di in range(3 if EARLYW else 1, 4):
        for phi in range(4):
            a(f"ds_write_b128 v4, {q4(ACC+(phi*4+di)*4)} offset:{(di-1)*4096+phi*1024}")
    for di in range(1, 4):
        a(f"s_sub_u32 s56, s40, {di}")
        a("s_and_b32 s56, s56, 3")
        a(f"s_mul_i32 s56, s56, {RING}")
        a(f"v_add_u32 v{4+di}, s56, v{VL}")
    a("s_lshl_b32 s56, s66, 2")
    a("s_add_u32 s56, s56, s40")
    a("s_mul_i32 s57, s56, 205")
    a("s_lshr_b32 s57, s57, 10")
    a("s_mul_i32 s58, s57, 5")
    a("s_sub_u32 s58, s56, s58")
    a("s_mul_i32 s57, s57, 48")
    a("s_lshl_b32 s59, s67, 1")
    a("s_add_u32 s57, s57, s59")
    a("s_mul_i32 s57, s57, 5")
    a("s_add_u32 s57, s57, s58")
    a("s_lshl_b32 s57, s57, 10")
    a(f"s_add_u32 s57, s57, {GF_OFF}")
    a("s_add_u32 s58, s57, 5120")
    a("s_mul_i32 s59, s56, 24")
    a("s_add_u32 s59, s59, s67")
    a(f"s_mul_i32 s59, s59, {FGS}")
    a(f"s_add_u32 s59, s59, {FG_OFF}")
    a(f"s_mov_b32 s60, {f2u(GELU_K1):#x}")
    BF, RB, SUM, OUT, TM, K0, ONE = 136, 8, 152, 168, ACC + 4, ACC + 12, ACC + 13
    a.wait(vm='b')
    unpack(a, BF, BI, 8)
    if not EXACT:
        for phi in range(4):
            for h in range(2):
                c = ACC + (phi * 4) * 4 + 2 * h
                a(f"v_pk_add_f32 {pr(c)}, {pr(c)}, {pr(BF+phi*4+2*h)}")
    lds_arrive(a, C_RED, 3, 4)
    for u in range(3): trread2(u)
    lds_wait(a, C_RED, 3, 4, 4)
    for di in range(1, 4):
        for phi in range(4):
            a(f"ds_read_b128 {q4(RB+((di-1)*4+phi)*4)}, v{4+di} offset:{(di-1)*4096+phi*1024}", tag=('p', di))
    for u in range(3, 6): dma2(u)
    a(f"v_mov_b32 v{K0}, {f2u(GELU_K0):#x}")
    for di in range(1, 4):
        a.wait(lg=[('p', di)])
        for phi in range(4):
            for h in range(2):
                s0 = ACC + (phi * 4) * 4 + 2 * h if di == 1 else SUM + phi * 4 + 2 * h
                a(f"v_pk_add_f32 {pr(SUM+phi*4+2*h)}, {pr(s0)}, {pr(RB+((di-1)*4+phi)*4+2*h)}")
    lds_arrive(a, C_RD, 3, ONE)
    n = 16
    if EXACT:
        round_bf16(a, SUM, 8, TM)
        for i in range(0, n, 2): a(f"v_pk_add_f32 {pr(SUM+i)}, {pr(SUM+i)}, {pr(BF+i)}")
        round_bf16(a, SUM, 8, TM)
    for half in range(2):
        R8 = range(8 * half, 8 * half + 8)
        for i in R8[::2]: a(f"v_pk_mul_f32 {pr(BF+i)}, {pr(SUM+i)}, {pr(SUM+i)}")
        for i in R8: a(f"v_fma_f32 v{BF+i}, v{BF+i}, s60, v{K0}")
        for i in R8[::2]: a(f"v_pk_mul_f32 {pr(BF+i)}, {pr(BF+i)}, {pr(SUM+i)}")
        for i in R8: a(f"v_exp_f32 v{BF+i}, v{BF+i}")
        for i in R8: a(f"v_add_f32 v{BF+i}, 1.0, v{BF+i}")
        for i in R8: a(f"v_rcp_f32 v{BF+i}, v{BF+i}")
        for i in R8[::2]: a(f"v_pk_mul_f32 {pr(SUM+i)}, {pr(SUM+i)}, {pr(BF+i)}")
        pack(a, OUT + 4 * half, SUM + 8 * half, 4)
        a(f"buffer_store_dwordx4 {q4(OUT+4*half)}, v{VL}, {WS}, s{57+half} offen {SC}", tag='gs')
    a(f"v_mov_b32 v3, {C_FGD}")
    a("v_mov_b32 v4, 1")
    a("s_mov_b64 exec, 1")
    a("ds_add_u32 v3, v4")
    a("s_mov_b64 exec, -1")
    for u in (3, 4): trread2(u)
    a.wait(vm='gs')
    set_flag(a, 59, 4, FGS)
    lds_arrive(a, C_FGF, 3, 7)
    a.stamp(9)
    keep = []
    a("s_or_b32 s56, s2, s40")
    a("s_cmp_lg_u32 s56, 0")
    a("s_cbranch_scc1 KF_NOEP")
    a(f"s_mov_b32 s56, {EP_OFF}")
    set_flag(a, 56, 4)
    a.label("KF_NOEP")
    lds_wait(a, C_FGF if E('GW', 1) else C_RD, 3, 4, 4)
    a("s_branch KF_G2B")
    a.label("KF_G2")
    w2_setup()
    lds_arrive(a, C_RED, 3, 4)
    a(f"v_mov_b32 v3, {C_HIS}")
    a("v_mov_b32 v4, 12")
    a("s_mov_b64 exec, 1")
    a("ds_add_u32 v3, v4")
    a("s_mov_b64 exec, -1")
    lds_arrive(a, C_FT, 3, 4)
    lds_arrive(a, C_FGD, 3, 4)
    lds_arrive(a, C_FGF, 3, 4)
    a("s_waitcnt vmcnt(0)")
    lds_arrive(a, C_RD, 3, 4)
    if FTGATE: lds_wait(a, C_FLG, 4, 5, 4, sleep=1)
    if not P2:
        a("v_lshrrev_b32 v3, 5, v2")
        a("v_lshlrev_b32 v3, 12, v3")
        a("v_and_b32 v4, 31, v2")
        a("v_lshl_add_u32 v3, v4, 4, v3")
    else:
        a(f"v_mov_b32 v3, v{VL}")
    a(f"s_mul_i32 s57, s40, {384*4096}")
    a("s_and_b32 s56, s65, 1")
    a(f"s_lshl_b32 s56, s56, {16 if P2 else 17}")
    a("s_add_u32 s57, s57, s56")
    if P2:
        a("s_and_b32 s56, s64, 3")
        a("s_lshl_b32 s56, s56, 10")
    else: a("s_lshl_b32 s56, s64, 9")
    a("s_add_u32 s57, s57, s56")
    a("s_mov_b32 s58, 0")
    a.label("KF_PF")
    for k in range(16):
        a(f"buffer_load_dwordx4 {q4(ACC+4*k)}, v3, {W2}, s57 offen {PFMOD}")
        a(f"s_add_u32 s57, s57, {(1 if P2 else 2)*4096}")
        a("s_waitcnt vmcnt(8)")
    a(f"s_add_u32 s57, s57, {(16 if P2 else 32)*4096}")
    a("s_add_u32 s58, s58, 1")
    a(f"s_cmp_lt_u32 s58, {PFSTEPS if P2 else PFSTEPS//2}")
    a("s_cbranch_scc1 KF_PF")
    for i in range(5, 10): a.stamp(i)
    a.reset_counts()
    for u in range(3): dma2(u)
    for u in range(3): trread2(u)
    a("s_waitcnt lgkmcnt(0)")
    for u in range(3, 6): dma2(u)
    for u in (3, 4): trread2(u)
    a("s_waitcnt vmcnt(0) lgkmcnt(0)")
    a.label("KF_G2B")
    NK = 12
    for u in range(6, W2PRE): dma2(u)
    a("s_mul_i32 s57, s62, 48")
    a("s_mul_i32 s56, s40, 12")
    a("s_add_u32 s57, s57, s56")
    a("s_mul_i32 s57, s57, 5120")
    a(f"s_add_u32 s57, s57, {GF_OFF}")
    a(f"v_add_u32 v{VH}, 4096, v{VL}")
    a("v_mul_u32_u24 v3, 43, v2")
    a("v_lshrrev_b32 v3, 8, v3")
    a("v_mul_u32_u24 v3, 18, v3")
    a("v_add_u32 v3, v3, v2")
    a(f"v_lshlrev_b32 v3, {FGS.bit_length()-1}, v3")
    a("s_mul_i32 s41, s62, 120")
    a("s_mul_i32 s56, s40, 6")
    a("s_add_u32 s41, s41, s56")
    a(f"s_mul_i32 s41, s41, {FGS}")
    a(f"s_add_u32 s41, s41, {FG_OFF}")
    a("s_mov_b32 s42, -1")
    a.stamp(10)
    def fg_need(ps, first=False):
        m = 0
        for p in ps:
            for i5 in range(5): m |= 1 << (6 * i5 + p)
        Lok = lbl("FGOK"); Lp = lbl("FGP")
        keep = list(a.vm)
        a("s_mov_b32 s70, 0")
        a.label(Lp)
        a(f"s_and_b32 s56, s42, {hex(m)}")
        a(f"s_cbranch_scc0 {Lok}")
        a("s_add_u32 s70, s70, 1")
        a(f"s_cmp_gt_u32 s70, {SPIN_MAX}")
        a(f"s_cbranch_scc1 {Lok}")
        if FGSL:
            a("s_cmp_eq_u32 s70, 1")
            a(f"s_cbranch_scc1 {Lp}_n")
            a(f"s_sleep {FGSL}")
            a.label(f"{Lp}_n")
        set_exec(a, 30)
        a(f"buffer_load_dwordx2 v[4:5], v3, {WS}, s41 offen {SC}")
        a("s_waitcnt vmcnt(0)")
        a(f"v_cmp_ne_u64 vcc, s[{TAG}:{TAG+1}], v[4:5]")
        a("s_mov_b64 exec, -1")
        a("s_mov_b32 s42, vcc_lo")
        a(f"s_branch {Lp}")
        a.label(Lok)
        a.vm = [] if first else keep
    fg_need([0, 1] if PROG else range(6), first=True)
    a.lg = []
    a.stamp(11)
    def gload(t, i):
        gb = GS[t % NG]
        if i < 4: a(f"buffer_load_dwordx4 {q4(gb+i*4)}, v{VL}, {WS}, s57 offen offset:{i*1024} {SCL}", tag=('g', t))
        else:
            a(f"buffer_load_dwordx4 {q4(gb+16)}, v{VH}, {WS}, s57 offen {SCL}", tag=('g', t))
            a("s_add_u32 s57, s57, 5120")
    for t in range(NG):
        for i in range(5): gload(t, i)
    B2 = srd(a, 52, P_B2, S * 2)
    a(f"v_and_b32 v6, 15, v2")
    a(f"v_lshrrev_b32 v7, 4, v2")
    a("s_movk_i32 s56, 1280")
    a(f"v_mul_u32_u24 v{VH+1}, s56, v6")
    a(f"v_lshl_add_u32 v{VH+1}, v7, 3, v{VH+1}")
    a(f"v_lshlrev_b32 v{VH+2}, 1, v6")
    a(f"v_mul_u32_u24 v{VH+3}, s56, v6")
    a("v_and_b32 v6, 1, v7")
    a(f"v_lshl_add_u32 v{VH+3}, v6, 5, v{VH+3}")
    a("v_lshrrev_b32 v6, 1, v7")
    a(f"v_lshl_add_u32 v{VH+3}, v6, 4, v{VH+3}")
    a("s_lshl_b32 s60, s63, 6")
    a("s_lshl_b32 s56, s40, 4")
    a("s_add_u32 s60, s60, s56")
    a("s_mul_i32 s61, s60, 1280")
    a("s_mul_i32 s56, s62, 160")
    a("s_add_u32 s61, s61, s56")
    B2V = 174
    a("s_lshl_b32 s56, s60, 1")
    a(f"buffer_load_ushort v{B2V}, v{VH+2}, {B2}, s56 offen", tag='x')
    a(f"v_mov_b32 v6, {C_P2}")
    a("v_mov_b32 v7, 1")
    def prog2():
        a("s_mov_b64 exec, 1")
        a("ds_add_u32 v6, v7")
        a("s_mov_b64 exec, -1")
    def red_off(si, i5):
        k = (si - 1) * 5 + i5
        return (k if k < 8 else k + 4) * 1024
    nd = [W2PRE]
    for t in range(NK):
        wb = WR2 + (t % NR2) * 16
        gb = GS[t % NG]
        if PROG and (t + NG) % 2 == 0 and t + NG < NK and t + NG >= 4: fg_need([(t + NG) // 2])
        fill = []
        u = nd[0]
        if u < NK and (u < 10 or t >= u - 8):
            if u >= 10:
                assert SL2[u] == SL2[u - NS2]
                fill.extend(dma2_parts(u, pre=lambda u=u: a.wait(lg=[('r2', u - NS2)])))
            else: fill.extend(dma2_parts(u))
            nd[0] += 1
        if t >= 1 and t - 1 + NR2 < NK:
            assert t - 1 + NR2 < nd[0]
            fill.extend(trread2_parts(t - 1 + NR2))
        if t == ZT: fill.append(prog2)
        a.wait(vm=[('g', t)], lg=[('r2', t)])
        last = EARLYW and t == NK - 1
        if last: a(f"v_add_u32 v4, s45, v{VL}")
        for i5 in range(5):
            for si in range(4):
                c = ACC + (i5 * 4 + si) * 4
                src = "0" if t == 0 else q4(c)
                if not XNOMFMA or si == 0: a(f"v_mfma_f32_16x16x32_bf16 {q4(c)}, {q4(gb+i5*4)}, {q4(wb+si*4)}, {src}")
                if last and i5 >= 2 and si >= 1:
                    a(f"ds_write_b128 v4, {q4(ACC+((i5-2)*4+si)*4)} offset:{red_off(si, i5-2)}")
                elif si < 3 and fill: fill.pop(0)()
            if t + NG < NK: gload(t + NG, i5)
        while fill: fill.pop(0)()
        if t == 3: a.stamp(12)
    a.stamp(13)
    if not EARLYW: a(f"v_add_u32 v4, s45, v{VL}")
    for i5 in range(3 if EARLYW else 0, 5):
        for si in range(1, 4):
            a(f"ds_write_b128 v4, {q4(ACC+(i5*4+si)*4)} offset:{red_off(si, i5)}")
    YF, TP, ER, EF = 176, 216, 226, 8
    for si in range(1, 4):
        a(f"s_sub_u32 s56, s40, {si}")
        a("s_and_b32 s56, s56, 3")
        a(f"s_mul_i32 s56, s56, {RING}")
        a(f"v_add_u32 v{48+si}, s56, v{VL}")
    a("v_lshlrev_b32 v48, 3, v2")
    a("v_add_u32 v48, s45, v48")
    a(f"v_lshlrev_b32 v{B2V}, 16, v{B2V}")
    OUTS = srd(a, 52, P_OUT, XBYTES)
    lds_arrive(a, C_E, 3, 5)
    lds_wait(a, C_E, 3, 5, 8)
    for i5 in range(5):
        a(f"ds_read_b64 {pr(ER+2*i5)}, v48 offset:{8192+i5*512}", tag='e')
    for si in range(1, 4):
        for i5 in range(5):
            a(f"ds_read_b128 {q4(ACC+(i5*4+si)*4)}, v{48+si} offset:{red_off(si, i5)}", tag=('p', si))
    a.wait(lg='e')
    unpack(a, EF, ER, 10)
    if not EXACT:
        for i in range(10): a(f"v_pk_add_f32 {pr(EF+2*i)}, {pr(EF+2*i)}, {pr(B2V)} op_sel_hi:[1,0]")
        for i5 in range(5):
            for h in range(2):
                c = ACC + (i5 * 4) * 4 + 2 * h
                a(f"v_pk_add_f32 {pr(c)}, {pr(c)}, {pr(EF+4*i5+2*h)}")
    for si in range(1, 4):
        a.wait(lg=[('p', si)])
        for i5 in range(5):
            for h in range(2):
                c = ACC + (i5 * 4) * 4 + 2 * h
                a(f"v_pk_add_f32 {pr(c)}, {pr(c)}, {pr(c+4*si)}")
    for i5 in range(5):
        for h in range(2):
            c = ACC + (i5 * 4) * 4 + 2 * h
            a(f"v_cvt_pk_bf16_f32 v{TP+2*i5+h}, v{c}, v{c+1}")
        if EXACT:
            unpack(a, YF + 4 * i5, TP + 2 * i5, 2)
            for h in range(2): a(f"v_pk_add_f32 {pr(YF+4*i5+2*h)}, {pr(YF+4*i5+2*h)}, {pr(B2V)} op_sel_hi:[1,0]")
            round_bf16(a, YF + 4 * i5, 2, TP + 2 * i5)
            for h in range(2): a(f"v_pk_add_f32 {pr(YF+4*i5+2*h)}, {pr(YF+4*i5+2*h)}, {pr(EF+4*i5+2*h)}")
            pack(a, TP + 2 * i5, YF + 4 * i5, 2)
        if not OWIDE or i5 == 4:
            a(f"buffer_store_dwordx2 {pr(TP+2*i5)}, v{VH+1}, {OUTS}, s61 offen offset:{32*i5} {OUTMOD}")
        elif i5 & 1:
            o = TP + 2 * (i5 - 1)
            a(f"v_permlane16_swap_b32 v{o}, v{o+2}")
            a(f"v_permlane16_swap_b32 v{o+1}, v{o+3}")
            a(f"buffer_store_dwordx4 {q4(o)}, v{VH+3}, {OUTS}, s61 offen offset:{32*(i5-1)} {OUTMOD}")
    a.flush_stamps(0, 14, vt=250, ws=P_WS)
    a("s_endpgm")

XG = C_FGF if E('XGF', 1) else C_FGD
XFA, XNA = 192, 212
XRAW = 242
def aux_ids(a):
    a("s_lshr_b32 s56, s2, 3")
    a("s_lshr_b32 s65, s56, 2")
    a("s_and_b32 s66, s56, 3")
    a("s_and_b32 s56, s2, 7")
    a("s_lshl_b32 s56, s56, 2")
    a("s_add_u32 s66, s66, s56")
    a("s_lshl_b32 s68, s66, 6")
    a("s_lshl_b32 s56, s64, 4")
    a("s_add_u32 s68, s68, s56")
    a(f"s_mul_i32 s67, s64, {RING}")

def aux_p0(a, base=None):
    aux_ids(a)
    if base is None: a(f"s_add_u32 s63, s67, {2*4096}")
    else: a(f"s_mov_b32 s63, {base}")
    a("s_mul_i32 s69, s68, 1280")
    a("s_mul_i32 s56, s65, 160")
    a("s_add_u32 s69, s69, s56")
    XS = srd(a, 48, P_Q, XBYTES)
    a("s_movk_i32 s56, 1280")
    for k in range(3):
        a(f"v_add_u32 v232, {64*k}, v2")
        a("v_mul_u32_u24 v233, 205, v232")
        a("v_lshrrev_b32 v233, 11, v233")
        a("v_mul_u32_u24 v234, 10, v233")
        a("v_sub_u32 v234, v232, v234")
        a("v_lshlrev_b32 v234, 4, v234")
        a(f"v_mad_u32_u24 v236, v233, s56, v234")
        a(f"s_add_u32 m0, s63, {k*1024}")
        if k == 2: set_exec(a, 32)
        a(f"buffer_load_dwordx4 v236, {XS}, s69 offen {NT} lds")
        if k == 2: a("s_mov_b64 exec, -1")
    a("v_and_b32 v232, 15, v2")
    a("s_movk_i32 s56, 160")
    a("v_mul_u32_u24 v240, s56, v232")
    a("v_lshrrev_b32 v233, 4, v2")
    a("v_lshl_add_u32 v240, v233, 3, v240")
    a("v_add_u32 v240, s63, v240")

def aux_p0b(a):
    for i5 in range(5):
        a(f"ds_read_b64 {pr(XRAW+2*i5)}, v240 offset:{32*i5}")

def aux_stats_addr(a):
    a("v_and_b32 v232, 15, v2")
    a("v_lshrrev_b32 v233, 2, v232")
    a("v_lshlrev_b32 v233, 6, v233")
    a("v_and_b32 v234, 3, v232")
    a("v_lshl_add_u32 v239, v234, 3, v233")
def aux_stats_load(a):
    a("s_lshr_b32 s59, s68, 5")
    a("s_lshl_b32 s59, s59, 8")
    a("s_and_b32 s56, s68, 16")
    a("s_lshl_b32 s56, s56, 1")
    a("s_add_u32 s59, s59, s56")
    a(f"s_add_u32 s59, s59, {ST_OFF}")
    a(f"buffer_load_dwordx2 v[232:233], v239, {WS}, s59 offen {SC}")
def aux_xn(a):
    unpack(a, XFA, XRAW, 10)
    for i in range(20): a(f"v_sub_f32 v{XNA+i}, v{XFA+i}, v232")
    round_bf16(a, XNA, 10, XRAW)
    for i in range(20): a(f"v_mul_f32 v{XNA+i}, v{XNA+i}, v233")
    round_bf16(a, XNA, 10, XRAW)
def aux_p1(a):
    aux_stats_addr(a)
    a("s_lshr_b32 s59, s68, 5")
    a(f"s_mul_i32 s59, s59, {4*FAS}")
    a(f"s_add_u32 s59, s59, {FA_OFF}")
    a(f"v_lshlrev_b32 v235, {sh(FAS)}, v2")
    poll(a, 235, 59, 232, 4, sleep=4)
    aux_stats_load(a)
    a("s_waitcnt vmcnt(0)")
    aux_xn(a)

def aux_p2(a):
    a("v_bfe_u32 v32, v2, 1, 2")
    a("v_lshrrev_b32 v33, 4, v2")
    a("v_xor_b32 v32, v32, v33")
    a("v_lshlrev_b32 v32, 5, v32")
    a("v_and_b32 v33, 1, v2")
    a("v_lshl_add_u32 v32, v33, 4, v32")
    a("v_lshrrev_b32 v33, 3, v2")
    a("v_lshl_add_u32 v32, v33, 12, v32")
    a("s_mul_i32 s57, s65, 80")
    a("s_mul_i32 s56, s64, 24")
    a("s_add_u32 s57, s57, s56")
    a(f"s_mul_i32 s59, s57, {FZS}")
    a(f"s_add_u32 s59, s59, {FZ_OFF}")
    a("s_lshl_b32 s57, s57, 12")
    a("s_lshl_b32 s56, s66, 7")
    a("s_add_u32 s57, s57, s56")
    a(f"s_add_u32 s57, s57, {Z_OFF}")
    a(f"s_mul_i32 s58, s64, {KB_CH}")
    a(f"s_add_u32 s58, s58, {L_K+128}")
    a("v_bfe_u32 v34, v2, 3, 2")
    a("v_xor_b32 v34, s64, v34")
    a("v_lshlrev_b32 v34, 5, v34")
    a("v_and_b32 v35, 3, v2")
    a("v_lshl_add_u32 v34, v35, 3, v34")
    a(f"v_add_u32 v34, {L_K+128}, v34")
    a("v_lshrrev_b32 v35, 2, v2")
    a(f"s_movk_i32 s56, {KB_CH - 24*128}")
    for i5 in range(5):
        a(f"v_add_u32 v36, {16*i5}, v35")
        a("v_mul_u32_u24 v37, 43, v36")
        a("v_lshrrev_b32 v37, 10, v37")
        a("v_lshl_add_u32 v36, v36, 7, v34")
        a(f"v_mad_u32_u24 v{40+i5}, v37, s56, v36")
    a("v_lshlrev_b32 v38, 3, v2")
    a("v_add_u32 v38, s67, v38")
    lds_wait(a, C_RD, 5, 6, 4, sleep=8)
    lds_wait(a, C_P2, 5, 6, 1, sleep=8)
    L8 = lbl("Z8"); Lj = lbl("ZJ")
    a(f"v_lshlrev_b32 v39, {sh(FZS)}, v2")
    a("s_cmp_eq_u32 s64, 3")
    a(f"s_cbranch_scc1 {L8}")
    poll(a, 39, 59, 46, 24, sleep=4)
    for k in range(3):
        a(f"s_add_u32 m0, s58, {k*1024}")
        a(f"buffer_load_dwordx4 v32, {WS}, s57 offen {SC} lds")
        a(f"s_add_u32 s57, s57, {8*4096}")
    a(f"s_branch {Lj}")
    a.label(L8)
    poll(a, 39, 59, 46, 8, sleep=4)
    a("s_mov_b32 m0, s58")
    a(f"buffer_load_dwordx4 v32, {WS}, s57 offen {SC} lds")
    a.label(Lj)
    a("s_waitcnt vmcnt(0)")
    lds_arrive(a, C_ZL, 5, 6)
    lds_wait(a, C_ZL, 5, 6, 4, sleep=1)
    for i5 in range(5):
        a(f"ds_read_b64_tr_b16 {pr(48+2*i5)}, v{40+i5}")
    a("s_waitcnt lgkmcnt(0)")
    unpack(a, 64, 48, 10)
    if EXACT:
        for i in range(20): a(f"v_mul_f32 v{64+i}, v{64+i}, v{XNA+i}")
        round_bf16(a, 64, 10, 48)
        for i in range(20): a(f"v_add_f32 v{64+i}, v{64+i}, v{XFA+i}")
    else:
        for i in range(20): a(f"v_fma_f32 v{64+i}, v{64+i}, v{XNA+i}, v{XFA+i}")
    pack(a, 48, 64, 10)
    for i5 in range(5):
        a(f"ds_write_b64 v38, {pr(48+2*i5)} offset:{8192+i5*512}")
    lds_arrive(a, C_E, 5, 6)

def gen_aux_early(a):
    a("s_setprio 3")
    a("s_sub_u32 s64, s40, 4")
    a("s_and_b32 s66, s2, 7")
    a("s_lshl_b32 s66, s66, 2")
    a("s_lshr_b32 s67, s2, 3")
    a("s_and_b32 s56, s67, 3")
    a("s_add_u32 s66, s66, s56")
    a("s_lshr_b32 s67, s67, 2")
    a("s_mul_i32 s68, s66, 81920")
    a("s_mul_i32 s56, s67, 160")
    a("s_add_u32 s68, s68, s56")
    a("s_mul_i32 s56, s64, 2560")
    a("s_add_u32 s68, s68, s56")
    a("s_movk_i32 s59, 10240-160")
    a("v_mul_u32_u24 v40, 205, v2")
    a("v_lshrrev_b32 v40, 11, v40")
    a("v_lshlrev_b32 v3, 4, v2")
    a("v_mad_u32_u24 v40, v40, s59, v3")
    a("v_add_u32 v42, 64, v2")
    a("v_mul_u32_u24 v41, 205, v42")
    a("v_lshrrev_b32 v41, 11, v41")
    a("v_lshlrev_b32 v42, 4, v42")
    a("v_mad_u32_u24 v41, v41, s59, v42")
    a("s_sub_u32 s58, s68, 3840")
    a("v_add_u32 v42, s58, v40")
    a("v_add_u32 v43, s58, v41")
    a("v_add_u32 v44, 1280, v42")
    a("v_add_u32 v45, 1280, v43")
    a("s_mul_i32 s57, s64, 2880")
    a("s_mul_i32 s60, s64, 2560")
    a("s_mov_b32 s56, 0xffff")
    a("s_cmp_lt_u32 s64, 2")
    a("s_cselect_b32 s61, 0x3ffffff, s56")
    a("s_cmp_lt_u32 s64, 1")
    a("s_cselect_b32 s63, 0x3ffffff, s56")
    common_entry(a)
    KS = srd(a, 44, P_K, XBYTES)
    VS = srd(a, 48, P_V, XBYTES)
    a("s_barrier")
    a.stamp(1)
    a(f"s_add_u32 m0, s57, {L_KS}")
    a(f"buffer_load_dwordx4 v42, {KS}, 0 offen {NT} lds")
    a(f"s_add_u32 m0, s57, {L_KS+1440}")
    a(f"buffer_load_dwordx4 v44, {KS}, 0 offen {NT} lds")
    a(f"s_add_u32 m0, s60, {L_VS}")
    a(f"buffer_load_dwordx4 v40, {VS}, s68 offen {NT} lds")
    a(f"buffer_load_dwordx4 v40, {VS}, s68 offen offset:1280 {NT} lds")
    a("s_mov_b32 exec_hi, 0")
    a("s_mov_b32 exec_lo, s61")
    a(f"s_add_u32 m0, s57, {L_KS+1024}")
    a(f"buffer_load_dwordx4 v43, {KS}, 0 offen {NT} lds")
    a("s_mov_b32 exec_lo, s63")
    a(f"s_add_u32 m0, s57, {L_KS+1440+1024}")
    a(f"buffer_load_dwordx4 v45, {KS}, 0 offen {NT} lds")
    a("s_mov_b32 exec_lo, 0xffff")
    a(f"s_add_u32 m0, s60, {L_VS+1024}")
    a(f"buffer_load_dwordx4 v41, {VS}, s68 offen {NT} lds")
    a(f"buffer_load_dwordx4 v41, {VS}, s68 offen offset:1280 {NT} lds")
    a("s_mov_b64 exec, -1")

def gen_aux(a):
    a("s_lshl_b32 s67, s67, 2")
    a("s_add_u32 s67, s67, s64")
    a("v_mul_u32_u24 v56, 52, v2")
    a("v_lshrrev_b32 v56, 8, v56")
    a("v_mul_u32_u24 v57, 5, v56")
    a("v_sub_u32 v57, v2, v57")
    a("v_lshlrev_b32 v61, 5, v57")
    a("s_mul_i32 s69, s67, 160")
    KR, VR, SK = 64, 86, 102
    SKS = srd(a, 52, P_SK, D * 8)
    a(f"buffer_load_dwordx4 {q4(SK)}, v61, {SKS}, s69 offen")
    a(f"buffer_load_dwordx4 {q4(SK+4)}, v61, {SKS}, s69 offen offset:16")
    tag_ready(a)
    lds_arrive(a, C_LNW, 5, 6)
    a("s_lshl_b32 s41, s64, 8")
    a("s_sub_u32 s42, 255, s2")
    a("s_add_u32 s41, s41, s42")
    a("s_lshl_b32 s62, s41, 12")
    a("v_mov_b32 v4, 0")
    SM = srd(a, 36, P_SSMK, D * S * 2)
    HL, HN = 192, 208
    def ssm_loads():
        for t in range(4):
            a(f"buffer_load_dwordx4 {q4(HL+4*t)}, v3, {SM}, s62 offen offset:{t*1024} {NT}")
        for t in range(4):
            a(f"buffer_load_dwordx2 {pr(HN+2*t)}, v3, {SM}, s62 offen offset:{t*1024+16}")
        SD = srd(a, 44, P_SSMD, D * 2)
        a("s_lshl_b32 s56, s41, 1")
        a(f"buffer_load_ushort v8, v4, {SD}, s56 offen")
    a("s_movk_i32 s56, 160")
    a("v_mul_u32_u24 v58, s56, v56")
    a("v_lshl_add_u32 v58, v57, 3, v58")
    a("s_mul_i32 s56, s64, 40")
    a(f"s_add_u32 s56, s56, {L_KS}")
    a("v_add_u32 v58, s56, v58")
    a(f"s_mul_i32 s42, s64, {HCOPY}")
    a(f"s_add_u32 s42, s42, {L_H}")
    a(f"s_mul_i32 s43, s64, {KB_CH}")
    a(f"s_add_u32 s43, s43, {L_K}")
    srd(a, 32, P_WS, WS_TOTAL)
    a("v_lshrrev_b32 v12, 3, v2")
    a("v_and_b32 v13, 7, v2")
    a("v_lshlrev_b32 v9, 14, v12")
    a("v_lshl_add_u32 v9, v13, 4, v9")
    a(f"s_mul_i32 s57, s67, {20*4096}")
    a("s_lshl_b32 s56, s66, 7")
    a("s_add_u32 s57, s57, s56")
    a(f"s_add_u32 s57, s57, {KVR_OFF}")
    a("s_mul_i32 s58, s64, 768")
    a(f"s_add_u32 s58, s58, {L_KVT}")
    a("s_movk_i32 s56, 144")
    a("v_mul_u32_u24 v10, s56, v57")
    a("v_lshl_add_u32 v10, v56, 4, v10")
    a("v_add_u32 v10, s58, v10")
    a("v_mul_u32_u24 v11, s56, v12")
    a("v_lshl_add_u32 v11, v13, 4, v11")
    a("v_add_u32 v11, s58, v11")
    if SSMLATE == 0: ssm_loads()
    a.stamp(2)
    a(f"s_waitcnt vmcnt({0 if SSMLATE else 9})")
    a.vm = []
    a.stamp(3)
    lds_arrive(a, C_KVL, 5, 6)
    if SSMLATE == 2: ssm_loads()
    lds_wait(a, C_KVL, 5, 6, 4)
    set_exec(a, 40)
    for t in range(11):
        a(f"ds_read_b64 {pr(KR+2*t)}, v58 offset:{(t % 8)*1440 + (t // 8)*160}")
    for t in range(8):
        a(f"ds_read_b64 {pr(VR+2*t)}, v58 offset:{12*1024 + t*1280}")
    a("s_waitcnt lgkmcnt(0)")
    W, KF, VF, O = 112, 120, 142, 160
    for p in range(2):
        for e in range(2):
            c = 2 * p + e
            a(f"v_lshlrev_b32 v{W+0+e}, 16, v{SK+2*c}")
            a(f"v_and_b32 v{W+2+e}, 0xffff0000, v{SK+2*c}")
            a(f"v_lshlrev_b32 v{W+4+e}, 16, v{SK+2*c+1}")
            a(f"v_and_b32 v{W+6+e}, 0xffff0000, v{SK+2*c+1}")
        for t in range(11):
            a(f"v_lshlrev_b32 v{KF+2*t}, 16, v{KR+2*t+p}")
            a(f"v_and_b32 v{KF+2*t+1}, 0xffff0000, v{KR+2*t+p}")
        for t in range(8):
            a(f"v_lshlrev_b32 v{VF+2*t}, 16, v{VR+2*t+p}")
            a(f"v_and_b32 v{VF+2*t+1}, 0xffff0000, v{VR+2*t+p}")
        for r in range(8):
            a(f"v_pk_mul_f32 {pr(KF+2*r)}, {pr(KF+2*r)}, {pr(W+6)}")
            a(f"v_pk_fma_f32 {pr(KF+2*r)}, {pr(KF+2*(r+1))}, {pr(W+4)}, {pr(KF+2*r)}")
            a(f"v_pk_fma_f32 {pr(KF+2*r)}, {pr(KF+2*(r+2))}, {pr(W+2)}, {pr(KF+2*r)}")
            a(f"v_pk_fma_f32 {pr(KF+2*r)}, {pr(KF+2*(r+3))}, {pr(W+0)}, {pr(KF+2*r)}")
        for r in range(8):
            a(f"v_pk_mul_f32 {pr(VF+2*r)}, {pr(VF+2*r)}, {pr(KF+2*r)}")
        for e in range(2):
            Ob = O + 8 * p + 4 * e
            for q in range(4):
                a(f"v_cvt_pk_bf16_f32 v{Ob+q}, v{VF+2*(7-2*q)+e}, v{VF+2*(6-2*q)+e}")
            a(f"ds_write_b128 v10, {q4(Ob)}")
            a(f"ds_read_b128 {q4(Ob)}, v11")
    a("s_waitcnt lgkmcnt(0)")
    for c in range(4):
        a(f"buffer_store_dwordx4 {q4(O+4*c)}, v9, {WS}, s57 offen {SC}", tag='ks')
        a("s_add_u32 s57, s57, 4096")
    a("s_mov_b64 exec, -1")
    a.stamp(4)
    lds_arrive(a, C_KVD, 5, 6)
    a("s_lshl_b32 s59, s67, 5")
    a("s_add_u32 s59, s59, s66")
    a(f"s_mul_i32 s59, s59, {FKS}")
    a(f"s_add_u32 s59, s59, {FK_OFF}")
    a(f"s_cmp_ge_u32 s41, {0 if XNOCONV else D}")
    a("s_cbranch_scc1 KF_NOCONV")
    a.wait(vm='ks')
    set_flag(a, 59, 12, FKS)
    lds_arrive(a, C_FLG, 5, 6)
    a.stamp(5)
    if SSMLATE == 1:
        lds_wait(a, C_FLG, 5, 6, 4)
        ssm_loads()
    lds_wait(a, C_KVD, 5, 6, 4)
    lds_wait(a, C_LNR, 5, 6, 4)
    a("s_waitcnt vmcnt(0)")
    a("v_add_u32 v9, s42, v3")
    TA = 216
    for t in range(4):
        d = [HL + 4 * t + i for i in range(4)] + [HN + 2 * t, HN + 2 * t + 1]
        a(f"ds_write_b128 v9, {q4(d[0])} offset:{32+t*1024}")
        for i in range(4): a(f"v_alignbit_b32 v{TA+i}, v{d[i+1]}, v{d[i]}, 16")
        for i in range(4): a(f"v_mov_b32 v{TA+4+i}, v{d[i+1]}")
        for i in range(4): a(f"v_alignbit_b32 v{TA+8+i}, v{d[i+2]}, v{d[i+1]}, 16")
        for j in range(1, 4):
            a(f"ds_write_b128 v9, {q4(TA+4*(j-1))} offset:{j*HJ+32+t*1024}")
        TA = 216 + 12 * ((t + 1) & 1)
    a(f"v_readfirstlane_b32 s60, v{HL}")
    a(f"v_readfirstlane_b32 s61, v{HL+1}")
    a("v_mov_b32 v6, s60")
    a("v_mov_b32 v7, s61")
    a("v_lshlrev_b32 v9, 3, v2")
    a("v_add_u32 v9, s43, v9")
    a("v_mov_b32 v5, 0")
    a("ds_write_b64 v9, v[4:5]")
    a("v_and_b32 v11, 15, v2")
    a("v_lshrrev_b32 v12, 4, v2")
    a("v_add_u32 v13, 1, v11")
    a("v_and_b32 v14, 3, v13")
    a(f"s_movk_i32 s56, {HJ}")
    a("v_mul_u32_u24 v10, s56, v14")
    a("v_and_b32 v14, 0x1c, v13")
    a("v_lshl_add_u32 v10, v14, 1, v10")
    a("v_lshl_add_u32 v10, v12, 4, v10")
    a("v_add_u32 v10, s42, v10")
    a("v_lshlrev_b32 v15, 1, v11")
    a("v_sub_u32 v15, v15, v12")
    a("v_lshlrev_b32 v15, 4, v15")
    a(f"s_add_u32 s57, s43, {33*16-448}")
    a("v_add_u32 v15, s57, v15")
    a("v_lshrrev_b32 v16, 2, v2")
    a("v_and_b32 v17, 3, v2")
    a("v_mul_u32_u24 v18, s56, v16")
    a("v_lshl_add_u32 v18, v17, 3, v18")
    a("v_add_u32 v18, s42, v18")
    a("v_lshlrev_b32 v19, 4, v16")
    a("v_sub_u32 v19, 64, v19")
    a("v_lshlrev_b32 v20, 3, v12")
    a("v_add_u32 v20, v20, v11")
    a("v_sub_u32 v20, 15, v20")
    a("v_and_b32 v21, 1, v20")
    a("v_lshlrev_b32 v21, 4, v21")
    a("v_lshrrev_b32 v20, 1, v20")
    a("v_lshlrev_b32 v22, 5, v11")
    a("v_lshl_add_u32 v22, v12, 3, v22")
    aux_ids(a)
    a("s_mul_i32 s59, s41, 3277")
    a("s_lshr_b32 s59, s59, 16")
    a(f"s_mul_i32 s59, s59, {32*FKS}")
    a(f"s_add_u32 s59, s59, {FK_OFF}")
    a(f"v_lshl_add_u32 v23, v2, {sh(FKS)}, s59")
    a("s_lshr_b32 s59, s68, 5")
    a(f"s_mul_i32 s59, s59, {4*FAS}")
    a(f"s_add_u32 s59, s59, {FA_OFF - 32*FAS}")
    a(f"v_lshl_add_u32 v28, v2, {sh(FAS)}, s59")
    a("v_cmp_gt_u32 vcc, 32, v2")
    a("v_cndmask_b32 v23, v28, v23, vcc")
    a("s_mov_b32 s59, 0")
    if FKGATE: lds_wait(a, C_FT, 28, 29, 4, sleep=2)
    poll(a, 23, 59, 28, 36, sleep=PSLEEP)
    a.stamp(6)
    aux_stats_addr(a)
    aux_stats_load(a)
    a("s_add_u32 m0, s43, 512")
    a(f"s_add_u32 s57, s62, {KVR_OFF}")
    for t in range(4):
        a(f"buffer_load_dwordx4 v3, {WS}, s57 offen offset:{t*1024} {SC} lds")
    a("v_lshlrev_b64 v[6:7], v19, v[6:7]")
    a("s_mov_b32 s60, 0x8880")
    a("s_mov_b32 s61, 0")
    a("v_cndmask_b32 v6, 0, v6, s[60:61]")
    a("v_cndmask_b32 v7, 0, v7, s[60:61]")
    a("s_mov_b64 exec, 0xffff")
    a("ds_write_b64 v18, v[6:7]")
    a("s_mov_b64 exec, -1")
    a("v_lshlrev_b32 v8, v21, v8")
    DF = 24
    for j in range(4):
        a(f"v_cmp_eq_u32 vcc, {j}, v20")
        a(f"v_cndmask_b32 v{DF+j}, 0, v8, vcc")
    CACC, AB, BB = 32, 64, 128
    def rd(r, idx):
        buf = (r & 1) * 32
        if idx < 8:
            q = 8 * idx - r
            a(f"ds_read_b128 {q4(BB+buf+idx*4)}, v15 offset:{64*(q+7)}")
        else:
            kap = idx - 8
            k = 8 * kap + r
            a(f"ds_read_b64 {pr(AB+buf+kap*4)}, v10 offset:{64*k}")
            a(f"ds_read_b64 {pr(AB+buf+kap*4+2)}, v10 offset:{64*k+8}")
    for idx in range(8, 16): rd(0, idx)
    a(f"s_setprio {E('CVPRIO', 0)}")
    a("s_waitcnt vmcnt(0)")
    a.stamp(7)
    for idx in range(8): rd(0, idx)
    a(f"v_mov_b32 v30, {C_HIS}")
    a("ds_read_b32 v31, v30")
    for r in range(8):
        buf = (r & 1) * 32
        a("s_waitcnt lgkmcnt(0)")
        if r == CVPAUSE:
            lds_wait(a, C_FGD, 5, 6, 4, sleep=8)
        if YIELD:
            Ly = lbl("NOY")
            a("v_readfirstlane_b32 s56, v31")
            a(f"s_cmp_lt_u32 s56, {YIELD}")
            a(f"s_cbranch_scc1 {Ly}")
            lds_wait(a, C_FGD, 5, 6, 4, sleep=8)
            a.label(Ly)
        seq = []
        if r == 0:
            for n in range(8): seq.append(('d', n))
        for kap in range(8):
            for n in range(kap, 8): seq.append((kap, n))
        nxt = list(range(16)) if r < 7 else []
        for i, (kap, n) in enumerate(seq):
            c = q4(CACC + n * 4)
            if kap == 'd':
                a(f"v_mfma_f32_16x16x32_bf16 {c}, {q4(DF)}, {q4(BB+buf+n*4)}, 0")
            else:
                a(f"v_mfma_f32_16x16x32_bf16 {c}, {q4(AB+buf+kap*4)}, {q4(BB+buf+(n-kap)*4)}, {c}")
            if nxt and i % 2 == 0:
                rd(r + 1, nxt.pop(0))
            if YIELD and i == len(seq) - 3 and r < 7: a("ds_read_b32 v31, v30")
        if r == 3: a.stamp(8)
    a.stamp(9)
    a("s_setprio 3")
    a(f"s_add_u32 s57, s62, {Z_OFF}")
    if ZWIDE:
        a("v_and_b32 v13, 1, v12")
        a("v_lshlrev_b32 v22, 9, v13")
        a("v_lshl_add_u32 v22, v11, 5, v22")
        a("v_lshrrev_b32 v13, 1, v12")
        a("v_lshl_add_u32 v22, v13, 4, v22")
        for n in range(0, 8, 2):
            o = AB + 2 * n
            a(f"v_cvt_pk_bf16_f32 v{o}, v{CACC+4*n}, v{CACC+4*n+1}")
            a(f"v_cvt_pk_bf16_f32 v{o+1}, v{CACC+4*n+2}, v{CACC+4*n+3}")
            a(f"v_cvt_pk_bf16_f32 v{o+2}, v{CACC+4*n+4}, v{CACC+4*n+5}")
            a(f"v_cvt_pk_bf16_f32 v{o+3}, v{CACC+4*n+6}, v{CACC+4*n+7}")
            a(f"v_permlane16_swap_b32 v{o}, v{o+2}")
            a(f"v_permlane16_swap_b32 v{o+1}, v{o+3}")
            a(f"buffer_store_dwordx4 {q4(o)}, v22, {WS}, s57 offen offset:{512*n} {SC}")
    else:
        for n in range(8):
            a(f"v_cvt_pk_bf16_f32 v{AB+2*n}, v{CACC+4*n}, v{CACC+4*n+1}")
            a(f"v_cvt_pk_bf16_f32 v{AB+2*n+1}, v{CACC+4*n+2}, v{CACC+4*n+3}")
            a(f"buffer_store_dwordx2 {pr(AB+2*n)}, v22, {WS}, s57 offen offset:{512*n} {SC}")
    a("v_mov_b32 v190, v232")
    a("v_mov_b32 v191, v233")
    a("s_add_u32 s58, s43, 512")
    aux_p0(a, "s58")
    a(f"s_mul_i32 s59, s41, {FZS}")
    a(f"s_add_u32 s59, s59, {FZ_OFF}")
    a("s_waitcnt vmcnt(3)")
    set_flag(a, 59, 12, FZS)
    a.stamp(10)
    a("s_waitcnt vmcnt(0)")
    aux_p0b(a)
    a("v_mov_b32 v232, v190")
    a("v_mov_b32 v233, v191")
    lds_wait(a, C_FGD, 5, 6, 4, sleep=8)
    aux_xn(a)
    a("s_branch KF_P2")
    a.label("KF_NOCONV")
    a("s_waitcnt vmcnt(0)")
    set_flag(a, 59, 12, FKS)
    lds_arrive(a, C_FLG, 5, 6)
    a.stamp(5)
    if PFSTEPS < 12 and not XNOW2:
        a("s_cmp_lg_u32 s64, 3")
        a("s_cbranch_scc1 KF_AUXEND")
        nrow = (12 - PFSTEPS) * (32 if P2 else 16)
        a("s_lshr_b32 s60, s2, 3")
        a("s_and_b32 s61, s2, 7")
        if not P2:
            a("s_lshr_b32 s57, s60, 2")
            a("s_and_b32 s56, s60, 3")
            a("s_lshl_b32 s58, s61, 2")
            a("s_add_u32 s56, s56, s58")
        else:
            a("s_lshr_b32 s57, s60, 3")
            a("s_and_b32 s58, s61, 4")
            a("s_add_u32 s57, s57, s58")
            a("s_and_b32 s56, s60, 7")
            a("s_and_b32 s58, s61, 3")
            a("s_lshl_b32 s58, s58, 3")
            a("s_add_u32 s56, s56, s58")
        if not P2:
            a("s_lshr_b32 s58, s57, 1")
            a("s_mul_i32 s58, s58, 384")
            a("s_and_b32 s57, s57, 1")
            a(f"s_mul_i32 s57, s57, {nrow}")
            a("s_add_u32 s57, s57, s58")
        else:
            a("s_and_b32 s57, s57, 3")
            a("s_mul_i32 s57, s57, 384")
        a(f"s_add_u32 s57, s57, {32*PFSTEPS}")
        a("s_lshl_b32 s57, s57, 12")
        a("s_lshl_b32 s56, s56, 7")
        a("s_add_u32 s57, s57, s56")
        a("v_lshrrev_b32 v59, 3, v2")
        a("v_and_b32 v60, 7, v2")
        a("v_lshlrev_b32 v60, 4, v60")
        a("v_lshl_add_u32 v62, v59, 12, v60")
        W2 = srd(a, 36, P_W2, S * F * 2)
        if STAG:
            a("s_lshr_b32 s58, s2, 3")
            a(f"s_and_b32 s58, s58, {STAG-1}")
            a(f"s_add_u32 s58, s58, {STAG0}")
            a("s_lshl_b32 s58, s58, 2")
            lds_wait(a, C_HIS, 5, 6, "s58", sleep=4)
        else:
            lds_wait(a, C_HIS, 5, 6, 48, sleep=4)
        for k in range(nrow // 8):
            a(f"buffer_load_dwordx4 {q4(64+4*(k%30))}, v62, {W2}, s57 offen {NTW}")
            a(f"s_add_u32 s57, s57, {8*4096}")
    a.label("KF_AUXEND")
    aux_ids(a)
    aux_stats_addr(a)
    a("s_lshr_b32 s59, s68, 5")
    a(f"s_mul_i32 s59, s59, {4*FAS}")
    a(f"s_add_u32 s59, s59, {FA_OFF}")
    lds_wait(a, C_HIS, 5, 6, 40, sleep=8)
    a(f"v_lshlrev_b32 v235, {sh(FAS)}, v2")
    poll(a, 235, 59, 232, 4, sleep=4)
    aux_stats_load(a)
    a("s_waitcnt vmcnt(0)")
    a("v_mov_b32 v190, v232")
    a("v_mov_b32 v191, v233")
    lds_wait(a, C_RD, 5, 6, 4, sleep=2)
    aux_p0(a)
    a("s_waitcnt vmcnt(0)")
    aux_p0b(a)
    a("v_mov_b32 v232, v190")
    a("v_mov_b32 v233, v191")
    lds_wait(a, C_FGD, 5, 6, 4, sleep=8)
    aux_xn(a)
    a.label("KF_P2")
    a.stamp(11)
    aux_p2(a)
    a.flush_stamps(0, 12, vt=250, ws=P_WS)

NAME = "parallel_sum__ssm_conv_h3__mixer_token_mlp__prompt"
def build(path, as_list=True):
    ref = open(f"cdna_kernels/{NAME}.s.ref").read().split("\n")
    hdr = [l for l in ref if l.startswith(";") and "@launch" not in l and "Override launch" not in l and "grid=ceil" not in l]
    kn = NAME + "_kernel"
    t, d = gen(kn)
    s = "\n".join(hdr) + "\n"
    if as_list: s += f"; @launch kernel={kn} grid=(256,1,1) block=({THREADS},1,1) lds={LDS_TOTAL}\n"
    else: s += f"; @launch grid=(256,1,1) block=({THREADS},1,1) lds={LDS_TOTAL}\n"
    s += '.amdgcn_target "amdgcn-amd-amdhsa--gfx950"\n' + t + d
    open(path, "w").write(s)
if __name__ == "__main__":
    import sys
    build(sys.argv[1], as_list=(len(sys.argv) <= 2))
```

```python
from asmlib import *
import os, struct, math
E = lambda k, d: type(d)(os.environ.get(k, d))

S, D, F = 2048, 640, 1536
XBYTES = S * D * 2
EP_OFF = 0
FGS = E('FGS', 64); FKS = E('FKS', 16); FZS = E('FZS', 16); FAS = E('FAS', 16); WIDEF = E('WIDEF', 0)
FG_OFF = 0x1000
FK_OFF = FG_OFF + 960 * FGS
FZ_OFF = FK_OFF + 1024 * FKS
FA_OFF = FZ_OFF + 640 * FZS
ST_OFF = FA_OFF + 2560 * FAS
HF_OFF = (ST_OFF + 16384 + 0xffff) & ~0xffff
KVR_OFF = HF_OFF + 0x280000
Z_OFF = KVR_OFF + 0x280000
GF_OFF = Z_OFF + 0x280000
WS_TOTAL = GF_OFF + 0x1E0000
sh = lambda x: x.bit_length() - 1
FS = 16

NS = 6
RING = NS * 4096
HCOPY = 4160
HB_CH = 4 * HCOPY
KB_CH = 512 + 4096
L_H = 4 * RING
L_K = L_H + 3 * HB_CH
L_MISC = L_K + 3 * KB_CH
L_CNT = L_MISC
L_ST = L_MISC + 64
LDS_TOTAL = L_MISC + 128 + 1024
HJ = 3 * HCOPY
L_KS = L_H + HJ
L_VS = L_KS + 12 * 1024
L_KVT = L_VS + 10 * 1024
assert L_KVT + 4 * 768 <= L_K
C_RED, C_RD, C_KVL, C_KVD, C_LNW, C_LNR, C_HIS, C_FLG, C_FT, C_FGD, C_ZL, C_E, C_P2, C_FGF = [L_CNT + 4 * i for i in range(14)]
ZT = E('ZT', 2)
W2PRE = E('W2PRE', 10)
assert LDS_TOTAL <= 163840
THREADS = 512
NT = os.environ.get('NT', '')
CODEPF = E('CODEPF', 1)
FGSL = E('FGSL', 0)
EARLYW = E('EARLYW', 1)
ZWIDE = E('ZWIDE', 1)
OWIDE = E('OWIDE', 1)
YIELD = E('YIELD', 52)
XNOCONV = E('XNOCONV', 0)
XNOW2 = E('XNOW2', 0)
XNOMFMA = E('XNOMFMA', 0)
FTA = E('FTA', 1)
SSMLATE = E('SSMLATE', 0)
P1 = E('P1', 0)
P2 = E('P2', 0)
STAG = E('STAG', 8)
STAG0 = E('STAG0', 1)
PROG = E('PROG', 1)
OUTMOD = os.environ.get('OUTMOD', '')
NTW = os.environ.get('NTW', NT)
SC = "sc1"
SCL = os.environ.get("SCL", "sc1")
NTB = os.environ.get("NTB", "")
FT0 = E("FT0", 0)
PRE1 = E("PRE1", 12)
LEADD = E("LEADD", 12)
LEADR = E("LEADR", 6)
PFSTEPS = E("PFSTEPS", 4)
FTGATE = E("FTGATE", 1)
FKGATE = E("FKGATE", 1)
CVPAUSE = E("CVPAUSE", 8)
SPIN_MAX = 1 << 16
FT1 = E('FT1', 2)
NR1, NH = 6, 4
NR2, NS2, NG = 5, 5, 3
ROT = E('ROT', 0)
PSLEEP = E('PSLEEP', 6)
FTWAIT = E('FTWAIT', 1)
PFMOD = os.environ.get('PFMOD', '')
W2EARLY = E('W2EARLY', 0)
EXACT = E('EXACT', 1)
W2SIG = E('W2SIG', 0)

def f2u(x): return struct.unpack('<I', struct.pack('<f', x))[0]
GELU_K0 = -2.0 * math.sqrt(2.0 / math.pi) * math.log2(math.e)
GELU_K1 = GELU_K0 * 0.044715
def pr(r): return f"v[{r}:{r+1}]"
def q4(r): return f"v[{r}:{r+3}]"

P_Q, P_K, P_V, P_SK, P_SSMK, P_SSMD, P_BX, P_W1, P_B1, P_W2, P_B2, P_OUT, P_WS = 4, 6, 8, 10, 12, 14, 16, 18, 20, 22, 24, 26, 28
TAG = 30
WS = "s[32:35]"

def srd(a, d, base, nbytes):
    a(f"s_mov_b32 s{d}, s{base}")
    a(f"s_and_b32 s{d+1}, s{base+1}, 0xffff")
    a(f"s_mov_b32 s{d+2}, {nbytes}")
    a(f"s_mov_b32 s{d+3}, 0x00020000")
    return f"s[{d}:{d+3}]"

def reduce2(a, x, y, tx, ty):
    for m in ("quad_perm:[1,0,3,2]", "quad_perm:[2,3,0,1]", "row_half_mirror", "row_mirror"):
        a(f"v_add_f32_dpp v{x}, v{x}, v{x} {m} row_mask:0xf bank_mask:0xf")
        a(f"v_add_f32_dpp v{y}, v{y}, v{y} {m} row_mask:0xf bank_mask:0xf")
    for p in ("v_permlane16_swap_b32", "v_permlane32_swap_b32"):
        a(f"v_mov_b32 v{tx}, v{x}")
        a(f"v_mov_b32 v{ty}, v{y}")
        a(f"{p} v{x}, v{tx}")
        a(f"{p} v{y}, v{ty}")
        a(f"v_add_f32 v{x}, v{x}, v{tx}")
        a(f"v_add_f32 v{y}, v{y}, v{ty}")

def unpack(a, dst, src, n):
    for i in range(n):
        a(f"v_lshlrev_b32 v{dst+2*i}, 16, v{src+i}")
        a(f"v_and_b32 v{dst+2*i+1}, 0xffff0000, v{src+i}")

def pack(a, dst, src, n):
    for i in range(n):
        a(f"v_cvt_pk_bf16_f32 v{dst+i}, v{src+2*i}, v{src+2*i+1}")

def round_bf16(a, reg, n2, tmp):
    pack(a, tmp, reg, n2); unpack(a, reg, tmp, n2)

_uid = [0]
def lbl(p):
    _uid[0] += 1
    return f"{p}_{_uid[0]}"

def set_exec(a, n):
    m = (1 << n) - 1
    a(f"s_mov_b32 exec_lo, {hex(m & 0xffffffff)}")
    a(f"s_mov_b32 exec_hi, {hex(m >> 32)}")

def poll(a, vaddr, soff, vt, nlanes=64, sleep=0):
    L = lbl("POLL"); Lx = lbl("POLLX")
    a("s_mov_b32 s70, 0")
    if nlanes < 64: set_exec(a, nlanes)
    a.label(L)
    a(f"buffer_load_dwordx2 {pr(vt)}, v{vaddr}, {WS}, s{soff} offen {SC}")
    a("s_add_u32 s70, s70, 1")
    a("s_waitcnt vmcnt(0)")
    a(f"v_cmp_ne_u64 vcc, s[{TAG}:{TAG+1}], {pr(vt)}")
    a(f"s_cmp_gt_u32 s70, {SPIN_MAX}")
    a(f"s_cbranch_scc1 {Lx}")
    a(f"s_cbranch_vccz {Lx}")
    if sleep: a(f"s_sleep {sleep}")
    a(f"s_branch {L}")
    a.label(Lx)
    if nlanes < 64: a("s_mov_b64 exec, -1")

def set_flag(a, soff, vt, rec=8):
    a(f"v_mov_b32 v{vt}, s{TAG}")
    a(f"v_mov_b32 v{vt+1}, s{TAG+1}")
    if WIDEF and rec > 8:
        a(f"v_lshlrev_b32 v{vt+2}, 3, v2")
        a(f"s_mov_b64 exec, {hex((1 << (rec // 8)) - 1)}")
    else:
        a(f"v_mov_b32 v{vt+2}, 0")
        a("s_mov_b64 exec, 1")
    a(f"buffer_store_dwordx2 {pr(vt)}, v{vt+2}, {WS}, s{soff} offen {SC}")
    a("s_mov_b64 exec, -1")

def lds_sync(a, cnt_off, va, vb, target):
    L = lbl("LSYNC"); Lx = lbl("LSYNCX")
    a(f"v_mov_b32 v{va}, {cnt_off}")
    a(f"v_mov_b32 v{vb}, 1")
    a("s_waitcnt lgkmcnt(0)")
    a("s_mov_b64 exec, 1")
    a(f"ds_add_u32 v{va}, v{vb}")
    a("s_mov_b64 exec, -1")
    a("s_mov_b32 s70, 0")
    a.label(L)
    a(f"ds_read_b32 v{vb}, v{va}")
    a("s_add_u32 s70, s70, 1")
    a("s_waitcnt lgkmcnt(0)")
    a(f"v_readfirstlane_b32 s71, v{vb}")
    a(f"s_cmp_gt_u32 s70, {SPIN_MAX*4}")
    a(f"s_cbranch_scc1 {Lx}")
    a(f"s_cmp_lt_u32 s71, {target}")
    a(f"s_cbranch_scc1 {L}")
    a.label(Lx)

class Coll:
    def __init__(self): self.l = []
    def __call__(self, t, tag=None): self.l.append(t)

def reduce2c(a, x, y, tx, ty): reduce2(a, x, y, tx, ty)

def ln_row(RAW, X, T, Q, sh):
    a = Coll()
    S1, S1h, S2, S2h, M, R = Q, Q + 1, Q + 2, Q + 3, Q + 4, Q + 5
    unpack(a, X, RAW, 5)
    a(f"v_readfirstlane_b32 s{sh}, v{X}")
    for i in range(10): a(f"v_subrev_f32 v{T+i}, s{sh}, v{X+i}")
    def sums(src):
        a(f"v_pk_add_f32 {pr(S1)}, {pr(src)}, {pr(src+2)}")
        a(f"v_pk_mul_f32 {pr(S2)}, {pr(src)}, {pr(src)}")
        for i in range(1, 5):
            if i >= 2: a(f"v_pk_add_f32 {pr(S1)}, {pr(S1)}, {pr(src+2*i)}")
            a(f"v_pk_fma_f32 {pr(S2)}, {pr(src+2*i)}, {pr(src+2*i)}, {pr(S2)}")
        a(f"v_add_f32 v{S1}, v{S1}, v{S1h}")
        a(f"v_add_f32 v{S2}, v{S2}, v{S2h}")
        reduce2(a, S1, S2, S1h, S2h)
    def stats(shift):
        a(f"v_mul_f32 v{S1}, s60, v{S1}")
        a(f"v_mul_f32 v{S2}, s60, v{S2}")
        a(f"v_fma_f32 v{S2}, -v{S1}, v{S1}, v{S2}")
        a(f"v_max_f32 v{S2}, 0, v{S2}")
        if shift: a(f"v_add_f32 v{S1}, s{sh}, v{S1}")
        a(f"v_cvt_pk_bf16_f32 v{S1h}, v{S1}, v{S2}")
        a(f"v_lshlrev_b32 v{M}, 16, v{S1h}")
        a(f"v_and_b32 v{S2}, 0xffff0000, v{S1h}")
        a(f"v_add_f32 v{S2}, 0x3727c5ac, v{S2}")
        a(f"v_cvt_pk_bf16_f32 v{S2}, v{S2}, v{S2}")
        a(f"v_lshlrev_b32 v{S2}, 16, v{S2}")
        a(f"v_sqrt_f32 v{S2}, v{S2}")
        a(f"v_cvt_pk_bf16_f32 v{S2}, v{S2}, v{S2}")
        a(f"v_lshlrev_b32 v{S2}, 16, v{S2}")
        a(f"v_rcp_f32 v{R}, v{S2}")
    def normalize():
        for i in range(5):
            a(f"v_pk_add_f32 {pr(T+2*i)}, {pr(X+2*i)}, {pr(M)} op_sel_hi:[1,0] neg_lo:[0,1] neg_hi:[0,1]")
        round_bf16(a, T, 5, RAW)
        for i in range(5):
            a(f"v_pk_mul_f32 {pr(T+2*i)}, {pr(T+2*i)}, {pr(M)} op_sel:[0,1] op_sel_hi:[1,1]")
        pack(a, RAW, T, 5)
    sums(T); stats(True)
    p1 = a.l; a.l = []
    normalize()
    unpack(a, X, RAW, 5)
    sums(X); stats(False)
    normalize()
    return p1, a.l

def common_entry(a):
    a("s_waitcnt lgkmcnt(0)")
    a(f"s_load_dwordx2 s[{TAG}:{TAG+1}], s[{P_WS}:{P_WS+1}], {EP_OFF}")

def tag_ready(a):
    a("s_waitcnt lgkmcnt(0)")
    a(f"s_add_u32 s{TAG}, s{TAG}, 0x9E3779B9")
    a(f"s_add_u32 s{TAG+1}, s{TAG+1}, 0x7F4A7C15")

RA, RB_ = 8, 72
def ln_addr_and_load(a):
    a("s_lshr_b32 s41, s2, 2")
    a("s_and_b32 s42, s2, 3")
    a("s_lshl_b32 s43, s41, 5")
    a("s_lshl_b32 s56, s42, 2")
    a("s_add_u32 s43, s43, s56")
    a("s_and_b32 s56, s40, 1")
    a("s_lshl_b32 s56, s56, 1")
    a("s_add_u32 s43, s43, s56")
    a("s_lshr_b32 s56, s40, 1")
    a("s_lshl_b32 s56, s56, 4")
    a("s_add_u32 s43, s43, s56")
    a("s_mul_i32 s43, s43, 1280")
    a("v_lshlrev_b32 v3, 3, v2")
    a("v_lshlrev_b32 v4, 2, v2")
    a(f"v_add_u32 v5, {L_CNT}, v4")
    a("v_mov_b32 v6, 0")
    a("s_mov_b64 exec, 0xffff")
    a("ds_write_b32 v5, v6")
    a("s_mov_b64 exec, -1")
    common_entry(a)
    X = srd(a, 36, P_Q, XBYTES)
    for r, o in ((RA, 0), (RB_, 1280)):
        a(f"buffer_load_dwordx2 {pr(r)}, v3, {X}, s43 offen offset:{o} {NT}", tag='x')
        a(f"buffer_load_dwordx2 {pr(r+2)}, v3, {X}, s43 offen offset:{o+512} {NT}", tag='x')
        a(f"buffer_load_dword v{r+4}, v4, {X}, s43 offen offset:{o+1024} {NT}", tag='x')
    a("s_barrier")
    srd(a, 32, P_WS, WS_TOTAL)

def ln_compute_publish(a, hook=None):
    a("s_mul_i32 s56, s40, 2688")
    a(f"s_add_u32 s56, s56, {L_K}")
    a("v_add_u32 v5, s56, v3")
    a("v_add_u32 v6, s56, v4")
    a("v_bfe_u32 v40, v2, 2, 2")
    a("s_movk_i32 s57, 1344")
    a("v_mul_u32_u24 v40, s57, v40")
    a("v_lshrrev_b32 v41, 4, v2")
    a("v_lshl_add_u32 v40, v41, 5, v40")
    a("v_and_b32 v42, 3, v2")
    a("v_lshl_add_u32 v40, v42, 3, v40")
    a("s_lshl_b32 s57, s40, 7")
    a(f"s_add_u32 s57, s57, {L_K}")
    a("v_add_u32 v40, s57, v40")
    a("v_and_b32 v42, 15, v2")
    a("v_lshlrev_b32 v42, 4, v42")
    a("v_lshl_add_u32 v42, v41, 10, v42")
    a("s_lshl_b32 s57, s40, 6")
    a("s_add_u32 s57, s57, s41")
    a("s_lshl_b32 s57, s57, 12")
    a("s_lshl_b32 s58, s42, 8")
    a("s_add_u32 s57, s57, s58")
    a(f"s_add_u32 s57, s57, {HF_OFF}")
    a("s_lshl_b32 s59, s40, 8")
    a("s_add_u32 s59, s59, s2")
    a(f"s_mul_i32 s59, s59, {FAS}")
    a(f"s_add_u32 s59, s59, {FA_OFF}")
    a("s_mov_b32 s60, 0x3acccccd")
    a("s_lshl_b32 s61, s40, 4")
    a(f"s_add_u32 s61, s61, {L_ST}")
    a("v_mov_b32 v43, s61")
    a(f"v_lshlrev_b32 v54, {(4*256*FAS).bit_length()-1}, v2")
    tag_ready(a)
    a.stamp(1)
    a.wait(vm='x')
    a.stamp(2)
    A1, A2 = ln_row(RA, 16, 44, 26, 62)
    B1, B2 = ln_row(RB_, 80, 92, 104, 63)
    for x, y in zip(A1, B1): a(x); a(y)
    a("s_mov_b64 exec, 1")
    a("ds_write_b64 v43, v[30:31]")
    a("ds_write_b64 v43, v[108:109] offset:8")
    a("s_mov_b64 exec, -1")
    for x, y in zip(A2, B2): a(x); a(y)
    for r, o in ((RA, 0), (RB_, 1344)):
        a(f"ds_write_b64 v5, {pr(r)} offset:{o}")
        a(f"ds_write_b64 v5, {pr(r+2)} offset:{o+512}")
        a(f"ds_write_b32 v6, v{r+4} offset:{o+1024}")
    lds_arrive(a, C_LNW, 44, 45)
    a.stamp(3)
    lds_wait(a, C_LNW, 44, 45, 8)
    for k in range(2):
        a(f"ds_read_b64_tr_b16 {pr(16+4*k)}, v40 offset:{512*k}", tag=('t', k))
        a(f"ds_read_b64_tr_b16 {pr(18+4*k)}, v40 offset:{4*1344+512*k}", tag=('t', k))
    a(f"s_add_u32 s58, s57, {4*64*4096}")
    a.wait(lg=[('t', 0)])
    a(f"buffer_store_dwordx4 v[16:19], v42, {WS}, s57 offen {SC}")
    L1 = lbl("LN1")
    a("s_mov_b32 s56, 3")
    a("s_cmp_ge_u32 s40, 2")
    a(f"s_cbranch_scc1 {L1}")
    a("ds_read_b64_tr_b16 v[24:25], v40 offset:1024")
    a(f"ds_read_b64_tr_b16 v[26:27], v40 offset:{4*1344+1024}")
    a(f"v_add_u32 v44, {L_ST}, v3")
    a("ds_read_b64 v[28:29], v44")
    a(f"s_add_u32 s57, s57, {8*64*4096}")
    a("s_lshl_b32 s61, s2, 6")
    a(f"s_add_u32 s61, s61, {ST_OFF}")
    a("s_mov_b32 s56, 7")
    a("s_waitcnt lgkmcnt(0)")
    a(f"buffer_store_dwordx4 v[24:27], v42, {WS}, s57 offen {SC}")
    a("s_mov_b64 exec, 0xff")
    a(f"buffer_store_dwordx2 v[28:29], v3, {WS}, s61 offen {SC}")
    a("s_mov_b64 exec, -1")
    a.label(L1)
    a("s_waitcnt lgkmcnt(0)")
    a(f"buffer_store_dwordx4 v[20:23], v42, {WS}, s58 offen {SC}", tag='hs')
    lds_arrive(a, C_LNR, 44, 45)
    a(f"v_mov_b32 v44, s{TAG}")
    a(f"v_mov_b32 v45, s{TAG+1}")
    a("s_mov_b32 s61, s56")
    if hook: hook()
    a.wait(vm='hs')
    a("s_mov_b32 exec_lo, s61")
    a("s_mov_b32 exec_hi, 0")
    a(f"buffer_store_dwordx2 v[44:45], v54, {WS}, s59 offen {SC}")
    a("s_mov_b64 exec, -1")
    a.stamp(4)

def gen(name):
    a = Asm()
    a.raw(kernel_header(name))
    a("s_cmp_ge_u32 s2, 256")
    a("s_cbranch_scc1 KF_DONE")
    a("s_load_dwordx16 s[4:19], s[0:1], 0")
    a("s_load_dwordx8 s[20:27], s[0:1], 64")
    a("s_load_dwordx2 s[28:29], s[0:1], 104")
    if CODEPF:
        a("s_getpc_b64 s[44:45]")
        a("s_and_b32 s44, s44, 0xffffff00")
        a("s_and_b32 s45, s45, 0xffff")
        a(f"s_mov_b32 s46, CODE_END-{name}")
        a("s_mov_b32 s47, 0x00020000")
        a("s_lshr_b32 s48, s2, 3")
        a("s_lshl_b32 s48, s48, 10")
        a("v_lshrrev_b32 v1, 6, v0")
        a("v_and_b32 v2, 7, v0")
        a("v_lshlrev_b32 v2, 4, v2")
        a("v_lshl_add_u32 v1, v1, 7, v2")
        a("buffer_load_dwordx4 v[252:255], v1, s[44:47], s48 offen")
    a.stamp(0)
    a("v_lshrrev_b32 v1, 6, v0")
    a("v_and_b32 v2, 63, v0")
    a("v_readfirstlane_b32 s40, v1")
    a("s_cmp_lt_u32 s40, 4")
    a("s_cbranch_scc1 KF_GEMM")
    gen_aux_early(a)
    a("s_branch KF_AUX")
    a.label("KF_GEMM")
    a.reset_counts()
    gen_gemm(a)
    a.label("KF_AUX")
    a.reset_counts()
    gen_aux(a)
    a.label("KF_DONE")
    a("s_endpgm")
    a.raw("CODE_END:")
    return a.render(), kernel_desc(name, 256, 72)

def lds_arrive(a, cnt_off, va, vb):
    a(f"v_mov_b32 v{va}, {cnt_off}")
    a(f"v_mov_b32 v{vb}, 1")
    a("s_waitcnt lgkmcnt(0)")
    a("s_mov_b64 exec, 1")
    a(f"ds_add_u32 v{va}, v{vb}")
    a("s_mov_b64 exec, -1")

def lds_wait(a, cnt_off, va, vb, target, sleep=0):
    L = lbl("LW"); Lx = lbl("LWX")
    a(f"v_mov_b32 v{va}, {cnt_off}")
    a("s_mov_b32 s70, 0")
    a.label(L)
    a(f"ds_read_b32 v{vb}, v{va}")
    a("s_add_u32 s70, s70, 1")
    a("s_waitcnt lgkmcnt(0)")
    a(f"v_readfirstlane_b32 s71, v{vb}")
    a(f"s_cmp_gt_u32 s70, {SPIN_MAX*4}")
    a(f"s_cbranch_scc1 {Lx}")
    a(f"s_cmp_ge_u32 s71, {target}")
    a(f"s_cbranch_scc1 {Lx}")
    if sleep: a(f"s_sleep {sleep}")
    a(f"s_branch {L}")
    a.label(Lx)

def gen_gemm(a):
    a("s_setprio 2")
    VD, VT, VH, VL = 56, 60, 64, 68
    VT2 = VT
    ACC = 72
    WR = 152
    HS = [8, 24, 40, 136]
    WR2 = 176
    GS = [8, 28, 152]
    a("s_and_b32 s64, s2, 7")
    a("s_lshr_b32 s65, s2, 3")
    ln_addr_and_load(a)
    if not P1:
        a("s_mul_i32 s66, s65, 171")
        a("s_lshr_b32 s66, s66, 9")
        a("s_mul_i32 s67, s66, 3")
        a("s_sub_u32 s67, s65, s67")
        a("s_mul_i32 s68, s66, 1639")
        a("s_lshr_b32 s68, s68, 10")
        if E('XROT', 0):
            a(f"s_mul_i32 s69, s64, {E('XROT', 0)}")
            a("s_add_u32 s68, s68, s69")
        a("s_and_b32 s68, s68, 15")
        a("s_mul_i32 s69, s64, 3")
        a("s_add_u32 s67, s67, s69")
    else:
        a("s_mul_i32 s66, s65, 43")
        a("s_lshr_b32 s66, s66, 8")
        a("s_mul_i32 s67, s66, 6")
        a("s_sub_u32 s67, s65, s67")
        a("s_mul_i32 s68, s66, 3277")
        a("s_lshr_b32 s68, s68, 10")
        a("s_and_b32 s68, s68, 15")
        a("s_lshr_b32 s69, s64, 2")
        a("s_mul_i32 s69, s69, 5")
        a("s_add_u32 s66, s66, s69")
        a("s_and_b32 s69, s64, 3")
        a("s_mul_i32 s69, s69, 6")
        a("s_add_u32 s67, s67, s69")
    a(f"v_lshlrev_b32 v{VL}, 4, v2")
    a("v_bfe_u32 v69, v2, 1, 2")
    a("v_lshrrev_b32 v70, 4, v2")
    a("v_xor_b32 v69, v69, v70")
    a("v_lshlrev_b32 v69, 5, v69")
    a("v_and_b32 v70, 1, v2")
    a("v_lshl_add_u32 v69, v70, 4, v69")
    a("v_lshrrev_b32 v70, 3, v2")
    a("s_movk_i32 s56, 3072")
    a(f"v_mad_u32_u24 v{VD}, v70, s56, v69")
    for t in range(1, 4):
        a(f"v_add_u32 v{VD+t}, {t*(24576-1024)}, v{VD}")
    a(f"s_mul_i32 s44, s40, {512*3072}")
    a("s_lshl_b32 s56, s67, 7")
    a("s_add_u32 s44, s44, s56")
    a(f"s_mul_i32 s45, s40, {RING}")
    a("s_mov_b32 s46, s68")
    W1 = srd(a, 48, P_W1, S * F * 2)
    a("v_lshrrev_b32 v71, 2, v2")
    a("v_lshlrev_b32 v71, 7, v71")
    a("v_and_b32 v70, 3, v2")
    a("v_lshl_add_u32 v71, v70, 3, v71")
    a("v_add_u32 v71, s45, v71")
    a("v_bfe_u32 v70, v2, 3, 2")
    for phi in range(4):
        a(f"v_xor_b32 v13, {phi}, v70")
        a(f"v_lshl_add_u32 v{VT+phi}, v13, 5, v71")
    for i in range(4):
        a(f"s_add_u32 s56, s40, {i}")
        a("s_and_b32 s56, s56, 3")
        a("s_lshl_b32 s56, s56, 10")
        a(f"v_add_u32 v{VH+i}, s56, v{VL}")
    def dma1_parts(t):
        mod = NTW if t < FT1 else NTB
        def p0():
            if t >= NS: a.wait(lg=[('r', t - NS)])
            a(f"s_mul_i32 s47, s46, {32*3072}")
            a("s_add_u32 s47, s47, s44")
            a(f"s_add_u32 m0, s45, {(t % NS)*4096}")
            a("s_add_u32 s46, s46, 1")
            a("s_and_b32 s46, s46, 15")
        ps = [p0]
        for i in range(4):
            ps.append(lambda i=i: a(f"buffer_load_dwordx4 v{VD+i}, {W1}, s47 offen offset:{i*1024} {mod} lds", tag=('w', t)))
        return ps
    def dma1(t):
        for p in dma1_parts(t): p()
    def hook():
        for t in range(FT0): dma1(t)
    ln_compute_publish(a, hook)
    a("s_cmp_ge_u32 s2, 240")
    a("s_cbranch_scc1 KF_G2")
    def trread_parts(t):
        wb = WR + (t % NR1) * 16
        ps = []
        for phi in range(4):
            def p(phi=phi):
                if phi == 0: a.wait(vm=[('w', t)])
                a(f"ds_read_b64_tr_b16 {pr(wb+phi*4)}, v{VT+phi} offset:{(t % NS)*4096}", tag=('r', t))
                a(f"ds_read_b64_tr_b16 {pr(wb+phi*4+2)}, v{VT+phi} offset:{(t % NS)*4096+2048}", tag=('r', t))
            ps.append(p)
        return ps
    NK = 16
    st = {'dma': FT0, 'rd': 0}
    def next_dma(defer=None):
        t = st['dma']; st['dma'] += 1
        if defer is None: dma1(t)
        else: defer.extend(dma1_parts(t))
    def next_rd(defer=None):
        t = st['rd']; st['rd'] += 1
        ps = trread_parts(t)
        if defer is None:
            for p in ps: p()
        else: defer.extend(ps)
    while st['dma'] < FTA: next_dma()
    if FTGATE: lds_wait(a, C_FLG if FTGATE == 1 else C_KVD, 4, 5, 4, sleep=1)
    while st['dma'] < FT1: next_dma()
    a("s_lshl_b32 s57, s66, 6")
    a("s_lshl_b32 s56, s40, 4")
    a("s_add_u32 s57, s57, s56")
    a("s_lshl_b32 s57, s57, 12")
    a(f"s_add_u32 s57, s57, {HF_OFF}")
    a("s_lshl_b32 s58, s68, 12")
    a("s_lshl_b32 s59, s66, 8")
    a("s_lshl_b32 s56, s40, 6")
    a("s_add_u32 s59, s59, s56")
    a(f"s_mul_i32 s59, s59, {FAS}")
    a(f"s_add_u32 s59, s59, {FA_OFF}")
    B1 = srd(a, 52, P_B1, F * 2)
    a("v_lshrrev_b32 v3, 4, v2")
    a("v_lshlrev_b32 v3, 3, v3")
    a("s_lshl_b32 s56, s67, 7")
    BI = 248
    for phi in range(4):
        a(f"buffer_load_dwordx2 {pr(BI+2*phi)}, v3, {B1}, s56 offen offset:{phi*32}", tag='b')
    if FT1 and FTWAIT: a.wait(vm=[('w', FT1 - 1)])
    lds_arrive(a, C_FT, 4, 5)
    a.stamp(5)
    while st['dma'] < PRE1 - 2:
        while st['rd'] <= st['dma'] - NS + 1 and st['rd'] < NR1: next_rd()
        next_dma()
    a(f"v_lshlrev_b32 v7, {sh(FAS)}, v2")
    a(f"buffer_load_dwordx2 v[4:5], v7, {WS}, s59 offen {SC}", tag='fa')
    while st['dma'] < PRE1:
        while st['rd'] <= st['dma'] - NS + 1 and st['rd'] < NR1: next_rd()
        next_dma()
    while st['rd'] < min(LEADR, FT1): next_rd()
    a.wait(vm='fa')
    def fa_mask():
        a(f"v_cmp_ne_u64 vcc, s[{TAG}:{TAG+1}], v[4:5]")
        a("s_lshl_b32 s56, s68, 2")
        a("s_lshr_b64 s[62:63], vcc, s56")
        a("s_sub_u32 s56, 64, s56")
        a("s_lshl_b64 vcc, vcc, s56")
        a("s_or_b64 s[62:63], s[62:63], vcc")
    def fa_need(lo, hi):
        m = ((1 << (4 * hi)) - 1) & ~((1 << (4 * lo)) - 1)
        Lok = lbl("FAOK"); Lp = lbl("FAP")
        keep = list(a.vm)
        a("s_mov_b32 s70, 0")
        a.label(Lp)
        a(f"s_and_b32 s56, s62, {hex(m & 0xffffffff)}")
        a(f"s_and_b32 s71, s63, {hex(m >> 32)}")
        a("s_or_b32 s56, s56, s71")
        a(f"s_cbranch_scc0 {Lok}")
        a("s_add_u32 s70, s70, 1")
        a(f"s_cmp_gt_u32 s70, {SPIN_MAX}")
        a(f"s_cbranch_scc1 {Lok}")
        a("s_sleep 2")
        a(f"buffer_load_dwordx2 v[4:5], v7, {WS}, s59 offen {SC}")
        a("s_waitcnt vmcnt(0)")
        fa_mask()
        a(f"s_branch {Lp}")
        a.label(Lok)
        a.vm = keep
    fa_mask()
    fa_need(0, 4 if PROG else 16)
    a.stamp(6)
    def hload(t, i):
        if i == 0: a("s_add_u32 s61, s57, s58")
        a(f"buffer_load_dwordx4 {q4(HS[t % NH]+i*4)}, v{VH+i}, {WS}, s61 offen {SCL}", tag=('h', t))
        if i == 3:
            a("s_add_u32 s58, s58, 4096")
            a("s_and_b32 s58, s58, 0xffff")
    for t in range(NH):
        for i in range(4): hload(t, i)
        if st['dma'] < min(NK, LEADD, st['rd'] + NS): next_dma()
    while st['rd'] < min(LEADR, st['dma']): next_rd()
    def w2_setup():
        if not P2:
            a("s_lshr_b32 s62, s65, 2")
            a("s_and_b32 s63, s65, 3")
            a("s_lshl_b32 s56, s64, 2")
            a("s_add_u32 s63, s63, s56")
        else:
            a("s_lshr_b32 s62, s65, 3")
            a("s_and_b32 s56, s64, 4")
            a("s_add_u32 s62, s62, s56")
            a("s_and_b32 s63, s65, 7")
            a("s_and_b32 s56, s64, 3")
            a("s_lshl_b32 s56, s56, 3")
            a("s_add_u32 s63, s63, s56")
        a("v_lshrrev_b32 v7, 3, v2")
        a(f"v_lshl_add_u32 v{VD}, v7, 12, v69")
        for t in range(1, 4):
            a(f"v_add_u32 v{VD+t}, {t*(32768-1024)}, v{VD}")
        a(f"s_mul_i32 s44, s40, {384*4096}")
        a("s_lshl_b32 s56, s63, 7")
        a("s_add_u32 s44, s44, s56")
        if ROT:
            a("s_and_b32 s46, s65, 3")
            a("s_mul_i32 s46, s46, 3")
            a("s_mul_i32 s56, s62, 3")
            a("s_lshr_b32 s56, s56, 1")
            a("s_add_u32 s46, s46, s56")
            a("s_cmp_ge_u32 s46, 12")
            a("s_cselect_b32 s56, 12, 0")
            a("s_sub_u32 s46, s46, s56")
        else:
            a("s_mov_b32 s46, 0")
        a("s_mov_b32 s68, s46")
        srd(a, 48, P_W2, S * F * 2)
        for si in range(4):
            a(f"s_add_u32 s56, s40, {si}")
            a("s_and_b32 s56, s56, 3")
            a("v_xor_b32 v7, s56, v70")
            a(f"v_lshl_add_u32 v{VT+si}, v7, 5, v71")
    W2 = "s[48:51]"
    SL2 = [3, 4, 5, 3, 4, 5, 3, 4, 0, 1, 5, 3]
    def trread2_parts(t):
        wb = WR2 + (t % NR2) * 16
        so = SL2[t] * 4096
        ps = []
        for si in range(4):
            def p(si=si):
                if si == 0: a.wait(vm=[('w2', t)])
                a(f"ds_read_b64_tr_b16 {pr(wb+si*4)}, v{VT2+si} offset:{so}", tag=('r2', t))
                a(f"ds_read_b64_tr_b16 {pr(wb+si*4+2)}, v{VT2+si} offset:{so+2048}", tag=('r2', t))
            ps.append(p)
        return ps
    def trread2(t):
        for p in trread2_parts(t): p()
    def dma2_parts(t, pre=None):
        def p0():
            if pre: pre()
            a(f"s_lshl_b32 s47, s46, 17")
            a("s_add_u32 s47, s47, s44")
            a(f"s_add_u32 m0, s45, {SL2[t]*4096}")
            a("s_add_u32 s46, s46, 1")
        ps = [p0]
        for i in range(4):
            ps.append(lambda i=i: a(f"buffer_load_dwordx4 v{VD+i}, {W2}, s47 offen offset:{i*1024} {NTB} lds", tag=('w2', t)))
        return ps
    def dma2(t):
        for p in dma2_parts(t): p()
    W2T0 = E('W2T0', 11)
    a(f"v_mov_b32 v3, {C_HIS}")
    a("v_mov_b32 v6, 1")
    def prog():
        a("s_mov_b64 exec, 1")
        a("ds_add_u32 v3, v6")
        a("s_mov_b64 exec, -1")
    for t in range(NK):
        wb = WR + (t % NR1) * 16
        hb = HS[t % NH]
        fill = []
        if st['dma'] < min(NK, st['rd'] + NS): next_dma(fill)
        if st['rd'] < NK and st['rd'] <= t - 1 + NR1: next_rd(fill)
        fill.append(prog)
        if t == W2T0:
            assert st['rd'] == NK and st['dma'] == NK, st
            fill.append(lambda: (a.wait(lg=[('r', NK - 1)]), w2_setup()))
        if W2T0 < t <= W2T0 + 3: fill.extend(dma2_parts(t - W2T0 - 1))
        if PROG and t % 4 == 0 and t + NH < NK: fa_need(t + NH, t + NH + 4)
        a.wait(vm=[('h', t)], lg=[('r', t)])
        last = EARLYW and t == NK - 1
        if last: a(f"v_add_u32 v4, s45, v{VL}")
        order = [1, 2, 3, 0] if last else [0, 1, 2, 3]
        for oi, di in enumerate(order):
            for phi in range(4):
                c = ACC + (phi * 4 + di) * 4
                src = "0" if t == 0 else q4(c)
                if not XNOMFMA or phi == 0: a(f"v_mfma_f32_16x16x32_bf16 {q4(c)}, {q4(wb+phi*4)}, {q4(hb+di*4)}, {src}")
                if last and oi >= 2:
                    dj = order[oi - 2]
                    a(f"ds_write_b128 v4, {q4(ACC+(phi*4+dj)*4)} offset:{(dj-1)*4096+phi*1024}")
                elif phi < 3 and fill: fill.pop(0)()
            if t + NH < NK: hload(t + NH, di)
        while fill: fill.pop(0)()
        if t == 5: a.stamp(7)
    a.stamp(8)
    if not EARLYW: a(f"v_add_u32 v4, s45, v{VL}")
    for di in range(3 if EARLYW else 1, 4):
        for phi in range(4):
            a(f"ds_write_b128 v4, {q4(ACC+(phi*4+di)*4)} offset:{(di-1)*4096+phi*1024}")
    for di in range(1, 4):
        a(f"s_sub_u32 s56, s40, {di}")
        a("s_and_b32 s56, s56, 3")
        a(f"s_mul_i32 s56, s56, {RING}")
        a(f"v_add_u32 v{4+di}, s56, v{VL}")
    a("s_lshl_b32 s56, s66, 2")
    a("s_add_u32 s56, s56, s40")
    a("s_mul_i32 s57, s56, 205")
    a("s_lshr_b32 s57, s57, 10")
    a("s_mul_i32 s58, s57, 5")
    a("s_sub_u32 s58, s56, s58")
    a("s_mul_i32 s57, s57, 48")
    a("s_lshl_b32 s59, s67, 1")
    a("s_add_u32 s57, s57, s59")
    a("s_mul_i32 s57, s57, 5")
    a("s_add_u32 s57, s57, s58")
    a("s_lshl_b32 s57, s57, 10")
    a(f"s_add_u32 s57, s57, {GF_OFF}")
    a("s_add_u32 s58, s57, 5120")
    a("s_mul_i32 s59, s56, 24")
    a("s_add_u32 s59, s59, s67")
    a(f"s_mul_i32 s59, s59, {FGS}")
    a(f"s_add_u32 s59, s59, {FG_OFF}")
    a(f"s_mov_b32 s60, {f2u(GELU_K1):#x}")
    BF, RB, SUM, OUT, TM, K0, ONE = 136, 8, 152, 168, ACC + 4, ACC + 12, ACC + 13
    a.wait(vm='b')
    unpack(a, BF, BI, 8)
    if not EXACT:
        for phi in range(4):
            for h in range(2):
                c = ACC + (phi * 4) * 4 + 2 * h
                a(f"v_pk_add_f32 {pr(c)}, {pr(c)}, {pr(BF+phi*4+2*h)}")
    lds_arrive(a, C_RED, 3, 4)
    for u in range(3): trread2(u)
    lds_wait(a, C_RED, 3, 4, 4)
    for di in range(1, 4):
        for phi in range(4):
            a(f"ds_read_b128 {q4(RB+((di-1)*4+phi)*4)}, v{4+di} offset:{(di-1)*4096+phi*1024}", tag=('p', di))
    for u in range(3, 6): dma2(u)
    a(f"v_mov_b32 v{K0}, {f2u(GELU_K0):#x}")
    for di in range(1, 4):
        a.wait(lg=[('p', di)])
        for phi in range(4):
            for h in range(2):
                s0 = ACC + (phi * 4) * 4 + 2 * h if di == 1 else SUM + phi * 4 + 2 * h
                a(f"v_pk_add_f32 {pr(SUM+phi*4+2*h)}, {pr(s0)}, {pr(RB+((di-1)*4+phi)*4+2*h)}")
    lds_arrive(a, C_RD, 3, ONE)
    n = 16
    if EXACT:
        round_bf16(a, SUM, 8, TM)
        for i in range(0, n, 2): a(f"v_pk_add_f32 {pr(SUM+i)}, {pr(SUM+i)}, {pr(BF+i)}")
        round_bf16(a, SUM, 8, TM)
    for half in range(2):
        R8 = range(8 * half, 8 * half + 8)
        for i in R8[::2]: a(f"v_pk_mul_f32 {pr(BF+i)}, {pr(SUM+i)}, {pr(SUM+i)}")
        for i in R8: a(f"v_fma_f32 v{BF+i}, v{BF+i}, s60, v{K0}")
        for i in R8[::2]: a(f"v_pk_mul_f32 {pr(BF+i)}, {pr(BF+i)}, {pr(SUM+i)}")
        for i in R8: a(f"v_exp_f32 v{BF+i}, v{BF+i}")
        for i in R8: a(f"v_add_f32 v{BF+i}, 1.0, v{BF+i}")
        for i in R8: a(f"v_rcp_f32 v{BF+i}, v{BF+i}")
        for i in R8[::2]: a(f"v_pk_mul_f32 {pr(SUM+i)}, {pr(SUM+i)}, {pr(BF+i)}")
        pack(a, OUT + 4 * half, SUM + 8 * half, 4)
        a(f"buffer_store_dwordx4 {q4(OUT+4*half)}, v{VL}, {WS}, s{57+half} offen {SC}", tag='gs')
    a(f"v_mov_b32 v3, {C_FGD}")
    a("v_mov_b32 v4, 1")
    a("s_mov_b64 exec, 1")
    a("ds_add_u32 v3, v4")
    a("s_mov_b64 exec, -1")
    for u in (3, 4): trread2(u)
    a.wait(vm='gs')
    set_flag(a, 59, 4, FGS)
    lds_arrive(a, C_FGF, 3, 7)
    a.stamp(9)
    keep = []
    a("s_or_b32 s56, s2, s40")
    a("s_cmp_lg_u32 s56, 0")
    a("s_cbranch_scc1 KF_NOEP")
    a(f"s_mov_b32 s56, {EP_OFF}")
    set_flag(a, 56, 4)
    a.label("KF_NOEP")
    lds_wait(a, C_FGF if E('GW', 1) else C_RD, 3, 4, 4)
    a("s_branch KF_G2B")
    a.label("KF_G2")
    w2_setup()
    lds_arrive(a, C_RED, 3, 4)
    a(f"v_mov_b32 v3, {C_HIS}")
    a("v_mov_b32 v4, 12")
    a("s_mov_b64 exec, 1")
    a("ds_add_u32 v3, v4")
    a("s_mov_b64 exec, -1")
    lds_arrive(a, C_FT, 3, 4)
    lds_arrive(a, C_FGD, 3, 4)
    lds_arrive(a, C_FGF, 3, 4)
    a("s_waitcnt vmcnt(0)")
    lds_arrive(a, C_RD, 3, 4)
    if FTGATE: lds_wait(a, C_FLG, 4, 5, 4, sleep=1)
    if not P2:
        a("v_lshrrev_b32 v3, 5, v2")
        a("v_lshlrev_b32 v3, 12, v3")
        a("v_and_b32 v4, 31, v2")
        a("v_lshl_add_u32 v3, v4, 4, v3")
    else:
        a(f"v_mov_b32 v3, v{VL}")
    a(f"s_mul_i32 s57, s40, {384*4096}")
    a("s_and_b32 s56, s65, 1")
    a(f"s_lshl_b32 s56, s56, {16 if P2 else 17}")
    a("s_add_u32 s57, s57, s56")
    if P2:
        a("s_and_b32 s56, s64, 3")
        a("s_lshl_b32 s56, s56, 10")
    else: a("s_lshl_b32 s56, s64, 9")
    a("s_add_u32 s57, s57, s56")
    a("s_mov_b32 s58, 0")
    a.label("KF_PF")
    for k in range(16):
        a(f"buffer_load_dwordx4 {q4(ACC+4*k)}, v3, {W2}, s57 offen {PFMOD}")
        a(f"s_add_u32 s57, s57, {(1 if P2 else 2)*4096}")
        a("s_waitcnt vmcnt(8)")
    a(f"s_add_u32 s57, s57, {(16 if P2 else 32)*4096}")
    a("s_add_u32 s58, s58, 1")
    a(f"s_cmp_lt_u32 s58, {PFSTEPS if P2 else PFSTEPS//2}")
    a("s_cbranch_scc1 KF_PF")
    for i in range(5, 10): a.stamp(i)
    a.reset_counts()
    for u in range(3): dma2(u)
    for u in range(3): trread2(u)
    a("s_waitcnt lgkmcnt(0)")
    for u in range(3, 6): dma2(u)
    for u in (3, 4): trread2(u)
    a("s_waitcnt vmcnt(0) lgkmcnt(0)")
    a.label("KF_G2B")
    NK = 12
    for u in range(6, W2PRE): dma2(u)
    a("s_mul_i32 s57, s62, 48")
    a("s_mul_i32 s56, s40, 12")
    a("s_add_u32 s57, s57, s56")
    a("s_mul_i32 s57, s57, 5120")
    a(f"s_add_u32 s57, s57, {GF_OFF}")
    a(f"v_add_u32 v{VH}, 4096, v{VL}")
    a("v_mul_u32_u24 v3, 43, v2")
    a("v_lshrrev_b32 v3, 8, v3")
    a("v_mul_u32_u24 v3, 18, v3")
    a("v_add_u32 v3, v3, v2")
    a(f"v_lshlrev_b32 v3, {FGS.bit_length()-1}, v3")
    a("s_mul_i32 s41, s62, 120")
    a("s_mul_i32 s56, s40, 6")
    a("s_add_u32 s41, s41, s56")
    a(f"s_mul_i32 s41, s41, {FGS}")
    a(f"s_add_u32 s41, s41, {FG_OFF}")
    a("s_mov_b32 s42, -1")
    a.stamp(10)
    def fg_need(ps, first=False):
        m = 0
        for p in ps:
            for i5 in range(5): m |= 1 << (6 * i5 + p)
        Lok = lbl("FGOK"); Lp = lbl("FGP")
        keep = list(a.vm)
        a("s_mov_b32 s70, 0")
        a.label(Lp)
        a(f"s_and_b32 s56, s42, {hex(m)}")
        a(f"s_cbranch_scc0 {Lok}")
        a("s_add_u32 s70, s70, 1")
        a(f"s_cmp_gt_u32 s70, {SPIN_MAX}")
        a(f"s_cbranch_scc1 {Lok}")
        if FGSL:
            a("s_cmp_eq_u32 s70, 1")
            a(f"s_cbranch_scc1 {Lp}_n")
            a(f"s_sleep {FGSL}")
            a.label(f"{Lp}_n")
        set_exec(a, 30)
        a(f"buffer_load_dwordx2 v[4:5], v3, {WS}, s41 offen {SC}")
        a("s_waitcnt vmcnt(0)")
        a(f"v_cmp_ne_u64 vcc, s[{TAG}:{TAG+1}], v[4:5]")
        a("s_mov_b64 exec, -1")
        a("s_mov_b32 s42, vcc_lo")
        a(f"s_branch {Lp}")
        a.label(Lok)
        a.vm = [] if first else keep
    fg_need([0, 1] if PROG else range(6), first=True)
    a.lg = []
    a.stamp(11)
    def gload(t, i):
        gb = GS[t % NG]
        if i < 4: a(f"buffer_load_dwordx4 {q4(gb+i*4)}, v{VL}, {WS}, s57 offen offset:{i*1024} {SCL}", tag=('g', t))
        else:
            a(f"buffer_load_dwordx4 {q4(gb+16)}, v{VH}, {WS}, s57 offen {SCL}", tag=('g', t))
            a("s_add_u32 s57, s57, 5120")
    for t in range(NG):
        for i in range(5): gload(t, i)
    B2 = srd(a, 52, P_B2, S * 2)
    a(f"v_and_b32 v6, 15, v2")
    a(f"v_lshrrev_b32 v7, 4, v2")
    a("s_movk_i32 s56, 1280")
    a(f"v_mul_u32_u24 v{VH+1}, s56, v6")
    a(f"v_lshl_add_u32 v{VH+1}, v7, 3, v{VH+1}")
    a(f"v_lshlrev_b32 v{VH+2}, 1, v6")
    a(f"v_mul_u32_u24 v{VH+3}, s56, v6")
    a("v_and_b32 v6, 1, v7")
    a(f"v_lshl_add_u32 v{VH+3}, v6, 5, v{VH+3}")
    a("v_lshrrev_b32 v6, 1, v7")
    a(f"v_lshl_add_u32 v{VH+3}, v6, 4, v{VH+3}")
    a("s_lshl_b32 s60, s63, 6")
    a("s_lshl_b32 s56, s40, 4")
    a("s_add_u32 s60, s60, s56")
    a("s_mul_i32 s61, s60, 1280")
    a("s_mul_i32 s56, s62, 160")
    a("s_add_u32 s61, s61, s56")
    B2V = 174
    a("s_lshl_b32 s56, s60, 1")
    a(f"buffer_load_ushort v{B2V}, v{VH+2}, {B2}, s56 offen", tag='x')
    a(f"v_mov_b32 v6, {C_P2}")
    a("v_mov_b32 v7, 1")
    def prog2():
        a("s_mov_b64 exec, 1")
        a("ds_add_u32 v6, v7")
        a("s_mov_b64 exec, -1")
    def red_off(si, i5):
        k = (si - 1) * 5 + i5
        return (k if k < 8 else k + 4) * 1024
    nd = [W2PRE]
    for t in range(NK):
        wb = WR2 + (t % NR2) * 16
        gb = GS[t % NG]
        if PROG and (t + NG) % 2 == 0 and t + NG < NK and t + NG >= 4: fg_need([(t + NG) // 2])
        fill = []
        u = nd[0]
        if u < NK and (u < 10 or t >= u - 8):
            if u >= 10:
                assert SL2[u] == SL2[u - NS2]
                fill.extend(dma2_parts(u, pre=lambda u=u: a.wait(lg=[('r2', u - NS2)])))
            else: fill.extend(dma2_parts(u))
            nd[0] += 1
        if t >= 1 and t - 1 + NR2 < NK:
            assert t - 1 + NR2 < nd[0]
            fill.extend(trread2_parts(t - 1 + NR2))
        if t == ZT: fill.append(prog2)
        a.wait(vm=[('g', t)], lg=[('r2', t)])
        last = EARLYW and t == NK - 1
        if last: a(f"v_add_u32 v4, s45, v{VL}")
        for i5 in range(5):
            for si in range(4):
                c = ACC + (i5 * 4 + si) * 4
                src = "0" if t == 0 else q4(c)
                if not XNOMFMA or si == 0: a(f"v_mfma_f32_16x16x32_bf16 {q4(c)}, {q4(gb+i5*4)}, {q4(wb+si*4)}, {src}")
                if last and i5 >= 2 and si >= 1:
                    a(f"ds_write_b128 v4, {q4(ACC+((i5-2)*4+si)*4)} offset:{red_off(si, i5-2)}")
                elif si < 3 and fill: fill.pop(0)()
            if t + NG < NK: gload(t + NG, i5)
        while fill: fill.pop(0)()
        if t == 3: a.stamp(12)
    a.stamp(13)
    if not EARLYW: a(f"v_add_u32 v4, s45, v{VL}")
    for i5 in range(3 if EARLYW else 0, 5):
        for si in range(1, 4):
            a(f"ds_write_b128 v4, {q4(ACC+(i5*4+si)*4)} offset:{red_off(si, i5)}")
    YF, TP, ER, EF = 176, 216, 226, 8
    for si in range(1, 4):
        a(f"s_sub_u32 s56, s40, {si}")
        a("s_and_b32 s56, s56, 3")
        a(f"s_mul_i32 s56, s56, {RING}")
        a(f"v_add_u32 v{48+si}, s56, v{VL}")
    a("v_lshlrev_b32 v48, 3, v2")
    a("v_add_u32 v48, s45, v48")
    a(f"v_lshlrev_b32 v{B2V}, 16, v{B2V}")
    OUTS = srd(a, 52, P_OUT, XBYTES)
    lds_arrive(a, C_E, 3, 5)
    lds_wait(a, C_E, 3, 5, 8)
    for i5 in range(5):
        a(f"ds_read_b64 {pr(ER+2*i5)}, v48 offset:{8192+i5*512}", tag='e')
    for si in range(1, 4):
        for i5 in range(5):
            a(f"ds_read_b128 {q4(ACC+(i5*4+si)*4)}, v{48+si} offset:{red_off(si, i5)}", tag=('p', si))
    a.wait(lg='e')
    unpack(a, EF, ER, 10)
    if not EXACT:
        for i in range(10): a(f"v_pk_add_f32 {pr(EF+2*i)}, {pr(EF+2*i)}, {pr(B2V)} op_sel_hi:[1,0]")
        for i5 in range(5):
            for h in range(2):
                c = ACC + (i5 * 4) * 4 + 2 * h
                a(f"v_pk_add_f32 {pr(c)}, {pr(c)}, {pr(EF+4*i5+2*h)}")
    for si in range(1, 4):
        a.wait(lg=[('p', si)])
        for i5 in range(5):
            for h in range(2):
                c = ACC + (i5 * 4) * 4 + 2 * h
                a(f"v_pk_add_f32 {pr(c)}, {pr(c)}, {pr(c+4*si)}")
    for i5 in range(5):
        for h in range(2):
            c = ACC + (i5 * 4) * 4 + 2 * h
            a(f"v_cvt_pk_bf16_f32 v{TP+2*i5+h}, v{c}, v{c+1}")
        if EXACT:
            unpack(a, YF + 4 * i5, TP + 2 * i5, 2)
            for h in range(2): a(f"v_pk_add_f32 {pr(YF+4*i5+2*h)}, {pr(YF+4*i5+2*h)}, {pr(B2V)} op_sel_hi:[1,0]")
            round_bf16(a, YF + 4 * i5, 2, TP + 2 * i5)
            for h in range(2): a(f"v_pk_add_f32 {pr(YF+4*i5+2*h)}, {pr(YF+4*i5+2*h)}, {pr(EF+4*i5+2*h)}")
            pack(a, TP + 2 * i5, YF + 4 * i5, 2)
        if not OWIDE or i5 == 4:
            a(f"buffer_store_dwordx2 {pr(TP+2*i5)}, v{VH+1}, {OUTS}, s61 offen offset:{32*i5} {OUTMOD}")
        elif i5 & 1:
            o = TP + 2 * (i5 - 1)
            a(f"v_permlane16_swap_b32 v{o}, v{o+2}")
            a(f"v_permlane16_swap_b32 v{o+1}, v{o+3}")
            a(f"buffer_store_dwordx4 {q4(o)}, v{VH+3}, {OUTS}, s61 offen offset:{32*(i5-1)} {OUTMOD}")
    a.flush_stamps(0, 14, vt=250, ws=P_WS)
    a("s_endpgm")

XG = C_FGF if E('XGF', 1) else C_FGD
XFA, XNA = 192, 212
XRAW = 242
def aux_ids(a):
    a("s_lshr_b32 s56, s2, 3")
    a("s_lshr_b32 s65, s56, 2")
    a("s_and_b32 s66, s56, 3")
    a("s_and_b32 s56, s2, 7")
    a("s_lshl_b32 s56, s56, 2")
    a("s_add_u32 s66, s66, s56")
    a("s_lshl_b32 s68, s66, 6")
    a("s_lshl_b32 s56, s64, 4")
    a("s_add_u32 s68, s68, s56")
    a(f"s_mul_i32 s67, s64, {RING}")

def aux_p0(a, base=None):
    aux_ids(a)
    if base is None: a(f"s_add_u32 s63, s67, {2*4096}")
    else: a(f"s_mov_b32 s63, {base}")
    a("s_mul_i32 s69, s68, 1280")
    a("s_mul_i32 s56, s65, 160")
    a("s_add_u32 s69, s69, s56")
    XS = srd(a, 48, P_Q, XBYTES)
    a("s_movk_i32 s56, 1280")
    for k in range(3):
        a(f"v_add_u32 v232, {64*k}, v2")
        a("v_mul_u32_u24 v233, 205, v232")
        a("v_lshrrev_b32 v233, 11, v233")
        a("v_mul_u32_u24 v234, 10, v233")
        a("v_sub_u32 v234, v232, v234")
        a("v_lshlrev_b32 v234, 4, v234")
        a(f"v_mad_u32_u24 v236, v233, s56, v234")
        a(f"s_add_u32 m0, s63, {k*1024}")
        if k == 2: set_exec(a, 32)
        a(f"buffer_load_dwordx4 v236, {XS}, s69 offen {NT} lds")
        if k == 2: a("s_mov_b64 exec, -1")
    a("v_and_b32 v232, 15, v2")
    a("s_movk_i32 s56, 160")
    a("v_mul_u32_u24 v240, s56, v232")
    a("v_lshrrev_b32 v233, 4, v2")
    a("v_lshl_add_u32 v240, v233, 3, v240")
    a("v_add_u32 v240, s63, v240")

def aux_p0b(a):
    for i5 in range(5):
        a(f"ds_read_b64 {pr(XRAW+2*i5)}, v240 offset:{32*i5}")

def aux_stats_addr(a):
    a("v_and_b32 v232, 15, v2")
    a("v_lshrrev_b32 v233, 2, v232")
    a("v_lshlrev_b32 v233, 6, v233")
    a("v_and_b32 v234, 3, v232")
    a("v_lshl_add_u32 v239, v234, 3, v233")
def aux_stats_load(a):
    a("s_lshr_b32 s59, s68, 5")
    a("s_lshl_b32 s59, s59, 8")
    a("s_and_b32 s56, s68, 16")
    a("s_lshl_b32 s56, s56, 1")
    a("s_add_u32 s59, s59, s56")
    a(f"s_add_u32 s59, s59, {ST_OFF}")
    a(f"buffer_load_dwordx2 v[232:233], v239, {WS}, s59 offen {SC}")
def aux_xn(a):
    unpack(a, XFA, XRAW, 10)
    for i in range(20): a(f"v_sub_f32 v{XNA+i}, v{XFA+i}, v232")
    round_bf16(a, XNA, 10, XRAW)
    for i in range(20): a(f"v_mul_f32 v{XNA+i}, v{XNA+i}, v233")
    round_bf16(a, XNA, 10, XRAW)
def aux_p1(a):
    aux_stats_addr(a)
    a("s_lshr_b32 s59, s68, 5")
    a(f"s_mul_i32 s59, s59, {4*FAS}")
    a(f"s_add_u32 s59, s59, {FA_OFF}")
    a(f"v_lshlrev_b32 v235, {sh(FAS)}, v2")
    poll(a, 235, 59, 232, 4, sleep=4)
    aux_stats_load(a)
    a("s_waitcnt vmcnt(0)")
    aux_xn(a)

def aux_p2(a):
    a("v_bfe_u32 v32, v2, 1, 2")
    a("v_lshrrev_b32 v33, 4, v2")
    a("v_xor_b32 v32, v32, v33")
    a("v_lshlrev_b32 v32, 5, v32")
    a("v_and_b32 v33, 1, v2")
    a("v_lshl_add_u32 v32, v33, 4, v32")
    a("v_lshrrev_b32 v33, 3, v2")
    a("v_lshl_add_u32 v32, v33, 12, v32")
    a("s_mul_i32 s57, s65, 80")
    a("s_mul_i32 s56, s64, 24")
    a("s_add_u32 s57, s57, s56")
    a(f"s_mul_i32 s59, s57, {FZS}")
    a(f"s_add_u32 s59, s59, {FZ_OFF}")
    a("s_lshl_b32 s57, s57, 12")
    a("s_lshl_b32 s56, s66, 7")
    a("s_add_u32 s57, s57, s56")
    a(f"s_add_u32 s57, s57, {Z_OFF}")
    a(f"s_mul_i32 s58, s64, {KB_CH}")
    a(f"s_add_u32 s58, s58, {L_K+128}")
    a("v_bfe_u32 v34, v2, 3, 2")
    a("v_xor_b32 v34, s64, v34")
    a("v_lshlrev_b32 v34, 5, v34")
    a("v_and_b32 v35, 3, v2")
    a("v_lshl_add_u32 v34, v35, 3, v34")
    a(f"v_add_u32 v34, {L_K+128}, v34")
    a("v_lshrrev_b32 v35, 2, v2")
    a(f"s_movk_i32 s56, {KB_CH - 24*128}")
    for i5 in range(5):
        a(f"v_add_u32 v36, {16*i5}, v35")
        a("v_mul_u32_u24 v37, 43, v36")
        a("v_lshrrev_b32 v37, 10, v37")
        a("v_lshl_add_u32 v36, v36, 7, v34")
        a(f"v_mad_u32_u24 v{40+i5}, v37, s56, v36")
    a("v_lshlrev_b32 v38, 3, v2")
    a("v_add_u32 v38, s67, v38")
    lds_wait(a, C_RD, 5, 6, 4, sleep=8)
    lds_wait(a, C_P2, 5, 6, 1, sleep=8)
    L8 = lbl("Z8"); Lj = lbl("ZJ")
    a(f"v_lshlrev_b32 v39, {sh(FZS)}, v2")
    a("s_cmp_eq_u32 s64, 3")
    a(f"s_cbranch_scc1 {L8}")
    poll(a, 39, 59, 46, 24, sleep=4)
    for k in range(3):
        a(f"s_add_u32 m0, s58, {k*1024}")
        a(f"buffer_load_dwordx4 v32, {WS}, s57 offen {SC} lds")
        a(f"s_add_u32 s57, s57, {8*4096}")
    a(f"s_branch {Lj}")
    a.label(L8)
    poll(a, 39, 59, 46, 8, sleep=4)
    a("s_mov_b32 m0, s58")
    a(f"buffer_load_dwordx4 v32, {WS}, s57 offen {SC} lds")
    a.label(Lj)
    a("s_waitcnt vmcnt(0)")
    lds_arrive(a, C_ZL, 5, 6)
    lds_wait(a, C_ZL, 5, 6, 4, sleep=1)
    for i5 in range(5):
        a(f"ds_read_b64_tr_b16 {pr(48+2*i5)}, v{40+i5}")
    a("s_waitcnt lgkmcnt(0)")
    unpack(a, 64, 48, 10)
    if EXACT:
        for i in range(20): a(f"v_mul_f32 v{64+i}, v{64+i}, v{XNA+i}")
        round_bf16(a, 64, 10, 48)
        for i in range(20): a(f"v_add_f32 v{64+i}, v{64+i}, v{XFA+i}")
    else:
        for i in range(20): a(f"v_fma_f32 v{64+i}, v{64+i}, v{XNA+i}, v{XFA+i}")
    pack(a, 48, 64, 10)
    for i5 in range(5):
        a(f"ds_write_b64 v38, {pr(48+2*i5)} offset:{8192+i5*512}")
    lds_arrive(a, C_E, 5, 6)

def gen_aux_early(a):
    a("s_setprio 3")
    a("s_sub_u32 s64, s40, 4")
    a("s_and_b32 s66, s2, 7")
    a("s_lshl_b32 s66, s66, 2")
    a("s_lshr_b32 s67, s2, 3")
    a("s_and_b32 s56, s67, 3")
    a("s_add_u32 s66, s66, s56")
    a("s_lshr_b32 s67, s67, 2")
    a("s_mul_i32 s68, s66, 81920")
    a("s_mul_i32 s56, s67, 160")
    a("s_add_u32 s68, s68, s56")
    a("s_mul_i32 s56, s64, 2560")
    a("s_add_u32 s68, s68, s56")
    a("s_movk_i32 s59, 10240-160")
    a("v_mul_u32_u24 v40, 205, v2")
    a("v_lshrrev_b32 v40, 11, v40")
    a("v_lshlrev_b32 v3, 4, v2")
    a("v_mad_u32_u24 v40, v40, s59, v3")
    a("v_add_u32 v42, 64, v2")
    a("v_mul_u32_u24 v41, 205, v42")
    a("v_lshrrev_b32 v41, 11, v41")
    a("v_lshlrev_b32 v42, 4, v42")
    a("v_mad_u32_u24 v41, v41, s59, v42")
    a("s_sub_u32 s58, s68, 3840")
    a("v_add_u32 v42, s58, v40")
    a("v_add_u32 v43, s58, v41")
    a("v_add_u32 v44, 1280, v42")
    a("v_add_u32 v45, 1280, v43")
    a("s_mul_i32 s57, s64, 2880")
    a("s_mul_i32 s60, s64, 2560")
    a("s_mov_b32 s56, 0xffff")
    a("s_cmp_lt_u32 s64, 2")
    a("s_cselect_b32 s61, 0x3ffffff, s56")
    a("s_cmp_lt_u32 s64, 1")
    a("s_cselect_b32 s63, 0x3ffffff, s56")
    common_entry(a)
    KS = srd(a, 44, P_K, XBYTES)
    VS = srd(a, 48, P_V, XBYTES)
    a("s_barrier")
    a.stamp(1)
    a(f"s_add_u32 m0, s57, {L_KS}")
    a(f"buffer_load_dwordx4 v42, {KS}, 0 offen {NT} lds")
    a(f"s_add_u32 m0, s57, {L_KS+1440}")
    a(f"buffer_load_dwordx4 v44, {KS}, 0 offen {NT} lds")
    a(f"s_add_u32 m0, s60, {L_VS}")
    a(f"buffer_load_dwordx4 v40, {VS}, s68 offen {NT} lds")
    a(f"buffer_load_dwordx4 v40, {VS}, s68 offen offset:1280 {NT} lds")
    a("s_mov_b32 exec_hi, 0")
    a("s_mov_b32 exec_lo, s61")
    a(f"s_add_u32 m0, s57, {L_KS+1024}")
    a(f"buffer_load_dwordx4 v43, {KS}, 0 offen {NT} lds")
    a("s_mov_b32 exec_lo, s63")
    a(f"s_add_u32 m0, s57, {L_KS+1440+1024}")
    a(f"buffer_load_dwordx4 v45, {KS}, 0 offen {NT} lds")
    a("s_mov_b32 exec_lo, 0xffff")
    a(f"s_add_u32 m0, s60, {L_VS+1024}")
    a(f"buffer_load_dwordx4 v41, {VS}, s68 offen {NT} lds")
    a(f"buffer_load_dwordx4 v41, {VS}, s68 offen offset:1280 {NT} lds")
    a("s_mov_b64 exec, -1")

def gen_aux(a):
    a("s_lshl_b32 s67, s67, 2")
    a("s_add_u32 s67, s67, s64")
    a("v_mul_u32_u24 v56, 52, v2")
    a("v_lshrrev_b32 v56, 8, v56")
    a("v_mul_u32_u24 v57, 5, v56")
    a("v_sub_u32 v57, v2, v57")
    a("v_lshlrev_b32 v61, 5, v57")
    a("s_mul_i32 s69, s67, 160")
    KR, VR, SK = 64, 86, 102
    SKS = srd(a, 52, P_SK, D * 8)
    a(f"buffer_load_dwordx4 {q4(SK)}, v61, {SKS}, s69 offen")
    a(f"buffer_load_dwordx4 {q4(SK+4)}, v61, {SKS}, s69 offen offset:16")
    tag_ready(a)
    lds_arrive(a, C_LNW, 5, 6)
    a("s_lshl_b32 s41, s64, 8")
    a("s_sub_u32 s42, 255, s2")
    a("s_add_u32 s41, s41, s42")
    a("s_lshl_b32 s62, s41, 12")
    a("v_mov_b32 v4, 0")
    SM = srd(a, 36, P_SSMK, D * S * 2)
    HL, HN = 192, 208
    def ssm_loads():
        for t in range(4):
            a(f"buffer_load_dwordx4 {q4(HL+4*t)}, v3, {SM}, s62 offen offset:{t*1024} {NT}")
        for t in range(4):
            a(f"buffer_load_dwordx2 {pr(HN+2*t)}, v3, {SM}, s62 offen offset:{t*1024+16}")
        SD = srd(a, 44, P_SSMD, D * 2)
        a("s_lshl_b32 s56, s41, 1")
        a(f"buffer_load_ushort v8, v4, {SD}, s56 offen")
    a("s_movk_i32 s56, 160")
    a("v_mul_u32_u24 v58, s56, v56")
    a("v_lshl_add_u32 v58, v57, 3, v58")
    a("s_mul_i32 s56, s64, 40")
    a(f"s_add_u32 s56, s56, {L_KS}")
    a("v_add_u32 v58, s56, v58")
    a(f"s_mul_i32 s42, s64, {HCOPY}")
    a(f"s_add_u32 s42, s42, {L_H}")
    a(f"s_mul_i32 s43, s64, {KB_CH}")
    a(f"s_add_u32 s43, s43, {L_K}")
    srd(a, 32, P_WS, WS_TOTAL)
    a("v_lshrrev_b32 v12, 3, v2")
    a("v_and_b32 v13, 7, v2")
    a("v_lshlrev_b32 v9, 14, v12")
    a("v_lshl_add_u32 v9, v13, 4, v9")
    a(f"s_mul_i32 s57, s67, {20*4096}")
    a("s_lshl_b32 s56, s66, 7")
    a("s_add_u32 s57, s57, s56")
    a(f"s_add_u32 s57, s57, {KVR_OFF}")
    a("s_mul_i32 s58, s64, 768")
    a(f"s_add_u32 s58, s58, {L_KVT}")
    a("s_movk_i32 s56, 144")
    a("v_mul_u32_u24 v10, s56, v57")
    a("v_lshl_add_u32 v10, v56, 4, v10")
    a("v_add_u32 v10, s58, v10")
    a("v_mul_u32_u24 v11, s56, v12")
    a("v_lshl_add_u32 v11, v13, 4, v11")
    a("v_add_u32 v11, s58, v11")
    if SSMLATE == 0: ssm_loads()
    a.stamp(2)
    a(f"s_waitcnt vmcnt({0 if SSMLATE else 9})")
    a.vm = []
    a.stamp(3)
    lds_arrive(a, C_KVL, 5, 6)
    if SSMLATE == 2: ssm_loads()
    lds_wait(a, C_KVL, 5, 6, 4)
    set_exec(a, 40)
    for t in range(11):
        a(f"ds_read_b64 {pr(KR+2*t)}, v58 offset:{(t % 8)*1440 + (t // 8)*160}")
    for t in range(8):
        a(f"ds_read_b64 {pr(VR+2*t)}, v58 offset:{12*1024 + t*1280}")
    a("s_waitcnt lgkmcnt(0)")
    W, KF, VF, O = 112, 120, 142, 160
    for p in range(2):
        for e in range(2):
            c = 2 * p + e
            a(f"v_lshlrev_b32 v{W+0+e}, 16, v{SK+2*c}")
            a(f"v_and_b32 v{W+2+e}, 0xffff0000, v{SK+2*c}")
            a(f"v_lshlrev_b32 v{W+4+e}, 16, v{SK+2*c+1}")
            a(f"v_and_b32 v{W+6+e}, 0xffff0000, v{SK+2*c+1}")
        for t in range(11):
            a(f"v_lshlrev_b32 v{KF+2*t}, 16, v{KR+2*t+p}")
            a(f"v_and_b32 v{KF+2*t+1}, 0xffff0000, v{KR+2*t+p}")
        for t in range(8):
            a(f"v_lshlrev_b32 v{VF+2*t}, 16, v{VR+2*t+p}")
            a(f"v_and_b32 v{VF+2*t+1}, 0xffff0000, v{VR+2*t+p}")
        for r in range(8):
            a(f"v_pk_mul_f32 {pr(KF+2*r)}, {pr(KF+2*r)}, {pr(W+6)}")
            a(f"v_pk_fma_f32 {pr(KF+2*r)}, {pr(KF+2*(r+1))}, {pr(W+4)}, {pr(KF+2*r)}")
            a(f"v_pk_fma_f32 {pr(KF+2*r)}, {pr(KF+2*(r+2))}, {pr(W+2)}, {pr(KF+2*r)}")
            a(f"v_pk_fma_f32 {pr(KF+2*r)}, {pr(KF+2*(r+3))}, {pr(W+0)}, {pr(KF+2*r)}")
        for r in range(8):
            a(f"v_pk_mul_f32 {pr(VF+2*r)}, {pr(VF+2*r)}, {pr(KF+2*r)}")
        for e in range(2):
            Ob = O + 8 * p + 4 * e
            for q in range(4):
                a(f"v_cvt_pk_bf16_f32 v{Ob+q}, v{VF+2*(7-2*q)+e}, v{VF+2*(6-2*q)+e}")
            a(f"ds_write_b128 v10, {q4(Ob)}")
            a(f"ds_read_b128 {q4(Ob)}, v11")
    a("s_waitcnt lgkmcnt(0)")
    for c in range(4):
        a(f"buffer_store_dwordx4 {q4(O+4*c)}, v9, {WS}, s57 offen {SC}", tag='ks')
        a("s_add_u32 s57, s57, 4096")
    a("s_mov_b64 exec, -1")
    a.stamp(4)
    lds_arrive(a, C_KVD, 5, 6)
    a("s_lshl_b32 s59, s67, 5")
    a("s_add_u32 s59, s59, s66")
    a(f"s_mul_i32 s59, s59, {FKS}")
    a(f"s_add_u32 s59, s59, {FK_OFF}")
    a(f"s_cmp_ge_u32 s41, {0 if XNOCONV else D}")
    a("s_cbranch_scc1 KF_NOCONV")
    a.wait(vm='ks')
    set_flag(a, 59, 12, FKS)
    lds_arrive(a, C_FLG, 5, 6)
    a.stamp(5)
    if SSMLATE == 1:
        lds_wait(a, C_FLG, 5, 6, 4)
        ssm_loads()
    lds_wait(a, C_KVD, 5, 6, 4)
    lds_wait(a, C_LNR, 5, 6, 4)
    a("s_waitcnt vmcnt(0)")
    a("v_add_u32 v9, s42, v3")
    TA = 216
    for t in range(4):
        d = [HL + 4 * t + i for i in range(4)] + [HN + 2 * t, HN + 2 * t + 1]
        a(f"ds_write_b128 v9, {q4(d[0])} offset:{32+t*1024}")
        for i in range(4): a(f"v_alignbit_b32 v{TA+i}, v{d[i+1]}, v{d[i]}, 16")
        for i in range(4): a(f"v_mov_b32 v{TA+4+i}, v{d[i+1]}")
        for i in range(4): a(f"v_alignbit_b32 v{TA+8+i}, v{d[i+2]}, v{d[i+1]}, 16")
        for j in range(1, 4):
            a(f"ds_write_b128 v9, {q4(TA+4*(j-1))} offset:{j*HJ+32+t*1024}")
        TA = 216 + 12 * ((t + 1) & 1)
    a(f"v_readfirstlane_b32 s60, v{HL}")
    a(f"v_readfirstlane_b32 s61, v{HL+1}")
    a("v_mov_b32 v6, s60")
    a("v_mov_b32 v7, s61")
    a("v_lshlrev_b32 v9, 3, v2")
    a("v_add_u32 v9, s43, v9")
    a("v_mov_b32 v5, 0")
    a("ds_write_b64 v9, v[4:5]")
    a("v_and_b32 v11, 15, v2")
    a("v_lshrrev_b32 v12, 4, v2")
    a("v_add_u32 v13, 1, v11")
    a("v_and_b32 v14, 3, v13")
    a(f"s_movk_i32 s56, {HJ}")
    a("v_mul_u32_u24 v10, s56, v14")
    a("v_and_b32 v14, 0x1c, v13")
    a("v_lshl_add_u32 v10, v14, 1, v10")
    a("v_lshl_add_u32 v10, v12, 4, v10")
    a("v_add_u32 v10, s42, v10")
    a("v_lshlrev_b32 v15, 1, v11")
    a("v_sub_u32 v15, v15, v12")
    a("v_lshlrev_b32 v15, 4, v15")
    a(f"s_add_u32 s57, s43, {33*16-448}")
    a("v_add_u32 v15, s57, v15")
    a("v_lshrrev_b32 v16, 2, v2")
    a("v_and_b32 v17, 3, v2")
    a("v_mul_u32_u24 v18, s56, v16")
    a("v_lshl_add_u32 v18, v17, 3, v18")
    a("v_add_u32 v18, s42, v18")
    a("v_lshlrev_b32 v19, 4, v16")
    a("v_sub_u32 v19, 64, v19")
    a("v_lshlrev_b32 v20, 3, v12")
    a("v_add_u32 v20, v20, v11")
    a("v_sub_u32 v20, 15, v20")
    a("v_and_b32 v21, 1, v20")
    a("v_lshlrev_b32 v21, 4, v21")
    a("v_lshrrev_b32 v20, 1, v20")
    a("v_lshlrev_b32 v22, 5, v11")
    a("v_lshl_add_u32 v22, v12, 3, v22")
    aux_ids(a)
    a("s_mul_i32 s59, s41, 3277")
    a("s_lshr_b32 s59, s59, 16")
    a(f"s_mul_i32 s59, s59, {32*FKS}")
    a(f"s_add_u32 s59, s59, {FK_OFF}")
    a(f"v_lshl_add_u32 v23, v2, {sh(FKS)}, s59")
    a("s_lshr_b32 s59, s68, 5")
    a(f"s_mul_i32 s59, s59, {4*FAS}")
    a(f"s_add_u32 s59, s59, {FA_OFF - 32*FAS}")
    a(f"v_lshl_add_u32 v28, v2, {sh(FAS)}, s59")
    a("v_cmp_gt_u32 vcc, 32, v2")
    a("v_cndmask_b32 v23, v28, v23, vcc")
    a("s_mov_b32 s59, 0")
    if FKGATE: lds_wait(a, C_FT, 28, 29, 4, sleep=2)
    poll(a, 23, 59, 28, 36, sleep=PSLEEP)
    a.stamp(6)
    aux_stats_addr(a)
    aux_stats_load(a)
    a("s_add_u32 m0, s43, 512")
    a(f"s_add_u32 s57, s62, {KVR_OFF}")
    for t in range(4):
        a(f"buffer_load_dwordx4 v3, {WS}, s57 offen offset:{t*1024} {SC} lds")
    a("v_lshlrev_b64 v[6:7], v19, v[6:7]")
    a("s_mov_b32 s60, 0x8880")
    a("s_mov_b32 s61, 0")
    a("v_cndmask_b32 v6, 0, v6, s[60:61]")
    a("v_cndmask_b32 v7, 0, v7, s[60:61]")
    a("s_mov_b64 exec, 0xffff")
    a("ds_write_b64 v18, v[6:7]")
    a("s_mov_b64 exec, -1")
    a("v_lshlrev_b32 v8, v21, v8")
    DF = 24
    for j in range(4):
        a(f"v_cmp_eq_u32 vcc, {j}, v20")
        a(f"v_cndmask_b32 v{DF+j}, 0, v8, vcc")
    CACC, AB, BB = 32, 64, 128
    def rd(r, idx):
        buf = (r & 1) * 32
        if idx < 8:
            q = 8 * idx - r
            a(f"ds_read_b128 {q4(BB+buf+idx*4)}, v15 offset:{64*(q+7)}")
        else:
            kap = idx - 8
            k = 8 * kap + r
            a(f"ds_read_b64 {pr(AB+buf+kap*4)}, v10 offset:{64*k}")
            a(f"ds_read_b64 {pr(AB+buf+kap*4+2)}, v10 offset:{64*k+8}")
    for idx in range(8, 16): rd(0, idx)
    a(f"s_setprio {E('CVPRIO', 0)}")
    a("s_waitcnt vmcnt(0)")
    a.stamp(7)
    for idx in range(8): rd(0, idx)
    a(f"v_mov_b32 v30, {C_HIS}")
    a("ds_read_b32 v31, v30")
    for r in range(8):
        buf = (r & 1) * 32
        a("s_waitcnt lgkmcnt(0)")
        if r == CVPAUSE:
            lds_wait(a, C_FGD, 5, 6, 4, sleep=8)
        if YIELD:
            Ly = lbl("NOY")
            a("v_readfirstlane_b32 s56, v31")
            a(f"s_cmp_lt_u32 s56, {YIELD}")
            a(f"s_cbranch_scc1 {Ly}")
            lds_wait(a, C_FGD, 5, 6, 4, sleep=8)
            a.label(Ly)
        seq = []
        if r == 0:
            for n in range(8): seq.append(('d', n))
        for kap in range(8):
            for n in range(kap, 8): seq.append((kap, n))
        nxt = list(range(16)) if r < 7 else []
        for i, (kap, n) in enumerate(seq):
            c = q4(CACC + n * 4)
            if kap == 'd':
                a(f"v_mfma_f32_16x16x32_bf16 {c}, {q4(DF)}, {q4(BB+buf+n*4)}, 0")
            else:
                a(f"v_mfma_f32_16x16x32_bf16 {c}, {q4(AB+buf+kap*4)}, {q4(BB+buf+(n-kap)*4)}, {c}")
            if nxt and i % 2 == 0:
                rd(r + 1, nxt.pop(0))
            if YIELD and i == len(seq) - 3 and r < 7: a("ds_read_b32 v31, v30")
        if r == 3: a.stamp(8)
    a.stamp(9)
    a("s_setprio 3")
    a(f"s_add_u32 s57, s62, {Z_OFF}")
    if ZWIDE:
        a("v_and_b32 v13, 1, v12")
        a("v_lshlrev_b32 v22, 9, v13")
        a("v_lshl_add_u32 v22, v11, 5, v22")
        a("v_lshrrev_b32 v13, 1, v12")
        a("v_lshl_add_u32 v22, v13, 4, v22")
        for n in range(0, 8, 2):
            o = AB + 2 * n
            a(f"v_cvt_pk_bf16_f32 v{o}, v{CACC+4*n}, v{CACC+4*n+1}")
            a(f"v_cvt_pk_bf16_f32 v{o+1}, v{CACC+4*n+2}, v{CACC+4*n+3}")
            a(f"v_cvt_pk_bf16_f32 v{o+2}, v{CACC+4*n+4}, v{CACC+4*n+5}")
            a(f"v_cvt_pk_bf16_f32 v{o+3}, v{CACC+4*n+6}, v{CACC+4*n+7}")
            a(f"v_permlane16_swap_b32 v{o}, v{o+2}")
            a(f"v_permlane16_swap_b32 v{o+1}, v{o+3}")
            a(f"buffer_store_dwordx4 {q4(o)}, v22, {WS}, s57 offen offset:{512*n} {SC}")
    else:
        for n in range(8):
            a(f"v_cvt_pk_bf16_f32 v{AB+2*n}, v{CACC+4*n}, v{CACC+4*n+1}")
            a(f"v_cvt_pk_bf16_f32 v{AB+2*n+1}, v{CACC+4*n+2}, v{CACC+4*n+3}")
            a(f"buffer_store_dwordx2 {pr(AB+2*n)}, v22, {WS}, s57 offen offset:{512*n} {SC}")
    a("v_mov_b32 v190, v232")
    a("v_mov_b32 v191, v233")
    a("s_add_u32 s58, s43, 512")
    aux_p0(a, "s58")
    a(f"s_mul_i32 s59, s41, {FZS}")
    a(f"s_add_u32 s59, s59, {FZ_OFF}")
    a("s_waitcnt vmcnt(3)")
    set_flag(a, 59, 12, FZS)
    a.stamp(10)
    a("s_waitcnt vmcnt(0)")
    aux_p0b(a)
    a("v_mov_b32 v232, v190")
    a("v_mov_b32 v233, v191")
    lds_wait(a, C_FGD, 5, 6, 4, sleep=8)
    aux_xn(a)
    a("s_branch KF_P2")
    a.label("KF_NOCONV")
    a("s_waitcnt vmcnt(0)")
    set_flag(a, 59, 12, FKS)
    lds_arrive(a, C_FLG, 5, 6)
    a.stamp(5)
    if PFSTEPS < 12 and not XNOW2:
        a("s_cmp_lg_u32 s64, 3")
        a("s_cbranch_scc1 KF_AUXEND")
        nrow = (12 - PFSTEPS) * (32 if P2 else 16)
        a("s_lshr_b32 s60, s2, 3")
        a("s_and_b32 s61, s2, 7")
        if not P2:
            a("s_lshr_b32 s57, s60, 2")
            a("s_and_b32 s56, s60, 3")
            a("s_lshl_b32 s58, s61, 2")
            a("s_add_u32 s56, s56, s58")
        else:
            a("s_lshr_b32 s57, s60, 3")
            a("s_and_b32 s58, s61, 4")
            a("s_add_u32 s57, s57, s58")
            a("s_and_b32 s56, s60, 7")
            a("s_and_b32 s58, s61, 3")
            a("s_lshl_b32 s58, s58, 3")
            a("s_add_u32 s56, s56, s58")
        if not P2:
            a("s_lshr_b32 s58, s57, 1")
            a("s_mul_i32 s58, s58, 384")
            a("s_and_b32 s57, s57, 1")
            a(f"s_mul_i32 s57, s57, {nrow}")
            a("s_add_u32 s57, s57, s58")
        else:
            a("s_and_b32 s57, s57, 3")
            a("s_mul_i32 s57, s57, 384")
        a(f"s_add_u32 s57, s57, {32*PFSTEPS}")
        a("s_lshl_b32 s57, s57, 12")
        a("s_lshl_b32 s56, s56, 7")
        a("s_add_u32 s57, s57, s56")
        a("v_lshrrev_b32 v59, 3, v2")
        a("v_and_b32 v60, 7, v2")
        a("v_lshlrev_b32 v60, 4, v60")
        a("v_lshl_add_u32 v62, v59, 12, v60")
        W2 = srd(a, 36, P_W2, S * F * 2)
        if STAG:
            a("s_lshr_b32 s58, s2, 3")
            a(f"s_and_b32 s58, s58, {STAG-1}")
            a(f"s_add_u32 s58, s58, {STAG0}")
            a("s_lshl_b32 s58, s58, 2")
            lds_wait(a, C_HIS, 5, 6, "s58", sleep=4)
        else:
            lds_wait(a, C_HIS, 5, 6, 48, sleep=4)
        for k in range(nrow // 8):
            a(f"buffer_load_dwordx4 {q4(64+4*(k%30))}, v62, {W2}, s57 offen {NTW}")
            a(f"s_add_u32 s57, s57, {8*4096}")
    a.label("KF_AUXEND")
    aux_ids(a)
    aux_stats_addr(a)
    a("s_lshr_b32 s59, s68, 5")
    a(f"s_mul_i32 s59, s59, {4*FAS}")
    a(f"s_add_u32 s59, s59, {FA_OFF}")
    lds_wait(a, C_HIS, 5, 6, 40, sleep=8)
    a(f"v_lshlrev_b32 v235, {sh(FAS)}, v2")
    poll(a, 235, 59, 232, 4, sleep=4)
    aux_stats_load(a)
    a("s_waitcnt vmcnt(0)")
    a("v_mov_b32 v190, v232")
    a("v_mov_b32 v191, v233")
    lds_wait(a, C_RD, 5, 6, 4, sleep=2)
    aux_p0(a)
    a("s_waitcnt vmcnt(0)")
    aux_p0b(a)
    a("v_mov_b32 v232, v190")
    a("v_mov_b32 v233, v191")
    lds_wait(a, C_FGD, 5, 6, 4, sleep=8)
    aux_xn(a)
    a.label("KF_P2")
    a.stamp(11)
    aux_p2(a)
    a.flush_stamps(0, 12, vt=250, ws=P_WS)

NAME = "parallel_sum__ssm_conv_h3__mixer_token_mlp__prompt"
def build(path, as_list=True):
    ref = open(f"cdna_kernels/{NAME}.s.ref").read().split("\n")
    hdr = [l for l in ref if l.startswith(";") and "@launch" not in l and "Override launch" not in l and "grid=ceil" not in l]
    kn = NAME + "_kernel"
    t, d = gen(kn)
    s = "\n".join(hdr) + "\n"
    if as_list: s += f"; @launch kernel={kn} grid=(256,1,1) block=({THREADS},1,1) lds={LDS_TOTAL}\n"
    else: s += f"; @launch grid=(256,1,1) block=({THREADS},1,1) lds={LDS_TOTAL}\n"
    doc = """; ---------------------------------------------------------------------------------------------
;   waves 0-3: LayerNorm x2 of 8 rows -> h (MFMA fragment order, ws); GEMM1 64x64 tile (split-K over the
;   Cross-workgroup hand-offs: sc1 stores, vmcnt drain, tagged 8-byte flags in ws (tag = epoch word + const),
; ---------------------------------------------------------------------------------------------
"""
    s += '.amdgcn_target "amdgcn-amd-amdhsa--gfx950"\n' + doc + t + d
    open(path, "w").write(s)
if __name__ == "__main__":
    import sys
    build(sys.argv[1], as_list=(len(sys.argv) <= 2))
```
